```python
import torch

def _softmax(x, axis=-1):
    return torch.softmax(x, dim=axis)
def _gelu(x):
    return torch.nn.functional.gelu(x, approximate="tanh")
def _silu(x):
    return torch.nn.functional.silu(x)
def _sigmoid(x):
    return torch.sigmoid(x)
def _layernorm(x, axis=-1, eps=1e-5):
    m = x.mean(dim=axis, keepdim=True)
    v = x.var(dim=axis, keepdim=True, unbiased=False)
    return (x - m) / torch.sqrt(v + eps)
def _scatter_add(tgt, idx, src, axis=0):
    return tgt.clone().index_add_(axis, idx, src)
def _segment_sum(src, seg, n):
    out = torch.zeros((n,) + src.shape[1:], dtype=src.dtype)
    return out.index_add_(0, seg, src)
def _pad(x, pw):
    flat = tuple(v for pair in reversed(pw) for v in pair)
    return torch.nn.functional.pad(x, flat)

kernel_name = 'gated_mix__ssm_conv_s4__glu_gated_geglu__prompt'

def setup_inputs():

    _w = (lambda a: (lambda t: t.to(torch.bfloat16) if t.is_floating_point() else t)(torch.as_tensor(a)))
    def _A_setup():
        B, L, D, N = 1, 2048, 448, 256
        A_re = -(lambda _x: torch.exp(torch.as_tensor(_x)))((lambda *s: torch.randn(*s, dtype=torch.bfloat16) * 6.4)(D, N))
        A_im = torch.pi * (lambda *s: torch.randn(*s, dtype=torch.bfloat16) * 0.05)(D, N)
        B_re = (lambda *s: torch.randn(*s, dtype=torch.bfloat16) * 0.05)(D, N)
        B_im = (lambda *s: torch.randn(*s, dtype=torch.bfloat16) * 0.05)(D, N)
        C_re = (lambda *s: torch.randn(*s, dtype=torch.bfloat16) * 0.05)(D, N)
        C_im = (lambda *s: torch.randn(*s, dtype=torch.bfloat16) * 0.05)(D, N)
        log_dt = (lambda *s: torch.randn(*s, dtype=torch.bfloat16) * 0.05)(D) * 0.5 - 4.0
        Dskip = (lambda *s: torch.randn(*s, dtype=torch.bfloat16) * 0.05)(D)
        return {
            "u": _w((lambda *s: torch.randn(*s, dtype=torch.bfloat16) * 0.05)(B, L, D)),
            "A_re": _w(A_re),
            "A_im": _w(A_im),
            "B_re": _w(B_re),
            "B_im": _w(B_im),
            "C_re": _w(C_re),
            "C_im": _w(C_im),
            "log_dt": _w(log_dt),
            "Dskip": _w(Dskip),
        }
    _A_in = _A_setup()

    def _B_setup():
        B, S, Dm, Df = 1, 2048, 448, 1792
        return {
            "x": _w((lambda *s: torch.randn(*s, dtype=torch.bfloat16) * 0.05)(B, S, Dm)),
            "w_gate": _w((lambda *s: torch.randn(*s, dtype=torch.bfloat16) * 1.6)(Dm, Df) * (Dm ** -0.5)),
            "w_up": _w((lambda *s: torch.randn(*s, dtype=torch.bfloat16) * 1.6)(Dm, Df) * (Dm ** -0.5)),
            "w_down": _w((lambda *s: torch.randn(*s, dtype=torch.bfloat16) * 1.6)(Df, Dm) * (Df ** -0.5)),
        }
    _B_in = _B_setup()

    return {
        "A_u": _A_in["u"],
        "A_A_re": _A_in["A_re"],
        "A_A_im": _A_in["A_im"],
        "A_B_re": _A_in["B_re"],
        "A_B_im": _A_in["B_im"],
        "A_C_re": _A_in["C_re"],
        "A_C_im": _A_in["C_im"],
        "A_log_dt": _A_in["log_dt"],
        "A_Dskip": _A_in["Dskip"],
        "B_x": _B_in["x"],
        "B_w_gate": _B_in["w_gate"],
        "B_w_up": _B_in["w_up"],
        "B_w_down": _B_in["w_down"],
        "gate_w": _w((lambda *s: torch.randn(*s, dtype=torch.bfloat16) * 0.05)(448) * 16.0),
    }

def reference(A_u, A_A_re, A_A_im, A_B_re, A_B_im, A_C_re, A_C_im, A_log_dt, A_Dskip, B_x, B_w_gate, B_w_up, B_w_down, gate_w):
    def _A_ref(u, A_re, A_im, B_re, B_im, C_re, C_im, log_dt, Dskip):
        Bsz, L, D = u.shape
        dt = torch.exp(log_dt)[:, None]
        A = A_re + 1j * A_im
        Bc = B_re + 1j * B_im
        Cc = C_re + 1j * C_im
        logdA = dt * A
        dB = dt * Bc
        l = (lambda x, dt: x.to(dt))(torch.arange(L), A_re.dtype)
        P = torch.exp(logdA[:, :, None] * l[None, None, :])
        K = torch.einsum("dn,dnl,dn->dl", Cc, P, dB).real
        L2 = 2 * L
        Kp = _pad(K, ((0, 0), (0, L)))
        up = (lambda x, *d: x.permute(*d))(u, 0, 2, 1)
        up = _pad(up, ((0, 0), (0, 0), (0, L)))
        Kf = (lambda x, axes=(-2,-1): torch.fft.rfft2(x.float(), dim=axes))(Kp[:, None, :], axes=(-2, -1))
        Uf = (lambda x, axes=(-2,-1): torch.fft.rfft2(x.float(), dim=axes))(up[:, :, None, :], axes=(-2, -1))
        Yf = Uf * Kf[None, :, :, :]
        y = (lambda x, s, axes=(-2,-1): torch.fft.irfft2(x, s=s, dim=axes).to(torch.bfloat16))(Yf, (1, L2), axes=(-2, -1))[:, :, 0, :L]
        y = (lambda x, *d: x.permute(*d))(y, 0, 2, 1) + u * Dskip[None, None, :]
        return y

    def _B_ref(x, w_gate, w_up, w_down):
        g = torch.einsum("bsd,df->bsf", x, w_gate)
        u = torch.einsum("bsd,df->bsf", x, w_up)
        h = _gelu(g) * u
        return torch.einsum("bsf,fd->bsd", h, w_down)

    x = A_u
    g = _sigmoid((x * gate_w).sum(-1, keepdims=True))
    a = _A_ref(x, A_A_re, A_A_im, A_B_re, A_B_im, A_C_re, A_C_im, A_log_dt, A_Dskip)
    b = _B_ref(x, B_w_gate, B_w_up, B_w_down)
    return g * a + (1 - g) * b
```

```python
NAME = 'gated_mix__ssm_conv_s4__glu_gated_geglu__prompt'
KA = dict(u=0, Are=8, Aim=16, Bre=24, Bim=32, Cre=40, Cim=48, ldt=56, Dsk=64, Bx=72, Wg=80, Wu=88, Wd=96, gw=104, out=112, dbg=120, ws=128)
WS_H, WS_H_SZ = 0x0, 64 * 112 * 1024
WS_U2, WS_U2_SZ = 0x800000, 112 * 16384
WS_AT, WS_AT_SZ = 0xA00000, 448 * 4096
WS_G, WS_G_SZ = 0xC00000, 8192
WS_TS = 0xD00000
SZ_U = 2048 * 448 * 2
SZ_W = 448 * 1792 * 2
SZ_P = 448 * 256 * 2

class Asm:
    def __init__(self):
        self.l = []
    def __call__(self, s=''):
        for x in s.split('\n'):
            x = x.strip()
            if not x: continue
            if x.endswith(':') or x.startswith('.'): self.l.append(x)
            else: self.l.append('    ' + x)
    def text(self): return '\n'.join(self.l) + '\n'

def v(a, n=1): return f"v{a}" if n == 1 else f"v[{a}:{a+n-1}]"
def s(a, n=1): return f"s{a}" if n == 1 else f"s[{a}:{a+n-1}]"

def srd(A, d, ptr, size, off=0):
    if off:
        A(f"s_add_u32 s{d}, s{ptr}, {off}\ns_addc_u32 s{d+1}, s{ptr+1}, 0")
    else:
        A(f"s_mov_b32 s{d}, s{ptr}\ns_mov_b32 s{d+1}, s{ptr+1}")
    A(f"s_mov_b32 s{d+2}, {size}\ns_mov_b32 s{d+3}, 0x00020000")

def kernel_head(name):
    return f""".globl {name}
.p2align 8
.type {name},@function
{name}:
"""
def kernel_desc(name, nv, ns=96):
    return f""".p2align 6
.amdhsa_kernel {name}
  .amdhsa_next_free_vgpr {nv}
  .amdhsa_next_free_sgpr {ns}
  .amdhsa_accum_offset {(nv + 3) // 4 * 4}
  .amdhsa_group_segment_fixed_size 0
  .amdhsa_kernarg_size 136
  .amdhsa_user_sgpr_count 2
  .amdhsa_user_sgpr_kernarg_segment_ptr 1
  .amdhsa_system_sgpr_workgroup_id_x 1
.end_amdhsa_kernel
"""
def f2u(x):
    import struct
    return '0x%08x' % struct.unpack('<I', struct.pack('<f', x))[0]

def interleave(main, fill, per=None):
    out = []
    n = len(main); k = 0
    for i, m in enumerate(main):
        out.append(m)
        c = per[i] if per else (len(fill) - k + (n - i) - 1) // (n - i)
        for _ in range(c):
            if k < len(fill): out.append(fill[k]); k += 1
    out += fill[k:]
    return out

class Stamps:
    def __init__(self, on): self.on = on; self.n = 0
    def start(self, A):
        if not self.on: return
        self.n = 1
        A("s_mov_b32 s90, s2\ns_memtime s[64:65]\ns_memrealtime s[92:93]\ns_getreg_b32 s91, hwreg(HW_REG_HW_ID)\ns_getreg_b32 s89, hwreg(HW_REG_XCC_ID)")
    def mark(self, A):
        if not self.on: return
        A(f"s_memtime s[{64+2*self.n}:{65+2*self.n}]\ns_waitcnt lgkmcnt(0)"); self.n += 1
    def finish(self, A, base=0):
        if not self.on: return
        A("s_waitcnt vmcnt(0)")
        self.mark(A)
        A(f"""s_memrealtime s[94:95]
        s_load_dwordx2 s[60:61], s[0:1], {KA['ws']}
        s_waitcnt lgkmcnt(0)
        s_add_u32 s60, s60, {WS_TS}
        s_addc_u32 s61, s61, 0
        s_mov_b32 s62, 0x100000
        s_mov_b32 s63, 0x00020000
        s_add_u32 s90, s90, {base}
        s_lshl_b32 s90, s90, 2
        s_add_u32 s90, s90, s24
        s_lshl_b32 s90, s90, 6
        v_mov_b32 v1, s90
        s_mov_b64 exec, 1
        v_mov_b32 v2, s92
        buffer_store_dword v2, v1, s[60:63], 0 offen
        v_mov_b32 v3, s94
        buffer_store_dword v3, v1, s[60:63], 0 offen offset:4
        v_mov_b32 v4, s91
        buffer_store_dword v4, v1, s[60:63], 0 offen offset:8
        v_mov_b32 v5, s89
        buffer_store_dword v5, v1, s[60:63], 0 offen offset:12""")
        for k in range(1, self.n):
            A(f"s_sub_u32 s88, s{64+2*k}, s64\nv_mov_b32 v{5+k}, s88\nbuffer_store_dword v{5+k}, v1, s[60:63], 0 offen offset:{12+4*k}")
        A("s_waitcnt vmcnt(0)")
```

```python
from common import *
import math
XBUF = [49152, 65536]; WBUF = [0, 16384, 32768]
ACC = 64
FR = [16, 40]
V_XD, V_WGD, V_WUD = 1, 2, 3
V_XR = 4
V_WR = 8
V_ST = 12
def role_f(A, ST, usepk=True, tsbase=0):
    A(f"""
    s_load_dwordx2 s[4:5], s[0:1], {KA['u']}
    s_load_dwordx4 s[28:31], s[0:1], {KA['Wg']}
    s_load_dwordx2 s[6:7], s[0:1], {KA['ws']}
    v_lshrrev_b32 v13, 6, v0
    v_and_b32 v0, 63, v0
    v_readfirstlane_b32 s24, v13
    v_lshrrev_b32 v14, 3, v0              ; lane>>3
    v_lshrrev_b32 v15, 4, v0              ; lane>>4
    s_and_b32 s27, s24, 1                 ; wr
    s_lshr_b32 s32, s24, 1                ; wc
    s_lshl_b32 s33, s27, 2
    v_add_u32 v16, s33, v15
    v_and_b32 v17, 7, v0
    v_xor_b32 v17, v17, v16
    v_lshlrev_b32 v17, 4, v17
    v_mov_b32 v18, 896
    v_mad_u32_u24 v{V_XD}, v14, v18, v17
    v_lshlrev_b32 v16, 1, v15
    v_and_b32 v17, 15, v0
    v_xor_b32 v17, v17, v16
    v_lshlrev_b32 v17, 4, v17
    v_mov_b32 v18, 3584
    v_mad_u32_u24 v{V_WGD}, v15, v18, v17
    v_xor_b32 v{V_WUD}, 128, v{V_WGD}
    s_waitcnt lgkmcnt(0)
    """)
    srd(A, 8, 4, SZ_U); srd(A, 12, 28, SZ_W); srd(A, 16, 30, SZ_W); srd(A, 20, 6, WS_H_SZ, WS_H)
    A(f"""
    s_lshl_b32 s34, s25, 4
    s_add_u32 s34, s34, s24
    s_mul_i32 s34, s34, {8*896}
    s_mul_i32 s35, s24, {4*3584}
    s_lshl_b32 s37, s26, 8
    s_add_u32 s35, s35, s37
    s_lshl_b32 s36, s24, 10
    """)
    def dmaX(b, i):
        return (f"s_add_u32 m0, s36, {XBUF[b & 1] + i * 4096}\n"
                f"s_add_u32 s38, s34, {i * 32 * 896 + b * 128}\n"
                f"buffer_load_dwordx4 v{V_XD}, s[8:11], s38 offen lds")
    def dmaW(st, m, i):
        return (f"s_add_u32 m0, s36, {WBUF[st % 3] + m * 8192 + i * 4096}\n"
                f"s_add_u32 s38, s35, {(32 * st + 16 * i) * 3584}\n"
                f"buffer_load_dwordx4 v{V_WUD if m else V_WGD}, s[{16 if m else 12}:{19 if m else 15}], s38 offen lds")
    def stW(st): return [dmaW(st, m, i) for i in range(2) for m in range(2)]
    def stX(b): return [dmaX(b, i) for i in range(4)]
    for x in stX(0) + stW(0) + stW(1) + stX(1) + stW(2): A(x)
    A(f"""
    v_and_b32 v16, 31, v0                 ; t
    v_lshrrev_b32 v17, 5, v0              ; h
    v_bfe_u32 v18, v0, 1, 3               ; (t>>1)&7
    s_lshl_b32 s33, s27, 13               ; wr*64*128
    s_add_u32 s33, s33, {XBUF[0]}
    v_lshlrev_b32 v16, 7, v16
    v_add_u32 v16, s33, v16
    """)
    for k in range(4):
        A(f"v_or_b32 v19, {2*k}, v17\nv_xor_b32 v19, v19, v18\nv_lshl_add_u32 v{V_XR+k}, v19, 4, v16")
    A(f"""
    v_bfe_u32 v16, v0, 4, 1               ; m
    v_bfe_u32 v18, v0, 2, 2               ; r
    v_and_b32 v19, 3, v0                  ; c
    v_lshlrev_b32 v20, 13, v16            ; m*8192
    v_lshl_add_u32 v20, v17, 11, v20      ; + h*2048
    v_lshl_add_u32 v20, v18, 8, v20       ; + r*256
    v_lshl_add_u32 v20, v19, 3, v20       ; + c*8
    v_lshl_or_b32 v21, v16, 2, v18        ; s = r | m<<2
    s_lshl_b32 s33, s32, 2                ; 4*wc
    v_xor_b32 v21, s33, v21
    """)
    for j in range(4):
        A(f"v_xor_b32 v19, {j}, v21\nv_lshl_add_u32 v{V_WR+j}, v19, 5, v20")
    A(f"""
    s_lshl_b32 s33, s25, 1
    s_add_u32 s33, s33, s27
    s_mul_i32 s33, s33, 224
    s_lshl_b32 s37, s26, 3
    s_add_u32 s33, s33, s37
    s_lshl_b32 s37, s32, 2
    s_add_u32 s33, s33, s37
    s_lshl_b32 s39, s33, 10
    v_lshlrev_b32 v{V_ST}, 4, v0
    """)
    def reads(n):
        st, ks = n >> 1, n & 1
        b, ks4 = n >> 2, n & 3
        f = FR[n & 1]
        r = []
        xr = [f"ds_read_b128 {v(f + 4*tt, 4)}, v{V_XR+ks4} offset:{XBUF[b & 1] - XBUF[0] + tt * 4096}" for tt in range(2)]
        wr = [[f"ds_read_b64_tr_b16 {v(f + 8 + 4*j + 2*p, 2)}, v{V_WR+j} offset:{WBUF[st % 3] + ks * 4096 + p * 1024}" for p in range(2)] for j in range(4)]
        return [xr[0]] + wr[0] + [xr[1]] + wr[1] + wr[2] + wr[3]
    def mfmas(n):
        f = FR[n & 1]
        out = []
        for j in range(4):
            for tt in range(2):
                a = ACC + (tt * 4 + j) * 16
                c = '0' if n == 0 else v(a, 16)
                out.append(f"v_mfma_f32_32x32x16_bf16 {v(a,16)}, {v(f+8+4*j,4)}, {v(f+4*tt,4)}, {c}")
        return out
    A("s_waitcnt vmcnt(12)\ns_barrier")
    ST.mark(A)
    for x in reads(0): A(x)
    for n in range(28):
        dm = []
        if n & 1:
            sp = (n + 1) >> 1
            if sp <= 13:
                young = 0
                if sp == 1: young = 8
                else:
                    if sp + 1 <= 13: young += 4
                    if (sp + 1) % 2 == 0 and (sp + 1) // 2 <= 6: young += 4
                A(f"s_waitcnt vmcnt({young}) lgkmcnt(0)\ns_barrier")
                if sp + 2 <= 13: dm += stW(sp + 2)
                if sp % 2 == 0 and sp // 2 + 1 <= 6: dm += stX(sp // 2 + 1)
            else:
                A("s_waitcnt lgkmcnt(0)")
            pend = dm[len(dm)//2:]; dm = dm[:len(dm)//2]
        else:
            A("s_waitcnt lgkmcnt(0)")
            if n > 0: dm = pend
        rd = reads(n + 1) if n < 27 else []
        mm = mfmas(n)
        seq = []
        di = 0
        for i, m in enumerate(mm):
            seq.append(m)
            seq += rd[2*i:2*i+2]
            if i >= 3 and di < len(dm): seq.append(dm[di]); di += 1
        seq += dm[di:]
        for x in seq: A(x)
    ST.mark(A)
    k2 = -2.0 * math.sqrt(2.0 / math.pi) * math.log2(math.e)
    C1, C2, ONE = 4, 6, 8
    A(f"""
    v_mov_b32 v{C1}, {f2u(k2)}
    v_mov_b32 v{C1+1}, {f2u(k2)}
    v_mov_b32 v{C2}, {f2u(k2*0.044715)}
    v_mov_b32 v{C2+1}, {f2u(k2*0.044715)}
    v_mov_b32 v{ONE}, 1.0
    v_mov_b32 v{ONE+1}, 1.0
    s_nop 7
    """)
    order = [(tt, j) for j in range(4) for tt in range(2)]
    for idx, (tt, j) in enumerate(order):
        a = ACC + (tt * 4 + j) * 16
        T = 16 + 16 * (idx & 1)
        O = T + 8
        if usepk:
            for p in range(4): A(f"v_pk_mul_f32 {v(T+2*p,2)}, {v(a+2*p,2)}, {v(a+2*p,2)}")
            for p in range(4): A(f"v_pk_fma_f32 {v(T+2*p,2)}, {v(T+2*p,2)}, {v(C2,2)}, {v(C1,2)}")
            for p in range(4): A(f"v_pk_mul_f32 {v(T+2*p,2)}, {v(T+2*p,2)}, {v(a+2*p,2)}")
            for p in range(8): A(f"v_exp_f32 v{T+p}, v{T+p}")
            for p in range(4): A(f"v_pk_mul_f32 {v(a+2*p,2)}, {v(a+2*p,2)}, {v(a+8+2*p,2)}")
            for p in range(4): A(f"v_pk_add_f32 {v(T+2*p,2)}, {v(T+2*p,2)}, {v(ONE,2)}")
            for p in range(8): A(f"v_rcp_f32 v{T+p}, v{T+p}")
            A("s_nop 0")
            for p in range(4): A(f"v_pk_mul_f32 {v(a+2*p,2)}, {v(a+2*p,2)}, {v(T+2*p,2)}")
        else:
            for p in range(8): A(f"v_mul_f32 v{T+p}, v{a+p}, v{a+p}")
            for p in range(8): A(f"v_fma_f32 v{T+p}, v{T+p}, v{C2}, v{C1}")
            for p in range(8): A(f"v_mul_f32 v{T+p}, v{T+p}, v{a+p}")
            for p in range(8): A(f"v_exp_f32 v{T+p}, v{T+p}")
            for p in range(8): A(f"v_mul_f32 v{a+p}, v{a+p}, v{a+8+p}")
            for p in range(8): A(f"v_add_f32 v{T+p}, 1.0, v{T+p}")
            for p in range(8): A(f"v_rcp_f32 v{T+p}, v{T+p}")
            A("s_nop 0")
            for p in range(8): A(f"v_mul_f32 v{a+p}, v{a+p}, v{T+p}")
        for p in range(4): A(f"v_cvt_pk_bf16_f32 v{O+p}, v{a+2*p}, v{a+2*p+1}")
        A(f"s_add_u32 s38, s39, {(tt * 112 + j) * 1024}")
        A(f"buffer_store_dwordx4 {v(O,4)}, v{V_ST}, s[20:23], s38 offen")
    ST.mark(A)
    ST.finish(A, tsbase)
    A("s_endpgm")
```

```python
from common import *
D = 7
ACC = 128
HR = 64
WF = [16, 24]
ATILE = 65536
def role_g(A, ST, korder=None, tsbase=0):
    A(f"""
    s_load_dwordx2 s[4:5], s[0:1], {KA['Wd']}
    s_load_dwordx2 s[28:29], s[0:1], {KA['out']}
    s_load_dwordx2 s[6:7], s[0:1], {KA['ws']}
    v_lshrrev_b32 v13, 6, v0
    v_and_b32 v0, 63, v0
    v_readfirstlane_b32 s24, v13
    v_lshrrev_b32 v14, 3, v0              ; lane>>3
    v_bfe_u32 v15, v0, 4, 1
    v_lshlrev_b32 v15, 2, v15
    v_and_b32 v16, 7, v0
    v_xor_b32 v16, v16, v15
    v_lshlrev_b32 v16, 4, v16
    v_mov_b32 v17, 896
    v_mad_u32_u24 v1, v14, v17, v16
    v_lshl_add_u32 v2, v14, 12, v16
    v_lshlrev_b32 v3, 4, v0               ; lane*16
    s_and_b32 s27, s24, 1                 ; wt
    s_lshr_b32 s32, s24, 1                ; wd
    s_waitcnt lgkmcnt(0)
    """)
    srd(A, 8, 4, SZ_W); srd(A, 12, 6, WS_H_SZ, WS_H); srd(A, 16, 6, WS_AT_SZ, WS_AT); srd(A, 20, 28, SZ_U); srd(A, 44, 6, WS_G_SZ, WS_G)
    A(f"""
    s_mul_i32 s34, s24, {28*16*896}
    s_lshl_b32 s33, s26, 7
    s_add_u32 s34, s34, s33
    s_lshl_b32 s36, s24, 14
    s_lshl_b32 s35, s25, 1
    s_add_u32 s35, s35, s27
    s_xor_b32 s37, s35, 1
    s_mul_i32 s35, s35, 112
    s_mul_i32 s37, s37, 112
    s_mul_i32 s33, s24, 28
    s_add_u32 s35, s35, s33
    s_add_u32 s37, s37, s33
    s_lshl_b32 s35, s35, 10
    s_lshl_b32 s37, s37, 10
    """)
    A(f"""
    s_lshl_b32 s33, s26, 3
    s_add_u32 s33, s33, s24
    s_lshl_b32 s33, s33, 15               ; (64ct + 8w)*4096
    s_lshl_b32 s38, s25, 7
    s_add_u32 s33, s33, s38
    s_lshl_b32 s39, s24, 10
    s_add_u32 m0, s39, {ATILE}
    s_add_u32 s38, s33, {32*4096}
    buffer_load_dwordx4 v2, s[16:19], s33 offen lds
    s_add_u32 m0, s39, {ATILE + 4096}
    v_and_b32 v4, 31, v0
    buffer_load_dwordx4 v2, s[16:19], s38 offen lds
    v_lshlrev_b32 v5, 2, v4
    s_lshl_b32 s33, s25, 1
    s_add_u32 s33, s33, s27
    s_lshl_b32 s33, s33, 7
    buffer_load_dword v6, v5, s[44:47], s33 offen
    """)
    def loads(n):
        r = []
        for i in range(2):
            r.append(f"s_add_u32 m0, s36, {(n % 8) * 2048 + i * 1024}\ns_add_u32 s38, s34, {(16*n + 8*i) * 896}\nbuffer_load_dwordx4 v1, s[8:11], s38 offen lds")
        for bt in range(2):
            r.append(f"s_add_u32 s38, s{35 + 2*bt}, {n * 1024}\nbuffer_load_dwordx4 {v(HR + (n % 8) * 8 + 4*bt, 4)}, v3, s[12:15], s38 offen")
        return r
    for n in range(D):
        for x in loads(n): A(x)
    A(f"""
    v_bfe_u32 v14, v0, 4, 1               ; c16
    v_lshrrev_b32 v15, 5, v0              ; h
    v_bfe_u32 v16, v0, 2, 2               ; r
    v_and_b32 v17, 3, v0
    v_lshl_add_u32 v18, v15, 2, v16       ; 4h + r
    v_lshlrev_b32 v18, 7, v18
    v_lshl_add_u32 v18, v17, 3, v18
    v_and_b32 v19, 2, v16                 ; ((r>>1)&1)<<1
    v_xor_b32 v19, v19, v14
    v_lshl_add_u32 v18, v19, 5, v18
    s_lshl_b32 s33, s32, 6
    v_xor_b32 v7, s33, v18
    v_add_u32 v7, s36, v7
    v_xor_b32 v8, 64, v7
    s_lshl_b32 s33, s27, 6
    v_xor_b32 v9, s33, v18
    s_lshl_b32 s33, s32, 12
    s_add_u32 s33, s33, {ATILE}
    v_add_u32 v9, s33, v9
    """)
    def reads(n):
        f = WF[n & 1]
        return [f"ds_read_b64_tr_b16 {v(f + 4*bd + 2*p, 2)}, v{7+bd} offset:{(n % 8) * 2048 + p * 1024}" for bd in range(2) for p in range(2)]
    A(f"s_waitcnt vmcnt({4*(D-1)})")
    ST.mark(A)
    for x in reads(0): A(x)
    for n in range(28):
        out_after = min(27, n + D - 1) - (n + 1)
        if n < 27: A(f"s_waitcnt vmcnt({4*max(0,out_after)}) lgkmcnt(0)")
        else: A("s_waitcnt lgkmcnt(0)")
        rd = reads(n + 1) if n < 27 else []
        ld = loads(n + D) if n + D < 28 else []
        f = WF[n & 1]
        mm = []
        for bd in range(2):
            for bt in range(2):
                a = ACC + (bd * 2 + bt) * 16
                mm.append(f"v_mfma_f32_32x32x16_bf16 {v(a,16)}, {v(f+4*bd,4)}, {v(HR+(n%8)*8+4*bt,4)}, {'0' if n == 0 else v(a,16)}")
        for i, m in enumerate(mm):
            A(m)
            if i < 2:
                for x in rd[2*i:2*i+2]: A(x)
            if ld: A(ld[i])
    ST.mark(A)
    A("s_barrier")
    for b in range(1, 4):
        A(f"s_xor_b32 s33, s24, {b}\ns_mul_i32 s33, s33, {3*4096}\nv_add_u32 v{9+b}, s33, v3")
    A("s_nop 4")
    for b in range(1, 4):
        for k in range(4):
            A(f"ds_write_b128 v{9+b}, {v(ACC + 16*b + 4*k, 4)} offset:{(b-1)*4096 + k*1024}")
    A(f"s_mul_i32 s33, s24, {3*4096}\nv_add_u32 v10, s33, v3\ns_waitcnt lgkmcnt(0)\ns_barrier")
    for b in range(3):
        for k in range(4):
            A(f"ds_read_b128 {v(64 + 16*b + 4*k, 4)}, v10 offset:{b*4096 + k*1024}")
    for j in range(4):
        A(f"ds_read_b64_tr_b16 {v(16 + 2*j, 2)}, v9 offset:{j*1024}")
    A(f"""
    v_mov_b32 v17+15, 0
    """.replace("v_mov_b32 v17+15, 0", ""))
    A(f"""
    v_mov_b32 v11, 896
    v_lshrrev_b32 v12, 5, v0
    v_lshlrev_b32 v12, 4, v12
    v_mad_u32_u24 v11, v4, v11, v12
    s_lshl_b32 s33, s25, 1
    s_add_u32 s33, s33, s27
    s_mul_i32 s33, s33, {32*896}
    s_lshl_b32 s38, s26, 7
    s_add_u32 s33, s33, s38
    s_lshl_b32 s38, s32, 6
    s_add_u32 s33, s33, s38
    s_mov_b32 s39, 0xffff0000
    """)
    for b in range(3):
        A(f"s_waitcnt lgkmcnt({4*(2-b) + 4})")
        for k in range(16): A(f"v_add_f32 v{ACC+k}, v{ACC+k}, v{64+16*b+k}")
    A("s_waitcnt lgkmcnt(0)")
    for k in range(16):
        src = 16 + k // 2
        if k & 1: A(f"v_and_b32 v{32+k}, s39, v{src}")
        else: A(f"v_lshlrev_b32 v{32+k}, 16, v{src}")
    for k in range(16): A(f"v_sub_f32 v{32+k}, v{32+k}, v{ACC+k}")
    for k in range(16): A(f"v_fma_f32 v{32+k}, v6, v{32+k}, v{ACC+k}")
    for k in range(8): A(f"v_cvt_pk_bf16_f32 v{48+k}, v{32+2*k}, v{33+2*k}")
    A("s_nop 1")
    for jj in range(2):
        A(f"v_permlane32_swap_b32 v{48+4*jj}, v{50+4*jj}\nv_permlane32_swap_b32 v{49+4*jj}, v{51+4*jj}")
    for jj in range(2):
        A(f"buffer_store_dwordx4 {v(48+4*jj,4)}, v11, s[20:23], s33 offen offset:{32*jj}")
    ST.finish(A, tsbase)
    A("s_endpgm")
```

```python
from common import *
import math
RP = 1056
FINE = 41
CMP = [60192, 64304]; CMPSZ = 4112
UB = [68416, 73024]
CP = 4160; CH = 4 * CP
RED = 33280
L2E = math.log2(math.e)

class Lds:
    def __init__(self, A): self.A = A; self.q = []
    def issue(self, ins, tag): self.A(ins); self.q.append(tag)
    def need(self, *tags):
        idx = max((i for i, t in enumerate(self.q) if t in tags), default=-1)
        if idx < 0: return
        n = len(self.q) - 1 - idx
        self.A(f"s_waitcnt lgkmcnt({min(n, 15)})")
        self.q = self.q[idx + 1:] if n <= 15 else self.q[len(self.q) - 15:]

def role_s(A, ST, wait_u=None, sc='', tsbase=0):
    P = 32
    A(f"""
    s_load_dwordx8 s[40:47], s[0:1], {KA['Are']}
    s_load_dwordx8 s[48:55], s[0:1], {KA['Cre']}
    s_load_dwordx2 s[6:7], s[0:1], {KA['ws']}
    v_lshrrev_b32 v13, 6, v0
    v_lshlrev_b32 v1, 1, v0               ; tid*2
    v_readfirstlane_b32 s24, v13
    v_lshlrev_b32 v2, 2, v0
    s_lshl_b32 s33, s25, 10               ; d0*512
    s_lshl_b32 s34, s25, 2                ; d0*2
    s_waitcnt lgkmcnt(0)
    s_load_dword s36, s[52:53], s34
    s_load_dword s37, s[54:55], s34
    s_mov_b32 s10, {SZ_P}
    s_mov_b32 s11, 0x00020000
    """)
    for k in range(6):
        A(f"s_mov_b32 s8, s{40+2*k}\ns_mov_b32 s9, s{41+2*k}")
        for c in range(2):
            A(f"buffer_load_ushort v{P+6*c+k}, v1, s[8:11], s33 offen offset:{512*c}")
    srd(A, 12, 6, WS_U2_SZ, WS_U2); srd(A, 16, 6, WS_AT_SZ, WS_AT)
    A(f"""
    v_mov_b32 v4, 0
    v_mov_b32 v5, 0x3f80
    ds_write_b32 v2, v5
    v_and_b32 v6, 127, v0
    v_lshlrev_b32 v6, 2, v6
    v_lshrrev_b32 v7, 7, v0
    v_mov_b32 v8, {UB[1]-UB[0]}
    v_mad_u32_u24 v6, v7, v8, v6
    v_add_u32 v6, {UB[0]}, v6
    ds_write_b32 v6, v4
    v_mov_b32 v6, {CMP[0] + 4096}
    ds_write_b32 v6, v4
    ds_write_b32 v6, v4 offset:{CMPSZ}
    """)
    def u_dma():
        A(f"""
        v_and_b32 v6, 63, v0
        v_lshlrev_b32 v6, 6, v6
        s_lshr_b32 s38, s25, 1
        s_lshl_b32 s38, s38, 14
        s_and_b32 s39, s25, 1
        s_lshl_b32 s39, s39, 5
        s_add_u32 s38, s38, s39
        s_lshl_b32 s39, s24, 12
        s_add_u32 s38, s38, s39
        s_lshl_b32 s39, s24, 10
        s_add_u32 m0, s39, {UB[0] + 512}
        s_nop 0
        buffer_load_dwordx4 v6, s[12:15], s38 offen lds {sc}
        s_add_u32 m0, s39, {UB[1] + 512}
        s_add_u32 s38, s38, 16
        buffer_load_dwordx4 v6, s[12:15], s38 offen lds {sc}
        """)
    if wait_u is None: u_dma()
    GA = 16
    A(f"v_lshlrev_b32 v6, 4, v0\nv_sub_u32 v6, 4094, v6\nv_cvt_f32_u32 v6, v6")
    for e in range(10): A(f"v_add_f32 v{48+e}, {f2u(-2.0*e)}, v6")
    for e in range(0, 10, 2): A(f"v_cvt_pk_bf16_f32 v{58+e//2}, v{48+e}, v{49+e}")
    for e in range(9):
        A(f"v_and_b32 v{48+e}, 0xffff0000, v{58+e//2}" if e & 1 else f"v_lshlrev_b32 v{48+e}, 16, v{58+e//2}")
    for e in range(9): A(f"v_cvt_u32_f32 v{GA+e}, v{48+e}")
    A(f"v_mov_b32 v7, 4098\nv_cmp_eq_u32 vcc, 255, v0\ns_nop 1\nv_cndmask_b32 v{GA+8}, v{GA+8}, v7, vcc")
    for e in range(9): A(f"v_add_u32 v{GA+e}, {CMP[0]}, v{GA+e}")
    A(f"""
    v_and_b32 v6, 15, v0
    v_bfe_u32 v7, v0, 4, 2
    v_mov_b32 v8, {RP}
    v_lshlrev_b32 v9, 4, v7
    v_mad_u32_u24 v27, v6, v8, v9
    s_mul_i32 s38, s24, {16*RP}
    v_add_u32 v26, s38, v27
    v_add_u32 v27, {FINE*RP}, v27
    """)
    A(f"""
    v_lshlrev_b32 v9, 4, v6               ; 8i*2
    v_add_u32 v9, {CMP[0]}, v9
    s_cmp_eq_u32 s24, 1
    s_cbranch_scc1 S_ca1
    s_cmp_eq_u32 s24, 2
    s_cbranch_scc1 S_ca2
    v_lshlrev_b32 v10, 3, v7
    v_bfe_u32 v11, v7, 1, 1
    v_mul_u32_u24 v11, 240, v11
    v_add3_u32 v28, v9, v10, v11
    v_add_u32 v29, 2, v28
    v_add_u32 v30, 4, v28
    v_add_u32 v31, 6, v28
    s_branch S_cadone
S_ca1:
    v_lshlrev_b32 v10, 8, v7              ; q<2: 256+128q+2r ; q>=2: 256q + 128(r>>1) + 4(r&1)   (bytes = x2)
    v_add_u32 v10, 512, v10
    v_lshlrev_b32 v11, 9, v7
    v_cmp_lt_u32 vcc, 1, v7
    s_nop 1
    v_cndmask_b32 v10, v10, v11, vcc
    v_add_u32 v28, v9, v10
    v_mov_b32 v11, 4
    v_cndmask_b32 v11, v11, 8, vcc
    v_add_u32 v29, v28, v11
    v_mov_b32 v11, 8
    v_mov_b32 v12, 256
    v_cndmask_b32 v11, v11, v12, vcc
    v_add_u32 v30, v28, v11
    v_mov_b32 v11, 12
    v_mov_b32 v12, 264
    v_cndmask_b32 v11, v11, v12, vcc
    v_add_u32 v31, v28, v11
    s_branch S_cadone
S_ca2:
    v_lshlrev_b32 v10, 10, v7             ; 1024 + 128(4q + r)
    v_add3_u32 v28, v9, v10, 0
    v_add_u32 v28, 2048, v28
    v_add_u32 v29, 256, v28
    v_add_u32 v30, 512, v28
    v_add_u32 v31, 768, v28
S_cadone:
    """)
    tmp = [60, 61, 62, 63]
    pk = [64, 65, 66, 67]
    cnt = [0]
    def cmul(z, x, y):
        t = tmp[cnt[0] & 1]; t2 = tmp[2 + (cnt[0] & 1)]
        A(f"v_mul_f32 v{t}, v{x+1}, v{y+1}\nv_mul_f32 v{t2}, v{x+1}, v{y}\nv_fma_f32 v{z}, v{x}, v{y}, -v{t}\nv_fma_f32 v{z+1}, v{x}, v{y+1}, v{t2}")
    def put(row, z, neg=False):
        p = pk[cnt[0] & 3]; cnt[0] += 1
        A(f"v_cvt_pk_bf16_f32 v{p}, v{z}, {'-' if neg else ''}v{z+1}\nds_write_b32 v2, v{p} offset:{row*RP}")
    def direct(z, l, ra, rc):
        if l == 1: A(f"v_exp_f32 v{tmp[0]}, v{ra}\nv_rndne_f32 v{tmp[1]}, v{rc}\nv_sub_f32 v{tmp[1]}, v{rc}, v{tmp[1]}")
        else: A(f"v_mul_f32 v{tmp[0]}, {f2u(float(l))}, v{ra}\nv_mul_f32 v{tmp[2]}, {f2u(float(l))}, v{rc}\nv_exp_f32 v{tmp[0]}, v{tmp[0]}\nv_rndne_f32 v{tmp[1]}, v{tmp[2]}\nv_sub_f32 v{tmp[1]}, v{tmp[2]}, v{tmp[1]}")
        A(f"v_cos_f32 v{z}, v{tmp[1]}\nv_sin_f32 v{z+1}, v{tmp[1]}\ns_nop 0\nv_mul_f32 v{z}, v{z}, v{tmp[0]}\nv_mul_f32 v{z+1}, v{z+1}, v{tmp[0]}")
    rowof = {}
    for r in range(8): rowof[r] = r; rowof[128 + r] = 8 + r
    for r in range(4): rowof[256 + 2*r] = 16 + r; rowof[384 + 2*r] = 20 + r
    for k, l in enumerate([512, 516, 640, 644, 768, 772, 896, 900]): rowof[l] = 24 + k
    for r in range(9): rowof[1024 + 128*r] = 32 + r
    reg = {}
    nxt = [70]
    def R(l):
        if l not in reg: reg[l] = nxt[0]; nxt[0] += 2
        return reg[l]
    def tables(c):
        p = P + 6*c
        dt, ra, rc = 44, 45, 46
        A(f"v_mov_b32 v{dt}, s36" if c else f"v_mov_b32 v{dt}, s36")
        A(f"v_and_b32 v{dt}, 0xffff0000, v{dt}" if c else f"v_lshlrev_b32 v{dt}, 16, v{dt}")
        A(f"v_mul_f32 v{dt}, {f2u(L2E)}, v{dt}\nv_exp_f32 v{dt}, v{dt}")
        for k in range(6): A(f"v_lshlrev_b32 v{p+k}, 16, v{p+k}")
        A(f"v_cvt_pk_bf16_f32 v{dt}, v{dt}, v{dt}\nv_lshlrev_b32 v{dt}, 16, v{dt}")
        for k in range(4): A(f"v_mul_f32 v{p+k}, v{dt}, v{p+k}")
        A(f"v_mul_f32 v{ra}, {f2u(L2E)}, v{p}\nv_mul_f32 v{rc}, {f2u(1/(2*math.pi))}, v{p+1}")
        W = 68
        cmul(W, p + 4, p + 2)
        direct(R(8), 8, ra, rc); direct(R(1), 1, ra, rc); direct(R(128), 128, ra, rc)
        fine = []
        F = [W, 47 + 1] if False else [W, 56]
        put(FINE, W, True)
        steps = []
        for l in range(2, 8): steps.append((l, l - 1, 1))
        for l in range(1, 8): steps.append((128 + l, l, 128))
        for l in range(4): steps.append((256 + 2*l, 128 + l, 128 + l))
        for l in (0, 2, 4, 6): steps.append((384 + l, 256 + l, 128))
        steps += [(512, 256, 256), (516, 258, 258), (768, 384, 384), (772, 386, 386), (640, 512, 128), (644, 516, 128), (896, 768, 128), (900, 772, 128),
                  (1024, 512, 512), (1280, 640, 640), (1536, 768, 768), (1792, 896, 896), (1152, 1024, 128), (1408, 1280, 128), (1664, 1536, 128), (1920, 1792, 128), (2048, 1024, 1024)]
        put(rowof[1], R(1)); put(rowof[128], R(128))
        fi = 1
        for k, (z, x, y) in enumerate(steps):
            cmul(R(z), R(x), R(y)); put(rowof[z], R(z))
            if fi < 16 and k % 2 == 0:
                cmul(F[fi & 1], F[(fi - 1) & 1], R(8)); put(FINE + fi, F[fi & 1], True); fi += 1
        assert fi == 16
    def kgen(c):
        A(f"s_waitcnt lgkmcnt(0)\ns_barrier\ns_cmp_ge_u32 s24, 3\ns_cbranch_scc1 S_kg_skip{c}")
        L = Lds(A)
        FRG = 160
        def rd(ks):
            s_ = FRG + 8 * (ks % 8)
            L.issue(f"ds_read_b128 {v(s_,4)}, v26 offset:{ks*64}", ('a', ks)); L.issue(f"ds_read_b128 {v(s_+4,4)}, v27 offset:{ks*64}", ('b', ks))
        for ks in range(7): rd(ks)
        for ks in range(16):
            L.need(('b', ks))
            s_ = FRG + 8 * (ks % 8)
            A(f"v_mfma_f32_16x16x32_bf16 v[224:227], {v(s_,4)}, {v(s_+4,4)}, {'0' if ks == 0 else 'v[224:227]'}")
            if ks + 7 < 16: rd(ks + 7)
        A(f"""
        s_nop 7
        v_cvt_pk_bf16_f32 v224, v224, v225
        v_cvt_pk_bf16_f32 v226, v226, v227
        s_cmp_eq_u32 s24, 2
        s_cbranch_scc0 S_kg_all{c}
        s_mov_b32 exec_hi, 1
        ds_write_b16 v28, v224 offset:{c*CMPSZ}
        s_mov_b32 exec_hi, 0
        s_branch S_kg_rest{c}
S_kg_all{c}:
        ds_write_b16 v28, v224 offset:{c*CMPSZ}
S_kg_rest{c}:
        ds_write_b16_d16_hi v29, v224 offset:{c*CMPSZ}
        ds_write_b16 v30, v226 offset:{c*CMPSZ}
        ds_write_b16_d16_hi v31, v226 offset:{c*CMPSZ}
        s_mov_b64 exec, -1
S_kg_skip{c}:
        s_waitcnt lgkmcnt(0)
        s_barrier
        """)
    A(f"s_waitcnt vmcnt({2 if wait_u is None else 0}) lgkmcnt(0)")
    ST.mark(A)
    tables(0); kgen(0); tables(1); kgen(1)
    ST.mark(A)
    if wait_u is not None:
        wait_u(A); u_dma()
    E = [64, 80]
    for c in range(2):
        for e in range(9):
            A(f"ds_read_u16 v{100 + 10*c + e}, v{GA+e} offset:{c*CMPSZ}")
    A(f"v_lshlrev_b32 v6, 4, v0\nv_add_u32 v7, {2*CP - 4}, v6\nv_add_u32 v8, {3*CP - 4}, v6\nv_add_u32 v9, {CH + 2*CP - 4}, v6\nv_add_u32 v10, {CH + 3*CP - 4}, v6")
    def copies(c, e, o):
        A(f"""ds_write_b128 v6, {v(e,4)} offset:{c*CH}
        ds_write_b128 v6, {v(o,4)} offset:{c*CH + CP}
        ds_write2_b32 v{7+2*c}, v{e}, v{e+1} offset0:0 offset1:1
        ds_write2_b32 v{7+2*c}, v{e+2}, v{e+3} offset0:2 offset1:3
        ds_write2_b32 v{8+2*c}, v{o}, v{o+1} offset0:0 offset1:1
        ds_write2_b32 v{8+2*c}, v{o+2}, v{o+3} offset0:2 offset1:3""")
    for c in range(2):
        A(f"s_waitcnt lgkmcnt({9 if c == 0 else 6})")
        for j in range(4): A(f"v_lshl_or_b32 v{E[c]+j}, v{100+10*c+2*j+1}, 16, v{100+10*c+2*j}\nv_lshl_or_b32 v{E[c]+8+j}, v{100+10*c+2*j+2}, 16, v{100+10*c+2*j+1}")
        copies(c, E[c], E[c] + 8)
    A(f"s_cmp_lg_u32 s24, 0\ns_cbranch_scc1 S_nozero\ns_mov_b64 exec, 3")
    for k in range(4): A(f"v_mov_b32 v{96+k}, 0")
    for k in range(6, 11): A(f"v_add_u32 v{k}, 4096, v{k}")
    for c in range(2): copies(c, 96, 96)
    A("s_mov_b64 exec, -1\nS_nozero:")
    A(f"""
    v_and_b32 v0, 63, v0
    v_and_b32 v6, 15, v0                  ; rho / n
    v_lshrrev_b32 v7, 4, v0               ; kg
    s_lshr_b32 s32, s24, 1                ; ch
    s_and_b32 s27, s24, 1                 ; par
    v_not_b32 v8, v6
    v_and_b32 v8, 3, v8
    v_mul_u32_u24 v8, {CP}, v8
    v_and_b32 v9, 12, v6
    v_lshlrev_b32 v9, 1, v9
    v_sub_u32 v8, v8, v9
    v_lshl_add_u32 v8, v7, 4, v8
    s_mul_i32 s38, s32, {CH}
    s_lshl_b32 s39, s27, 6
    s_sub_u32 s38, s38, s39
    s_add_u32 s38, s38, {2*2044 - 32*127 + 64}
    v_add_u32 v1, s38, v8                 ; vA
    v_lshlrev_b32 v8, 5, v6
    v_lshl_add_u32 v9, v7, 4, v8
    s_mul_i32 s38, s32, {UB[1]-UB[0]}
    s_add_u32 s38, s38, {UB[0] + 512}
    s_sub_u32 s39, s38, s39
    s_sub_u32 s39, s39, {32*13}
    v_add_u32 v2, s39, v9                 ; vB
    v_lshl_add_u32 v3, v7, 3, v8
    v_add_u32 v4, s38, v3
    v_lshlrev_b32 v5, 4, v0
    s_lshl_b32 s38, s24, 12
    s_add_u32 s38, s38, {RED}
    v_add_u32 v10, s38, v5
    s_xor_b32 s38, s24, 1
    s_lshl_b32 s38, s38, 12
    s_add_u32 s38, s38, {RED}
    v_add_u32 v11, s38, v5
    s_lshl_b32 s35, s37, 16
    s_and_b32 s38, s37, 0xffff0000
    s_cmp_eq_u32 s32, 1
    s_cselect_b32 s35, s38, s35           ; Dskip (f32)
    s_lshl_b32 s33, s25, 1
    s_add_u32 s33, s33, s32
    s_lshl_b32 s33, s33, 12               ; d*4096
    s_waitcnt vmcnt(0) lgkmcnt(0)
    s_barrier
    """)
    ST.mark(A)
    ACC, BR, AR = 16, [64, 96], 48
    L = Lds(A)
    def rdB(e, j): L.issue(f"ds_read_b128 {v(BR[e&1] + 4*j, 4)}, v2 offset:{512*j + 32*(13 - (1 + 4*e))}", ('B', e, j))
    def rdA(n):
        e, q = divmod(n, 8)
        o = 32 * (127 - 16*q - (1 + 4*e)) - 64; r = AR + 4 * (n % 4)
        L.issue(f"ds_read_b64 {v(r,2)}, v1 offset:{o}", ('A0', n)); L.issue(f"ds_read_b64 {v(r+2,2)}, v1 offset:{o+8}", ('A', n))
    rdA(0)
    for j in range(8): rdB(0, j)
    rdA(1); rdA(2)
    for n in range(32):
        e, q = divmod(n, 8)
        for j in range(q, 8):
            L.need(('A', n), ('B', e, j - q))
            first = (e == 0 and q == 0)
            A(f"v_mfma_f32_16x16x32_bf16 {v(ACC+4*j,4)}, {v(AR+4*(n%4),4)}, {v(BR[e&1]+4*(j-q),4)}, {'0' if first else v(ACC+4*j,4)}")
            if j == q:
                if n + 3 < 32: rdA(n + 3)
                if e < 3 and q < 4: rdB(e + 1, 2*q); rdB(e + 1, 2*q + 1)
    ST.mark(A)
    A("s_nop 7\ns_cmp_eq_u32 s27, 1\ns_cbranch_scc1 S_epi1")
    for par in range(2):
        if par: A("S_epi1:")
        keep = [j for j in range(8) if (j & 1) == par]; send = [j for j in range(8) if (j & 1) != par]
        for k, j in enumerate(send): A(f"ds_write_b128 v10, {v(ACC+4*j,4)} offset:{k*1024}")
        for k, j in enumerate(keep): A(f"ds_read_b64 {v(64+2*k,2)}, v4 offset:{512*j}")
        A("s_waitcnt lgkmcnt(0)\ns_barrier")
        for k, j in enumerate(keep): A(f"ds_read_b128 {v(80+4*k,4)}, v11 offset:{k*1024}")
        for k, j in enumerate(keep):
            for r in range(4):
                src = 64 + 2*k + r // 2
                A(f"v_and_b32 v{96+4*k+r}, 0xffff0000, v{src}" if r & 1 else f"v_lshlrev_b32 v{96+4*k+r}, 16, v{src}")
            for r in range(4): A(f"v_fma_f32 v{ACC+4*j+r}, s35, v{96+4*k+r}, v{ACC+4*j+r}")
        for k, j in enumerate(keep):
            A(f"s_waitcnt lgkmcnt({3-k})")
            for r in range(4): A(f"v_add_f32 v{ACC+4*j+r}, v{ACC+4*j+r}, v{80+4*k+r}")
            A(f"v_cvt_pk_bf16_f32 v{112+2*k}, v{ACC+4*j}, v{ACC+4*j+1}\nv_cvt_pk_bf16_f32 v{113+2*k}, v{ACC+4*j+2}, v{ACC+4*j+3}")
            A(f"buffer_store_dwordx2 {v(112+2*k,2)}, v3, s[16:19], s33 offen offset:{512*j} {sc}")
        if par == 0: A("s_branch S_done")
    A("S_done:")
    ST.finish(A, tsbase)
    A("s_endpgm")
    return nxt[0]
```

```python
from common import *
import math
def role_t(A, ST, sc='', signal=None, tsbase=0):
    A(f"""
    s_load_dwordx2 s[4:5], s[0:1], {KA['u']}
    s_load_dwordx2 s[28:29], s[0:1], {KA['gw']}
    s_load_dwordx2 s[6:7], s[0:1], {KA['ws']}
    v_lshrrev_b32 v13, 6, v0
    v_and_b32 v1, 63, v0
    v_readfirstlane_b32 s24, v13
    v_lshrrev_b32 v14, 3, v1              ; lane>>3
    v_bfe_u32 v15, v1, 4, 1
    s_and_b32 s27, s24, 1
    s_lshl_b32 s33, s27, 1
    v_or_b32 v15, s33, v15                ; s
    v_lshlrev_b32 v15, 1, v15
    v_and_b32 v16, 7, v1
    v_xor_b32 v16, v16, v15
    v_lshlrev_b32 v16, 4, v16
    v_mov_b32 v17, 896
    v_mad_u32_u24 v2, v14, v17, v16
    s_waitcnt lgkmcnt(0)
    """)
    srd(A, 8, 4, SZ_U); srd(A, 12, 28, 896); srd(A, 16, 6, WS_U2_SZ, WS_U2); srd(A, 20, 6, WS_G_SZ, WS_G)
    A(f"""
    s_lshl_b32 s34, s25, 3
    s_add_u32 s34, s34, s24
    s_mul_i32 s34, s34, {8*896}
    s_lshl_b32 s36, s24, 10
    """)
    for kb in range(7):
        for i in range(2):
            A(f"s_add_u32 m0, s36, {kb*8192 + i*4096}\ns_add_u32 s38, s34, {i*32*896 + kb*128}\nbuffer_load_dwordx4 v2, s[8:11], s38 offen lds")
    A("v_and_b32 v3, 3, v1\nv_lshlrev_b32 v4, 5, v3")
    GW = 32
    for kb in range(7):
        for h in range(2):
            A(f"buffer_load_dwordx4 {v(GW + 8*kb + 4*h, 4)}, v4, s[12:15], 0 offen offset:{kb*128 + h*16}")
    A(f"""
    v_lshrrev_b32 v5, 4, v1               ; g
    v_bfe_u32 v6, v1, 2, 2                ; r
    v_lshl_add_u32 v7, v5, 3, v6          ; 8g + r
    v_lshlrev_b32 v7, 7, v7
    s_lshl_b32 s33, s27, 12               ; th*32*128
    v_add_u32 v7, s33, v7
    v_lshl_add_u32 v7, v3, 3, v7          ; + c*8
    v_lshrrev_b32 v8, 1, v6               ; r>>1
    v_and_b32 v9, 1, v5
    v_lshl_or_b32 v8, v9, 1, v8           ; s
    """)
    for uu in range(4):
        A(f"v_xor_b32 v9, {uu}, v8\nv_lshl_add_u32 v{10+uu}, v9, 5, v7")
    A(f"""
    v_lshlrev_b32 v14, 14, v6
    v_lshl_add_u32 v14, v5, 6, v14
    v_lshl_add_u32 v14, v3, 4, v14
    s_lshr_b32 s32, s24, 1
    s_mul_i32 s35, s32, {14*65536}
    s_lshl_b32 s33, s25, 9
    s_add_u32 s35, s35, s33
    s_lshl_b32 s33, s27, 8
    s_add_u32 s35, s35, s33
    s_mul_i32 s37, s32, {3*8192}
    """)
    A("s_waitcnt vmcnt(14)\ns_barrier\ns_cmp_eq_u32 s32, 1\ns_cbranch_scc1 T_half1")
    def half(hf):
        for jj in range(14):
            dg = 14*hf + jj
            for p in range(2):
                A(f"ds_read_b64_tr_b16 {v(96 + 4*jj + 2*p, 2)}, v{10 + (dg & 3)} offset:{(dg >> 2)*8192 + p*512}")
        for jj in range(14):
            A(f"s_waitcnt lgkmcnt({min(15, 2*(13-jj))})\ns_add_u32 s38, s35, {jj*65536}\nbuffer_store_dwordx4 {v(96+4*jj,4)}, v14, s[16:19], s38 offen {sc}")
    half(0); A("s_branch T_join\nT_half1:"); half(1); A("T_join:")
    if signal: signal(A)
    A(f"""
    v_lshrrev_b32 v5, 2, v0               ; row 0..63
    v_bfe_u32 v6, v5, 1, 1
    v_bfe_u32 v7, v5, 3, 1
    v_lshl_or_b32 v6, v7, 1, v6           ; s(row)
    v_xor_b32 v6, v6, v3
    v_lshlrev_b32 v6, 5, v6
    v_lshl_add_u32 v6, v5, 7, v6
    """)
    XR = 160
    for kb in range(7):
        for h in range(2):
            A(f"ds_read_b128 {v(XR + 8*kb + 4*h, 4)}, v6 offset:{kb*8192 + h*16}")
    A("v_mov_b32 v8, 0\nv_mov_b32 v9, 0\ns_waitcnt vmcnt(0) lgkmcnt(0)")
    for i in range(56):
        A(f"v_dot2_f32_bf16 v{8 + (i & 1)}, v{XR+i}, v{GW+i}, v{8 + (i & 1)}")
    A(f"""
    s_nop 2
    v_add_f32 v8, v8, v9
    s_nop 1
    v_add_f32_dpp v8, v8, v8 quad_perm:[1,0,3,2] row_mask:0xf bank_mask:0xf
    s_nop 1
    v_add_f32_dpp v8, v8, v8 quad_perm:[2,3,0,1] row_mask:0xf bank_mask:0xf
    v_cvt_pk_bf16_f32 v8, v8, v8
    v_lshlrev_b32 v8, 16, v8
    v_mul_f32 v8, {f2u(-math.log2(math.e))}, v8
    v_exp_f32 v8, v8
    s_nop 0
    v_add_f32 v8, 1.0, v8
    v_rcp_f32 v8, v8
    s_nop 0
    v_cvt_pk_bf16_f32 v8, v8, v8
    v_lshlrev_b32 v8, 16, v8
    v_lshlrev_b32 v5, 2, v5
    s_lshl_b32 s33, s25, 8
    v_cmp_eq_u32 vcc, 0, v3
    s_and_saveexec_b64 s[40:41], vcc
    buffer_store_dword v8, v5, s[20:23], s33 offen {sc}
    s_mov_b64 exec, s[40:41]
    """)
    ST.finish(A, tsbase)
    A("s_endpgm")
```

```python
import sys
from common import *
from role_f import role_f
from role_t import role_t
from role_s import role_s
from role_g import role_g
diag = len(sys.argv) > 2 and sys.argv[2] == 'diag'
out = sys.argv[1]
hdr = open('cdna_kernels/' + NAME + '.s.ref').read().split('; Override launch')[0]
src = hdr + """; @launch kernel=t_kernel grid=(32,1,1) block=(256,1,1) lds=57344
; @launch kernel=f_kernel grid=(224,1,1) block=(256,1,1) lds=81920
; @launch kernel=s_kernel grid=(224,1,1) block=(256,1,1) lds=81920
; @launch kernel=g_kernel grid=(256,1,1) block=(256,1,1) lds=81920
.amdgcn_target "amdgcn-amd-amdhsa--gfx950"
.text
"""
A = Asm(); ST = Stamps(diag)
A("s_cmp_ge_u32 s2, 32\ns_cbranch_scc1 T_exit\ns_mov_b32 s25, s2"); ST.start(A); role_t(A, ST, tsbase=0); A("T_exit:\ns_endpgm")
src += kernel_head('t_kernel') + A.text()
A = Asm(); ST = Stamps(diag)
A("""
    s_cmp_ge_u32 s2, 224
    s_cbranch_scc1 F_exit
    s_and_b32 s26, s2, 7
    s_lshr_b32 s27, s2, 3
    s_lshr_b32 s25, s26, 1
    s_lshl_b32 s25, s25, 2
    s_and_b32 s3, s27, 3
    s_add_u32 s25, s25, s3
    s_and_b32 s26, s26, 1
    s_mul_i32 s26, s26, 7
    s_lshr_b32 s3, s27, 2
    s_add_u32 s26, s26, s3
"""); ST.start(A); role_f(A, ST, tsbase=256); A("F_exit:\ns_endpgm")
src += kernel_head('f_kernel') + A.text()
A = Asm(); ST = Stamps(diag)
A("s_cmp_ge_u32 s2, 224\ns_cbranch_scc1 S_exit\ns_and_b32 s3, s2, 7\ns_mul_i32 s3, s3, 28\ns_lshr_b32 s25, s2, 3\ns_add_u32 s25, s25, s3"); ST.start(A); nv = role_s(A, ST, tsbase=512); A("S_exit:\ns_endpgm")
print('S table regs up to', nv)
src += kernel_head('s_kernel') + A.text()
A = Asm(); ST = Stamps(diag)
A("""
    s_cmp_ge_u32 s2, 256
    s_cbranch_scc1 G_exit
    s_and_b32 s3, s2, 7
    s_lshr_b32 s27, s2, 3
    s_lshr_b32 s25, s3, 1
    s_lshl_b32 s25, s25, 3
    s_and_b32 s26, s27, 7
    s_add_u32 s25, s25, s26
    s_and_b32 s26, s3, 1
    s_lshl_b32 s26, s26, 2
    s_lshr_b32 s27, s27, 3
    s_add_u32 s26, s26, s27
    s_cmp_ge_u32 s26, 7
    s_cbranch_scc1 G_exit
"""); ST.start(A); role_g(A, ST, tsbase=768); A("G_exit:\ns_endpgm")
src += kernel_head('g_kernel') + A.text()
src += '.section .rodata,"a"\n' + kernel_desc('t_kernel', 216) + kernel_desc('f_kernel', 192) + kernel_desc('s_kernel', 228) + kernel_desc('g_kernel', 192)
open(out, 'w').write(src)
```

```python
from common import *
WS_GP, WS_GP_SZ = 0xC00000, 2048 * 32
WS_FL, WS_FL_SZ = 0xC80000, 0x7800
FL_H, FL_U, FL_A = 0, 0x4000, 0x5c00
SPIN_MAX = 1 << 16

class Vm:
    def __init__(self, A): self.A = A; self.q = []
    def issue(self, ins, tag): self.A(ins); self.q.append(tag)
    def count(self, *tags):
        idx = max((i for i, t in enumerate(self.q) if t in tags), default=-1)
        if idx < 0: return None
        n = len(self.q) - 1 - idx
        self.q = self.q[idx + 1:]
        assert n <= 63
        return n
    def drain(self): self.q = []

def get_nonce(A, lab, vtmp, srd_dbg, sn):
    A(f"""
    s_mov_b32 s{sn+2}, {SPIN_MAX}
    v_mov_b32 v{vtmp+2}, 0
{lab}_nl:
    buffer_load_dwordx2 {v(vtmp,2)}, v{vtmp+2}, s[{srd_dbg}:{srd_dbg+3}], 0 offen sc1
    s_waitcnt vmcnt(0)
    v_readfirstlane_b32 s{sn}, v{vtmp}
    v_readfirstlane_b32 s{sn+1}, v{vtmp+1}
    s_sub_u32 s{sn+2}, s{sn+2}, 1
    s_cbranch_scc1 {lab}_nd
    s_cmp_eq_u32 s{sn}, 0
    s_cbranch_scc0 {lab}_nd
    s_sleep 2
    s_branch {lab}_nl
{lab}_nd:
    """)

def poll_flags(A, lab, vaddr, vtmp, srd_fl, sn, stmp, first_issued=False, sleep=1):
    A(f"s_mov_b32 s{stmp}, {SPIN_MAX}")
    if first_issued: A(f"s_branch {lab}_pc")
    A(f"""
{lab}_pl:
    buffer_load_dwordx2 {v(vtmp,2)}, v{vaddr}, s[{srd_fl}:{srd_fl+3}], 0 offen sc1
    s_waitcnt vmcnt(0)
{lab}_pc:
    v_cmp_ne_u64 vcc, s[{sn}:{sn+1}], {v(vtmp,2)}
    s_sub_u32 s{stmp}, s{stmp}, 1
    s_cbranch_scc1 {lab}_pd
    s_cmp_eq_u64 vcc, 0
    s_cbranch_scc1 {lab}_pd
    s_sleep {sleep}
    s_branch {lab}_pl
{lab}_pd:
    """)

def poll_flags4(A, lab, vaddr, vtmp, srd_fl, sn, stmp, first_issued=False, sleep=1):
    A(f"s_mov_b32 s{stmp}, {SPIN_MAX}")
    if first_issued: A(f"s_branch {lab}_pc")
    A(f"""
{lab}_pl:
    buffer_load_dwordx4 {v(vtmp,4)}, v{vaddr}, s[{srd_fl}:{srd_fl+3}], 0 offen sc1
    s_waitcnt vmcnt(0)
{lab}_pc:
    v_cmp_ne_u64 vcc, s[{sn}:{sn+1}], {v(vtmp,2)}
    v_cmp_ne_u64 s[100:101], s[{sn}:{sn+1}], {v(vtmp+2,2)}
    s_sub_u32 s{stmp}, s{stmp}, 1
    s_cbranch_scc1 {lab}_pd
    s_or_b64 vcc, vcc, s[100:101]
    s_cbranch_scc0 {lab}_pd
    s_sleep {sleep}
    s_branch {lab}_pl
{lab}_pd:
    """)
```

```python
from common2 import *
import math
XBUF = [49152, 65536]; WBUF = [0, 16384, 32768]
ACC = 64
FR = [16, 40]
V_XD, V_WGD, V_WUD = 1, 2, 3
V_XR = 4; V_WR = 8; V_ST = 12
D = 7
GACC = 128; HR = 64; WF = [16, 24]; ATILE = 65536
def role_fg(A, ST, opt, tsbase=0):
    usepk = opt.get('usepk', True)
    A(f"""
    s_load_dwordx2 s[4:5], s[0:1], {KA['u']}
    s_load_dwordx4 s[28:31], s[0:1], {KA['Wg']}
    s_load_dwordx2 s[6:7], s[0:1], {KA['ws']}
    s_load_dwordx2 s[48:49], s[0:1], {KA['Wd']}
    s_load_dwordx4 s[52:55], s[0:1], {KA['out']}
    s_setprio {opt.get('prio_fg', 2)}
    v_lshrrev_b32 v13, 6, v0
    v_and_b32 v0, 63, v0
    v_readfirstlane_b32 s24, v13
    v_lshrrev_b32 v14, 3, v0              ; lane>>3
    v_lshrrev_b32 v15, 4, v0              ; lane>>4
    s_and_b32 s27, s24, 1                 ; wr
    s_lshr_b32 s32, s24, 1                ; wc
    s_lshl_b32 s33, s27, 2
    v_add_u32 v16, s33, v15
    v_and_b32 v17, 7, v0
    v_xor_b32 v17, v17, v16
    v_lshlrev_b32 v17, 4, v17
    v_mov_b32 v18, 896
    v_mad_u32_u24 v{V_XD}, v14, v18, v17
    v_lshlrev_b32 v16, 1, v15
    v_and_b32 v17, 15, v0
    v_xor_b32 v17, v17, v16
    v_lshlrev_b32 v17, 4, v17
    v_mov_b32 v18, 3584
    v_mad_u32_u24 v{V_WGD}, v15, v18, v17
    v_xor_b32 v{V_WUD}, 128, v{V_WGD}
    s_lshl_b32 s34, s25, 4
    s_add_u32 s34, s34, s24
    s_mul_i32 s34, s34, {8*896}
    s_mul_i32 s35, s24, {4*3584}
    s_lshl_b32 s37, s26, 8
    s_add_u32 s35, s35, s37
    s_lshl_b32 s36, s24, 10
    s_and_b32 s85, s25, 3                 ; rbl
    v_bfe_u32 v19, v0, 1, 3
    v_lshl_add_u32 v19, v15, 5, v19
    s_lshl_b32 s38, s85, 3
    v_add_u32 v19, s38, v19
    v_mul_u32_u24 v19, 3584, v19
    v_and_b32 v20, 1, v0
    v_lshl_add_u32 v19, v20, 7, v19
    v_add_u32 v22, s37, v19
    v_and_b32 v19, 31, v0
    v_min_u32 v19, 18, v19
    s_cmp_ge_u32 s26, 7
    s_cselect_b32 s38, 7, 0
    s_sub_u32 s38, s26, s38
    s_lshl_b32 s85, s85, 1
    s_add_u32 s85, s85, s38
    s_cmp_ge_u32 s85, 7
    s_cselect_b32 s86, 7, 0
    s_sub_u32 s85, s85, s86
    s_mov_b32 s60, {'s85' if opt.get('rot', 1) else 0}
    s_mov_b32 s62, s60
    s_mul_i32 s38, s38, 19
    v_add_u32 v19, s38, v19
    v_min_u32 v19, 127, v19
    s_lshl_b32 s38, s25, 7
    v_add_u32 v19, s38, v19
    v_mul_u32_u24 v19, 896, v19
    v_lshrrev_b32 v20, 5, v0
    v_lshl_add_u32 v23, v20, 7, v19
    s_waitcnt lgkmcnt(0)
    """)
    ST.mark(A)
    srd(A, 8, 4, SZ_U); srd(A, 12, 28, SZ_W); srd(A, 16, 30, SZ_W)
    def dmaX(b, i):
        pre = "s_lshl_b32 s61, s60, 7\ns_add_u32 s61, s61, s34\ns_add_u32 s60, s60, 1\ns_cmp_eq_u32 s60, 7\ns_cselect_b32 s60, 0, s60\n" if i == 0 else ''
        return (pre + f"s_add_u32 m0, s36, {XBUF[b & 1] + i * 4096}\n"
                f"s_add_u32 s38, s61, {i * 32 * 896}\n"
                f"buffer_load_dwordx4 v{V_XD}, s[8:11], s38 offen lds")
    def dmaW(st, m, i):
        pre = f"s_mul_i32 s63, s62, {64*3584}\ns_add_u32 s63, s63, s35\ns_add_u32 s62, s62, 1\ns_cmp_eq_u32 s62, 7\ns_cselect_b32 s62, 0, s62\n" if (st & 1) == 0 and m == 0 and i == 0 else ''
        return (pre + f"s_add_u32 m0, s36, {WBUF[st % 3] + m * 8192 + i * 4096}\n"
                f"s_add_u32 s38, s63, {(32 * (st & 1) + 16 * i) * 3584}\n"
                f"buffer_load_dwordx4 v{V_WUD if m else V_WGD}, s[{16 if m else 12}:{19 if m else 15}], s38 offen lds")
    def stW(st): return [dmaW(st, m, i) for i in range(2) for m in range(2)]
    def stX(b): return [dmaX(b, i) for i in range(4)]
    srd(A, 44, 54, 256)
    A(f"""
    s_xor_b32 s33, s24, 3
    s_or_b32 s33, s2, s33
    s_cmp_lg_u32 s33, 0
    s_cbranch_scc1 FG_notag
    s_memrealtime s[40:41]
    v_mov_b32 v28, 0
    s_waitcnt lgkmcnt(0)
    s_or_b32 s40, s40, 1
    v_mov_b32 v26, s40
    v_mov_b32 v27, s41
    s_mov_b64 exec, 1
    buffer_store_dwordx2 v[26:27], v28, s[44:47], 0 offen sc1
    s_mov_b64 exec, -1
FG_notag:
    """)
    if opt.get('pf', 0):
        A(f"""
        s_cmp_eq_u32 s24, 3
        s_cbranch_scc1 FG_pf3
        s_cmp_eq_u32 s24, 2
        s_cbranch_scc1 FG_pf2
        s_cmp_eq_u32 s24, 1
        s_cbranch_scc1 FG_pf1
        buffer_load_dword v24, v22, s[12:15], 0 offen
        s_branch FG_pf3
FG_pf1:
        buffer_load_dword v24, v22, s[16:19], 0 offen
        s_branch FG_pf3
FG_pf2:
        buffer_load_dword v24, v23, s[8:11], 0 offen
FG_pf3:
        """)
    burst12 = opt.get('burst', 20) == 12
    for x in stX(0) + stW(0) + stW(1) + ([] if burst12 else stX(1) + stW(2)): A(x)
    srd(A, 20, 6, WS_H_SZ, WS_H); srd(A, 56, 6, WS_FL_SZ, WS_FL)
    A(f"""
    {'s_waitcnt vmcnt(0)' + chr(10) + 's_endpgm' if opt.get('skip_fg') else ''}
    v_and_b32 v16, 31, v0                 ; t
    v_lshrrev_b32 v17, 5, v0              ; h
    v_bfe_u32 v18, v0, 1, 3               ; (t>>1)&7
    s_lshl_b32 s33, s27, 13
    s_add_u32 s33, s33, {XBUF[0]}
    v_lshlrev_b32 v16, 7, v16
    v_add_u32 v16, s33, v16
    """)
    for k in range(4):
        A(f"v_or_b32 v19, {2*k}, v17\nv_xor_b32 v19, v19, v18\nv_lshl_add_u32 v{V_XR+k}, v19, 4, v16")
    A(f"""
    v_bfe_u32 v16, v0, 4, 1               ; m
    v_bfe_u32 v18, v0, 2, 2               ; r
    v_and_b32 v19, 3, v0                  ; c
    v_lshlrev_b32 v20, 13, v16
    v_lshl_add_u32 v20, v17, 11, v20
    v_lshl_add_u32 v20, v18, 8, v20
    v_lshl_add_u32 v20, v19, 3, v20
    v_lshl_or_b32 v21, v16, 2, v18
    s_lshl_b32 s33, s32, 2
    v_xor_b32 v21, s33, v21
    """)
    for j in range(4):
        A(f"v_xor_b32 v19, {j}, v21\nv_lshl_add_u32 v{V_WR+j}, v19, 5, v20")
    A(f"""
    s_lshl_b32 s33, s25, 1
    s_add_u32 s33, s33, s27
    s_mul_i32 s33, s33, 224
    s_lshl_b32 s37, s26, 3
    s_add_u32 s33, s33, s37
    s_lshl_b32 s37, s32, 2
    s_add_u32 s33, s33, s37
    s_lshl_b32 s39, s33, 10
    v_lshlrev_b32 v{V_ST}, 4, v0
    """)
    def reads(n):
        st, ks = n >> 1, n & 1
        b, ks4 = n >> 2, n & 3
        f = FR[n & 1]
        xr = [f"ds_read_b128 {v(f + 4*tt, 4)}, v{V_XR+ks4} offset:{XBUF[b & 1] - XBUF[0] + tt * 4096}" for tt in range(2)]
        wr = [[f"ds_read_b64_tr_b16 {v(f + 8 + 4*j + 2*p, 2)}, v{V_WR+j} offset:{WBUF[st % 3] + ks * 4096 + p * 1024}" for p in range(2)] for j in range(4)]
        return [xr[0]] + wr[0] + [xr[1]] + wr[1] + wr[2] + wr[3]
    def mfmas(n):
        f = FR[n & 1]
        out = []
        for j in range(4):
            for tt in range(2):
                a = ACC + (tt * 4 + j) * 16
                out.append(f"v_mfma_f32_32x32x16_bf16 {v(a,16)}, {v(f+8+4*j,4)}, {v(f+4*tt,4)}, {'0' if n == 0 else v(a, 16)}")
        return out
    A(f"s_waitcnt vmcnt({4 if burst12 else 12})\ns_barrier")
    ST.mark(A)
    for x in reads(0): A(x)
    gsetup = f"""
    s_cmp_ge_u32 s26, 7
    s_cselect_b32 s42, 1, 0               ; half
    s_mul_i32 s43, s42, 7
    s_sub_u32 s43, s26, s43
    s_lshl_b32 s50, s25, 1
    s_add_u32 s50, s50, s42               ; rt
    s_mov_b32 s8, s48
    s_mov_b32 s9, s49
    s_mov_b32 s10, {SZ_W}
    s_lshl_b32 s36, s24, 14
    v_lshrrev_b32 v14, 3, v0
    v_bfe_u32 v15, v0, 4, 1
    v_lshlrev_b32 v15, 2, v15
    v_and_b32 v13, 7, v0
    v_xor_b32 v13, v13, v15
    v_lshlrev_b32 v13, 4, v13
    v_mov_b32 v15, 896
    v_mad_u32_u24 v1, v14, v15, v13
    v_lshl_add_u32 v2, v14, 12, v13
    s_mov_b32 s86, s85
    s_lshl_b32 s51, s43, 7
    """
    if opt.get('wdtouch', 1): gsetup += f"""
    v_mul_u32_u24 v3, 896, v0
    s_lshl_b32 s34, s85, 2
    s_add_u32 s34, s34, s24
    s_mul_i32 s34, s34, {64*896}
    s_add_u32 s34, s34, s51
    buffer_load_dword v13, v3, s[8:11], s34 offen
    """
    for n in range(28):
        dm = []
        if n & 1:
            sp = (n + 1) >> 1
            if sp <= 13:
                young = 0
                if sp == 1: young = 8
                else:
                    if sp + 1 <= 13: young += 4
                    if (sp + 1) % 2 == 0 and (sp + 1) // 2 <= 6: young += 4
                    if sp == 13 and opt.get('wdtouch', 1): young += 1
                A(f"s_waitcnt vmcnt({young}) lgkmcnt(0)\ns_barrier")
                if opt.get('stage_stamps') and sp % 2 == 0: ST.mark(A)
                if sp + 2 <= 13: dm += stW(sp + 2)
                if sp % 2 == 0 and sp // 2 + 1 <= 6: dm += stX(sp // 2 + 1)
            else:
                A("s_waitcnt lgkmcnt(0)\ns_barrier")
            pend = dm[len(dm)//2:]; dm = dm[:len(dm)//2]
        else:
            A("s_waitcnt lgkmcnt(0)")
            if n > 0: dm = pend
            elif burst12: dm = stX(1) + stW(2)
        rd = reads(n + 1) if n < 27 else []
        mm = mfmas(n)
        seq = []
        di = 0
        for i, m in enumerate(mm):
            seq.append(m)
            seq += rd[2*i:2*i+2]
            if i >= 3 and di < len(dm): seq.append(dm[di]); di += 1
        seq += dm[di:]
        if n == 23: seq = seq[:3] + [gsetup] + seq[3:]
        if n == 27:
            pass
        if n < 27:
            for x in seq: A(x)
        else:
            last = seq
    VM = Vm(A)
    def ldW(n):
        r = []
        for i in range(2):
            pre = f"s_lshl_b32 s34, s85, 2\ns_add_u32 s34, s34, s24\ns_mul_i32 s34, s34, {64*896}\ns_add_u32 s34, s34, s51\ns_add_u32 s85, s85, 1\ns_cmp_eq_u32 s85, 7\ns_cselect_b32 s85, 0, s85\n" if (n & 3) == 0 and i == 0 else ''
            r.append((pre + f"s_add_u32 m0, s36, {(n % 8) * 2048 + i * 1024}\ns_add_u32 s38, s34, {(16*(n & 3) + 8*i) * 896}\nbuffer_load_dwordx4 v1, s[8:11], s38 offen lds", ('W', n)))
        return r
    def ldH(n):
        r = []
        for bt in range(2):
            pre = f"s_lshl_b32 s33, s86, 2\ns_add_u32 s33, s33, s24\ns_lshl_b32 s33, s33, 12\ns_add_u32 s35, s33, s40\ns_add_u32 s37, s33, s41\ns_add_u32 s86, s86, 1\ns_cmp_eq_u32 s86, 7\ns_cselect_b32 s86, 0, s86\n" if (n & 3) == 0 and bt == 0 else ''
            r.append((pre + f"buffer_load_dwordx4 {v(HR + (n % 8) * 8 + 4*bt, 4)}, v{V_ST}, s[20:23], s{35 + 2*bt} offen offset:{(n & 3) * 1024}", ('H', n)))
        return r
    A(last[0])
    wpre = [x for n in range(D) for x in ldW(n)]
    k = 0
    for mi, m in enumerate(last[1:]):
        A(m)
        if mi in opt.get('wpre_last', (0, 2, 4, 6)): VM.issue(*wpre[k]); k += 1
    ST.mark(A)
    k2 = -2.0 * math.sqrt(2.0 / math.pi) * math.log2(math.e)
    C1, C2, ONE = 4, 6, 8
    A(f"""
    v_mov_b32 v{C1}, {f2u(k2)}
    v_mov_b32 v{C1+1}, {f2u(k2)}
    v_mov_b32 v{C2}, {f2u(k2*0.044715)}
    v_mov_b32 v{C2+1}, {f2u(k2*0.044715)}
    v_mov_b32 v{ONE}, 1.0
    v_mov_b32 v{ONE+1}, 1.0
    v_mov_b32 v52, 0
    buffer_load_dwordx2 v[50:51], v52, s[44:47], 0 offen sc1
    """)
    order = [(tt, j) for j in range(4) for tt in range(2)]
    for idx, (tt, j) in enumerate(order):
        a = ACC + (tt * 4 + j) * 16
        T = 16 + 16 * (idx & 1)
        O = T + 8
        for _ in range(opt.get('wpre_epi', 3)):
            if k < len(wpre): VM.issue(*wpre[k]); k += 1
        if usepk:
            for p in range(4): A(f"v_pk_mul_f32 {v(T+2*p,2)}, {v(a+2*p,2)}, {v(a+2*p,2)}")
            for p in range(4): A(f"v_pk_fma_f32 {v(T+2*p,2)}, {v(T+2*p,2)}, {v(C2,2)}, {v(C1,2)}")
            for p in range(4): A(f"v_pk_mul_f32 {v(T+2*p,2)}, {v(T+2*p,2)}, {v(a+2*p,2)}")
            for p in range(8): A(f"v_exp_f32 v{T+p}, v{T+p}")
            for p in range(4): A(f"v_pk_mul_f32 {v(a+2*p,2)}, {v(a+2*p,2)}, {v(a+8+2*p,2)}")
            for p in range(4): A(f"v_pk_add_f32 {v(T+2*p,2)}, {v(T+2*p,2)}, {v(ONE,2)}")
            for p in range(8): A(f"v_rcp_f32 v{T+p}, v{T+p}")
            A("s_nop 0")
            for p in range(4): A(f"v_pk_mul_f32 {v(a+2*p,2)}, {v(a+2*p,2)}, {v(T+2*p,2)}")
        else:
            for p in range(8): A(f"v_mul_f32 v{T+p}, v{a+p}, v{a+p}")
            for p in range(8): A(f"v_fma_f32 v{T+p}, v{T+p}, v{C2}, v{C1}")
            for p in range(8): A(f"v_mul_f32 v{T+p}, v{T+p}, v{a+p}")
            for p in range(8): A(f"v_exp_f32 v{T+p}, v{T+p}")
            for p in range(8): A(f"v_mul_f32 v{a+p}, v{a+p}, v{a+8+p}")
            for p in range(8): A(f"v_add_f32 v{T+p}, 1.0, v{T+p}")
            for p in range(8): A(f"v_rcp_f32 v{T+p}, v{T+p}")
            A("s_nop 0")
            for p in range(8): A(f"v_mul_f32 v{a+p}, v{a+p}, v{T+p}")
        for p in range(4): A(f"v_cvt_pk_bf16_f32 v{O+p}, v{a+2*p}, v{a+2*p+1}")
        A(f"s_add_u32 s38, s39, {(tt * 112 + j) * 1024}")
        A(f"buffer_store_dwordx4 {v(O,4)}, v{V_ST}, s[20:23], s38 offen sc1")
    ST.mark(A)
    if opt.get('f_only'):
        ST.finish(A, tsbase); A("s_endpgm"); return
    A(f"""
    s_lshl_b32 s40, s50, 1
    s_add_u32 s40, s40, s27
    s_xor_b32 s41, s40, 1
    s_mul_i32 s40, s40, {112*1024}
    s_mul_i32 s41, s41, {112*1024}
    v_bfe_u32 v14, v0, 4, 1               ; c16
    v_lshrrev_b32 v15, 5, v0              ; h
    v_bfe_u32 v16, v0, 2, 2               ; r
    v_and_b32 v17, 3, v0
    v_lshl_add_u32 v18, v15, 2, v16
    v_lshlrev_b32 v18, 7, v18
    v_lshl_add_u32 v18, v17, 3, v18
    v_and_b32 v19, 2, v16
    v_xor_b32 v19, v19, v14
    v_lshl_add_u32 v18, v19, 5, v18
    s_lshl_b32 s33, s32, 6
    v_xor_b32 v7, s33, v18
    v_add_u32 v7, s36, v7
    v_xor_b32 v8, 64, v7
    s_lshl_b32 s33, s27, 6
    v_xor_b32 v9, s33, v18
    s_lshl_b32 s33, s32, 12
    s_add_u32 s33, s33, {ATILE}
    v_add_u32 v9, s33, v9
    ; own flag address (v10) : FH[rb][wr][2cb+wc] ; poll address (v11): FH[rb][half][w + 4*min(lane,6)]
    s_lshl_b32 s33, s25, 1
    s_add_u32 s33, s33, s27
    s_lshl_b32 s33, s33, 5
    s_lshl_b32 s38, s26, 1
    s_add_u32 s33, s33, s38
    s_add_u32 s33, s33, s32
    s_lshl_b32 s33, s33, 3
    v_mov_b32 v10, s33
    v_min_u32 v11, 6, v0
    v_lshlrev_b32 v11, 5, v11
    s_lshl_b32 s33, s50, 5
    s_add_u32 s33, s33, s24
    s_lshl_b32 s33, s33, 3
    v_add_u32 v11, s33, v11
    ; late poll address (v3): lanes<16: FA[ct] pairs; else FU[k>>1][4rt + 2(k&1)], k = min(lane-16, 13)
    v_subrev_u32 v3, 16, v0
    v_min_u32 v3, 13, v3
    v_and_b32 v4, 1, v3
    v_lshrrev_b32 v3, 1, v3
    v_lshlrev_b32 v3, 10, v3
    v_lshl_add_u32 v3, v4, 4, v3
    s_lshl_b32 s33, s50, 5
    s_add_u32 s33, s33, {FL_U}
    v_add_u32 v3, s33, v3
    v_lshlrev_b32 v4, 4, v0
    s_lshl_b32 s33, s43, 8
    s_add_u32 s33, s33, {FL_A}
    v_add_u32 v4, s33, v4
    v_cmp_gt_u32 vcc, 16, v0
    s_setprio {opt.get('prio_g', 0)}
    s_nop 0
    v_cndmask_b32 v3, v3, v4, vcc
    s_waitcnt vmcnt(0)
    v_readfirstlane_b32 s96, v50
    v_readfirstlane_b32 s97, v51
    s_nop 3
    s_cmp_lg_u32 s96, 0
    s_cbranch_scc1 FG_havetag
    """)
    get_nonce(A, 'FG', 50, 44, 96)
    A(f"""
FG_havetag:
    v_mov_b32 v50, s96
    v_mov_b32 v51, s97
    s_mov_b64 exec, 1
    buffer_store_dwordx2 v[50:51], v10, s[56:59], 0 offen sc1
    s_mov_b64 exec, -1
    """)
    VM.drain()
    def greads(n):
        f = WF[n & 1]
        return [f"ds_read_b64_tr_b16 {v(f + 4*bd + 2*p, 2)}, v{7+bd} offset:{(n % 8) * 2048 + p * 1024}" for bd in range(2) for p in range(2)]
    for x in greads(0): A(x)
    ST.mark(A)
    poll_flags(A, 'FGH', 11, 52, 56, 96, 99)
    ST.mark(A)
    for n in range(D):
        for x in ldH(n): VM.issue(*x)
    srd(A, 12, 6, WS_AT_SZ, WS_AT); srd(A, 16, 6, WS_GP_SZ, WS_GP)
    LP, LC = opt.get('late_poll', 14), opt.get('late_check', 20)
    for n in range(28):
        c = VM.count(('H', n), ('W', n + 1))
        A(f"s_waitcnt {'vmcnt(%d) ' % c if c is not None else ''}lgkmcnt(0)")
        if n == LC:
            c = VM.count('poll')
            if c is not None: A(f"s_waitcnt vmcnt({c})")
            if not opt.get('skip_s'): poll_flags4(A, 'FGA', 3, 52, 56, 96, 99, first_issued=True)
            VM.issue(f"""s_lshl_b32 s33, s43, 3
            s_add_u32 s33, s33, s24
            s_lshl_b32 s33, s33, 15
            s_lshl_b32 s38, s50, 7
            s_add_u32 s33, s33, s38
            s_lshl_b32 s39, s24, 10
            s_add_u32 m0, s39, {ATILE}
            s_add_u32 s38, s33, {32*4096}
            buffer_load_dwordx4 v2, s[12:15], s33 offen lds""", 'at')
            VM.issue(f"s_add_u32 m0, s39, {ATILE + 4096}\nv_and_b32 v4, 31, v0\nbuffer_load_dwordx4 v2, s[12:15], s38 offen lds", 'at')
            VM.issue(f"v_lshlrev_b32 v5, 5, v4\ns_lshl_b32 s33, s50, 1\ns_add_u32 s33, s33, s27\ns_lshl_b32 s33, s33, 10\nbuffer_load_dwordx4 v[32:35], v5, s[16:19], s33 offen", 'gp')
            VM.issue(f"buffer_load_dwordx3 v[36:38], v5, s[16:19], s33 offen offset:16", 'gp')
        rd = greads(n + 1) if n < 27 else []
        ld = (ldW(n + D) + ldH(n + D)) if n + D < 28 else []
        f = WF[n & 1]
        mm = []
        for bd in range(2):
            for bt in range(2):
                a = GACC + (bd * 2 + bt) * 16
                mm.append(f"v_mfma_f32_32x32x16_bf16 {v(a,16)}, {v(f+4*bd,4)}, {v(HR+(n%8)*8+4*bt,4)}, {'0' if n == 0 else v(a,16)}")
        for i, m in enumerate(mm):
            A(m)
            if i < 2:
                for x in rd[2*i:2*i+2]: A(x)
            if ld: VM.issue(*ld[i])
        if n == LP: VM.issue(f"buffer_load_dwordx4 v[52:55], v3, s[56:59], 0 offen sc1", 'poll')
    ST.mark(A)
    A("s_waitcnt vmcnt(0)\ns_barrier")
    for b in range(1, 4):
        A(f"s_xor_b32 s33, s24, {b}\ns_mul_i32 s33, s33, {3*4096}\nv_add_u32 v{13+b}, s33, v{V_ST}")
    A(f"""
    v_add_f32 v32, v32, v33
    v_add_f32 v34, v34, v35
    v_add_f32 v36, v36, v37
    v_add_f32 v32, v32, v34
    v_add_f32 v36, v36, v38
    v_add_f32 v32, v32, v36
    v_cvt_pk_bf16_f32 v32, v32, v32
    v_lshlrev_b32 v32, 16, v32
    v_mul_f32 v32, {f2u(-math.log2(math.e))}, v32
    v_exp_f32 v6, v32
    """)
    for b in range(1, 4):
        for k in range(4):
            A(f"ds_write_b128 v{13+b}, {v(GACC + 16*b + 4*k, 4)} offset:{(b-1)*4096 + k*1024}")
    A(f"""
    v_add_f32 v6, 1.0, v6
    v_rcp_f32 v6, v6
    s_mul_i32 s33, s24, {3*4096}
    v_add_u32 v10, s33, v{V_ST}
    v_mov_b32 v11, 896
    v_lshrrev_b32 v13, 5, v0
    v_lshlrev_b32 v13, 4, v13
    v_mad_u32_u24 v11, v4, v11, v13
    s_lshl_b32 s33, s50, 1
    s_add_u32 s33, s33, s27
    s_mul_i32 s33, s33, {32*896}
    s_lshl_b32 s38, s43, 7
    s_add_u32 s33, s33, s38
    s_lshl_b32 s38, s32, 6
    s_add_u32 s33, s33, s38
    s_mov_b32 s39, 0xffff0000
    v_cvt_pk_bf16_f32 v6, v6, v6
    v_lshlrev_b32 v6, 16, v6
    """)
    srd(A, 20, 52, SZ_U)
    for j in range(4):
        A(f"ds_read_b64_tr_b16 {v(16 + 2*j, 2)}, v9 offset:{j*1024}")
    A("s_waitcnt lgkmcnt(0)\ns_barrier")
    for b in range(3):
        for k in range(4):
            A(f"ds_read_b128 {v(64 + 16*b + 4*k, 4)}, v10 offset:{b*4096 + k*1024}")
    for k in range(16):
        src = 16 + k // 2
        if k & 1: A(f"v_and_b32 v{32+k}, s39, v{src}")
        else: A(f"v_lshlrev_b32 v{32+k}, 16, v{src}")
    for b in range(3):
        A(f"s_waitcnt lgkmcnt({4*(2-b)})")
        for k in range(16): A(f"v_add_f32 v{GACC+k}, v{GACC+k}, v{64+16*b+k}")
    for k in range(16): A(f"v_sub_f32 v{32+k}, v{32+k}, v{GACC+k}")
    for k in range(16): A(f"v_fma_f32 v{32+k}, v6, v{32+k}, v{GACC+k}")
    for k in range(8): A(f"v_cvt_pk_bf16_f32 v{48+k}, v{32+2*k}, v{33+2*k}")
    A("s_nop 1")
    for jj in range(2):
        A(f"v_permlane32_swap_b32 v{48+4*jj}, v{50+4*jj}\nv_permlane32_swap_b32 v{49+4*jj}, v{51+4*jj}")
    for jj in range(2):
        A(f"buffer_store_dwordx4 {v(48+4*jj,4)}, v11, s[20:23], s33 offen offset:{32*jj}")
    ST.finish(A, tsbase)
    A("s_endpgm")
```

```python
from common2 import *
from sched import schedule
import math
WT = 49664 // 4
FINE = 32
CMP = 4 * WT; CMPSZ = 41 * 80
UB = [CMP + 4 * CMPSZ, CMP + 4 * CMPSZ + 4608]
CP = 4160; CH = 4 * CP
RED = 33280
L2E = math.log2(math.e)
assert UB[1] + 4608 <= 81920

class Lds:
    def __init__(self, A): self.A = A; self.q = []
    def issue(self, ins, tag): self.A(ins); self.q.append(tag)
    def need(self, *tags):
        idx = max((i for i, t in enumerate(self.q) if t in tags), default=-1)
        if idx < 0: return
        n = len(self.q) - 1 - idx
        self.A(f"s_waitcnt lgkmcnt({min(n, 15)})")
        self.q = self.q[idx + 1:] if n <= 15 else self.q[len(self.q) - 15:]

def role_s(A, ST, opt, tsbase=0):
    if opt.get('skip_s'): A('s_endpgm')
    P = 32
    early = opt.get('pf', 0) and opt.get('pf_early', 0)
    A(f"""
    s_load_dwordx8 s[40:47], s[0:1], {KA['Are']}
    s_load_dwordx8 s[48:55], s[0:1], {KA['Cre']}
    s_load_dwordx2 s[4:5], s[0:1], {KA['u']}
    s_load_dwordx2 s[28:29], s[0:1], {KA['gw']}
    s_load_dwordx4 s[56:59], s[0:1], {KA['dbg']}
    s_load_dwordx4 s[16:19], s[0:1], {KA['Wg']}
    s_setprio {opt.get('prio_s0', 3)}
    v_lshrrev_b32 v13, 6, v0
    v_lshlrev_b32 v1, 2, v0
    v_readfirstlane_b32 s24, v13
    s_lshl_b32 s33, s25, 10               ; d0*512
    s_lshl_b32 s34, s25, 2                ; d0*2
    v_and_b32 v12, 63, v0                 ; lane
    v_lshrrev_b32 v14, 3, v12
    v_bfe_u32 v15, v12, 4, 1
    v_lshlrev_b32 v15, 1, v15
    v_and_b32 v3, 7, v12
    v_xor_b32 v3, v3, v15
    v_lshlrev_b32 v3, 4, v3
    v_mov_b32 v15, 896
    v_mad_u32_u24 v3, v14, v15, v3
    v_xor_b32 v4, 64, v3                  ; rows 8-15
    s_lshl_b32 s38, s26, 2
    s_add_u32 s38, s38, s24
    s_mul_i32 s38, s38, {16*896}
    s_lshl_b32 s39, s27, 7
    s_add_u32 s31, s38, s39               ; X soffset
    s_lshr_b32 s35, s24, 1
    s_mul_i32 s35, s35, {UB[1]-UB[0]}
    s_and_b32 s39, s24, 1
    s_lshl_b32 s39, s39, 11
    s_add_u32 s35, s35, s39
    s_add_u32 s35, s35, {UB[0]+512}
    v_and_b32 v5, 3, v12
    v_lshlrev_b32 v6, 5, v5
    v_mov_b32 v7, 0
    """)
    if opt.get('pf', 0) or opt.get('s_pfonly'): A(f"""
    s_and_b32 s85, s87, 3                 ; rbl
    s_lshr_b32 s86, s87, 2                ; cbl
    v_lshrrev_b32 v6, 4, v12
    v_bfe_u32 v7, v12, 1, 3
    v_lshl_add_u32 v6, v6, 5, v7
    s_lshl_b32 s38, s85, 3
    v_add_u32 v6, s38, v6
    v_mul_u32_u24 v6, 3584, v6
    v_and_b32 v7, 1, v12
    v_lshl_add_u32 v6, v7, 7, v6
    s_and_b32 s38, s3, 1
    s_mul_i32 s38, s38, 7
    s_add_u32 s38, s38, s86
    s_lshl_b32 s38, s38, 8
    v_add_u32 v248, s38, v6
    v_and_b32 v6, 31, v12
    v_min_u32 v6, 18, v6
    s_mul_i32 s38, s86, 19
    v_add_u32 v6, s38, v6
    v_min_u32 v6, 127, v6
    s_lshr_b32 s38, s3, 1
    s_lshl_b32 s38, s38, 2
    s_add_u32 s38, s38, s85
    s_lshl_b32 s38, s38, 7
    v_add_u32 v6, s38, v6
    v_mul_u32_u24 v6, 896, v6
    v_lshrrev_b32 v7, 5, v12
    v_lshl_add_u32 v249, v7, 7, v6
    """)
    def touch(step):
        if not opt.get('pf', 0): return
        lab = f"S_t{step}"
        if step == 0:
            plan = [(44, 248, 4*32*3584), (48, 248, 4*32*3584), (8, 249, 256), (8, 249, 512)]
        elif step == 1:
            plan = [(44, 248, 8*32*3584), (48, 248, 8*32*3584), (8, 249, 768), (44, 248, 12*32*3584)]
        else:
            plan = [None, None, None, (48, 248, 12*32*3584)]
        for w, pl in enumerate(plan):
            if pl is None: continue
            A(f"s_cmp_lg_u32 s24, {w}\ns_cbranch_scc1 {lab}_{w}\ns_mov_b32 s38, {pl[2]}\nbuffer_load_dword v250, v{pl[1]}, s[{pl[0]}:{pl[0]+3}], s38 offen\n{lab}_{w}:")
    A(f"""
    v_and_b32 v5, 3, v12
    v_lshlrev_b32 v6, 5, v5
    v_mov_b32 v7, 0
    s_mov_b32 s10, {SZ_P}
    s_mov_b32 s11, 0x00020000
    s_waitcnt lgkmcnt(0)
    """)
    if opt.get('s_pfonly'):
        srd(A, 8, 4, SZ_U); srd(A, 44, 16, SZ_W); srd(A, 48, 18, SZ_W)
        first, gap = opt['s_pfonly']
        A("s_cmp_eq_u32 s24, 3\ns_cbranch_scc1 S_pfend\ns_mov_b32 exec_hi, 0")
        for b in range(first, 7):
            for w, (sr, vr, so) in enumerate([(44, 248, b*64*3584), (48, 248, b*64*3584), (8, 249, b*128)]):
                A(f"s_cmp_lg_u32 s24, {w}\ns_cbranch_scc1 S_pf{b}_{w}\ns_mov_b32 s38, {so}\nbuffer_load_dword v250, v{vr}, s[{sr}:{sr+3}], s38 offen\nS_pf{b}_{w}:")
            for _ in range(gap // 64 // 15): A("s_sleep 15")
            if (gap // 64) % 15: A(f"s_sleep {(gap // 64) % 15}")
        A("S_pfend:\ns_endpgm")
        return
    ST.mark(A)
    A(f"s_mov_b32 s12, s52\ns_mov_b32 s13, s53\ns_mov_b32 s14, 896\ns_mov_b32 s15, 0x00020000\nbuffer_load_dword v26, v7, s[12:15], s34 offen")
    A(f"s_mov_b32 s12, s54\ns_mov_b32 s13, s55\nbuffer_load_dword v27, v7, s[12:15], s34 offen")
    for k in range(6):
        A(f"s_mov_b32 s8, s{40+2*k}\ns_mov_b32 s9, s{41+2*k}")
        A(f"buffer_load_dword v{P+6+k}, v1, s[8:11], s33 offen")
    srd(A, 8, 4, SZ_U); srd(A, 20, 28, 896); srd(A, 60, 56, 256)
    A(f"""
    s_mov_b32 m0, s35
    s_add_u32 s39, s31, {8*896}
    buffer_load_dwordx4 v3, s[8:11], s31 offen lds
    s_add_u32 m0, s35, 1024
    s_nop 0
    buffer_load_dwordx4 v4, s[8:11], s39 offen lds
    s_lshl_b32 s39, s27, 7
    buffer_load_dwordx4 v[160:163], v6, s[20:23], s39 offen
    buffer_load_dwordx4 v[164:167], v6, s[20:23], s39 offen offset:16
    buffer_load_dwordx2 v[30:31], v7, s[60:63], 0 offen sc1
    s_mov_b32 s6, s58
    s_mov_b32 s7, s59
    """)
    srd(A, 44, 16, SZ_W); srd(A, 48, 18, SZ_W)
    srd(A, 12, 6, WS_U2_SZ, WS_U2); srd(A, 16, 6, WS_AT_SZ, WS_AT); srd(A, 20, 6, WS_GP_SZ, WS_GP); srd(A, 56, 6, WS_FL_SZ, WS_FL)
    if early: touch(0)
    ST.mark(A)
    A(f"""
    v_mov_b32 v4, 0
    v_mov_b32 v6, {CMP + 64}
    ds_write_b32 v6, v4
    ds_write_b32 v6, v4 offset:{CMPSZ}
    ds_write_b32 v6, v4 offset:{2*CMPSZ}
    ds_write_b32 v6, v4 offset:{3*CMPSZ}
    v_and_b32 v6, 127, v0
    v_lshlrev_b32 v6, 2, v6
    v_lshrrev_b32 v7, 7, v0
    v_mov_b32 v14, {UB[1]-UB[0]}
    v_mad_u32_u24 v6, v7, v14, v6
    v_add_u32 v6, {UB[0]}, v6
    ds_write_b32 v6, v4
    """)
    DA, GA = 28, 16
    A(f"""
    s_setprio {opt.get('prio_s', 1)}
    v_and_b32 v6, 15, v12
    v_lshrrev_b32 v7, 4, v12
    v_mul_u32_u24 v8, 320, v7
    v_lshl_add_u32 v8, v6, 2, v8
    s_mul_i32 s39, s24, {CMPSZ}
    s_add_u32 s39, s39, {CMP}
    v_add_u32 v{DA}, s39, v8
    """)
    A(f"v_lshlrev_b32 v6, 3, v0\nv_sub_u32 v6, 2047, v6\nv_cvt_f32_u32 v6, v6")
    T0 = 48
    for e in range(10): A(f"v_add_f32 v{T0+e}, {f2u(-1.0*e)}, v6")
    for e in range(0, 10, 2): A(f"v_cvt_pk_bf16_f32 v{T0+10+e//2}, v{T0+e}, v{T0+1+e}")
    for e in range(9):
        A(f"v_and_b32 v{T0+e}, 0xffff0000, v{T0+10+e//2}" if e & 1 else f"v_lshlrev_b32 v{T0+e}, 16, v{T0+10+e//2}")
    E_, V_ = 70, 80
    for e in range(9): A(f"v_frexp_exp_i32_f32 v{E_+e}, v{T0+e}\nv_cvt_u32_f32 v{V_+e}, v{T0+e}")
    for e in range(9): A(f"v_subrev_u32 v{E_+e}, 8, v{E_+e}\nv_lshrrev_b32 v{T0+e}, 7, v{V_+e}\nv_and_b32 v{GA+e}, 7, v{V_+e}")
    for e in range(9): A(f"v_max_i32 v{E_+e}, 0, v{E_+e}\nv_lshl_or_b32 v{T0+e}, v{T0+e}, 3, v{GA+e}\nv_bfe_u32 v{V_+e}, v{V_+e}, 3, 4")
    for e in range(9): A(f"v_lshrrev_b32 v{T0+e}, v{E_+e}, v{T0+e}\nv_lshlrev_b32 v{V_+e}, 2, v{V_+e}")
    for e in range(9): A(f"v_lshl_add_u32 v{T0+e}, v{E_+e}, 3, v{T0+e}\nv_add_u32 v{V_+e}, {CMP}, v{V_+e}")
    A("v_mov_b32 v7, 80")
    for e in range(9): A(f"v_mad_u32_u24 v{GA+e}, v{T0+e}, v7, v{V_+e}")
    A(f"v_mov_b32 v7, {CMP + 64}\nv_cmp_eq_u32 vcc, 255, v0\ns_nop 1\nv_cndmask_b32 v{GA+8}, v{GA+8}, v7, vcc")
    A(f"""
    v_lshrrev_b32 v5, 4, v12              ; g
    v_bfe_u32 v6, v12, 2, 2               ; r
    v_and_b32 v7, 3, v12                  ; c
    v_and_b32 v8, 1, v5                   ; tb
    v_lshl_add_u32 v9, v8, 3, v6
    v_lshlrev_b32 v9, 7, v9
    v_lshl_add_u32 v9, v7, 3, v9
    v_add_u32 v9, s35, v9
    v_lshrrev_b32 v10, 1, v6
    v_lshl_or_b32 v10, v8, 1, v10
    v_lshrrev_b32 v11, 1, v5
    v_xor_b32 v10, v10, v11
    v_lshl_add_u32 v13, v10, 5, v9
    v_xor_b32 v10, 2, v10
    v_lshl_add_u32 v14, v10, 5, v9
    v_lshl_add_u32 v10, v11, 2, v6
    v_lshlrev_b32 v10, 14, v10
    v_lshl_add_u32 v10, v8, 6, v10
    v_lshl_add_u32 v15, v7, 4, v10
    v_lshrrev_b32 v5, 2, v12
    v_bfe_u32 v6, v5, 1, 1
    v_bfe_u32 v8, v5, 3, 1
    v_lshl_or_b32 v6, v8, 1, v6
    v_xor_b32 v6, v6, v7
    v_lshlrev_b32 v6, 5, v6
    v_lshl_add_u32 v6, v5, 7, v6
    v_add_u32 v6, s35, v6
    v_lshlrev_b32 v5, 5, v5
    s_lshl_b32 s38, s27, 18
    s_lshl_b32 s39, s26, 2
    s_add_u32 s39, s39, s24
    s_lshl_b32 s32, s39, 7
    s_add_u32 s30, s38, s32               ; U2 soffset
    s_lshl_b32 s39, s39, 9
    s_lshl_b32 s32, s27, 2
    s_add_u32 s31, s39, s32
    s_add_u32 s32, s30, {8*16384}
    """)
    def tpart():
        A(f"""
        ds_read_b64_tr_b16 v[168:169], v13
        ds_read_b64_tr_b16 v[170:171], v13 offset:512
        ds_read_b64_tr_b16 v[172:173], v14
        ds_read_b64_tr_b16 v[174:175], v14 offset:512
        ds_read_b128 v[176:179], v6
        ds_read_b128 v[180:183], v6 offset:16
        v_mov_b32 v8, 0
        s_waitcnt lgkmcnt(2)
        {'' if opt.get('no_tstore') else 'buffer_store_dwordx4 v[168:171], v15, s[12:15], s30 offen ' + opt.get('tsc', 'sc1')}
        {'' if opt.get('no_tstore') else 'buffer_store_dwordx4 v[172:175], v15, s[12:15], s32 offen ' + opt.get('tsc', 'sc1')}
        s_waitcnt lgkmcnt(0)
        """)
        for i in range(8): A(f"v_dot2_f32_bf16 v8, v{176+i}, v{160+i}, v8")
        A(f"""
        s_nop 2
        v_add_f32_dpp v8, v8, v8 quad_perm:[1,0,3,2] row_mask:0xf bank_mask:0xf
        s_nop 1
        v_add_f32_dpp v8, v8, v8 quad_perm:[2,3,0,1] row_mask:0xf bank_mask:0xf
        s_mov_b32 exec_lo, 0x11111111
        s_mov_b32 exec_hi, 0x11111111
        {'' if opt.get('no_tstore') or opt.get('no_gp') else 'buffer_store_dword v8, v5, s[20:23], s31 offen ' + opt.get('tsc', 'sc1')}
        s_mov_b64 exec, -1
        """)
    B = Asm()
    tmp = [60, 61, 62, 63]
    pk = [64, 65, 66, 67]
    cnt = [0]
    neg = {}
    def cmul(z, x, y):
        if y in neg:
            B(f"v_mul_f32 v{z}, v{x}, v{y}\nv_mul_f32 v{z+1}, v{x}, v{y+1}\nv_fmac_f32 v{z}, v{x+1}, v{neg[y]}\nv_fmac_f32 v{z+1}, v{x+1}, v{y}")
        elif x == y:
            t = tmp[cnt[0] & 1]
            B(f"v_mul_f32 v{z}, v{x}, v{x}\nv_add_f32 v{t}, v{x}, v{x}\nv_fma_f32 v{z}, -v{x+1}, v{x+1}, v{z}\nv_mul_f32 v{z+1}, v{t}, v{x+1}")
        else:
            B(f"v_mul_f32 v{z}, v{x}, v{y}\nv_mul_f32 v{z+1}, v{x}, v{y+1}\nv_fma_f32 v{z}, -v{x+1}, v{y+1}, v{z}\nv_fmac_f32 v{z+1}, v{x+1}, v{y}")
    PBK, PB, OUT, BF, KD = [152, 168], 184, 200, 216, 232
    bank = [0]
    def put(row, z, ng=False):
        cnt[0] += 1
        B(f"v_cvt_pk_bf16_f32 v{PBK[bank[0]] + row}, v{z}, {'-' if ng else ''}v{z+1}")
    def transpose(dst, nrows=16):
        PA = PBK[bank[0]]; bank[0] ^= 1
        cur = [PA + i for i in range(16)]
        for d, mask in ((8, 0x00ff00ff), (4, 0x0f0f0f0f), (2, 0x33333333), (1, 0x55555555)):
            if d == 1: new = [dst + i for i in range(16)]
            else:
                free = [r for r in list(range(PA, PA + 16)) + list(range(PB, PB + 16)) if r not in cur]
                new = free[:16]
            cx = {8: 'row_ror:8', 4: 'row_ror:4', 2: 'quad_perm:[2,3,0,1]', 1: 'quad_perm:[1,0,3,2]'}[d]
            cy = {8: 'row_ror:8', 4: 'row_ror:12', 2: 'quad_perm:[2,3,0,1]', 1: 'quad_perm:[1,0,3,2]'}[d]
            B(f"s_mov_b32 vcc_lo, {mask:#x}\ns_mov_b32 vcc_hi, {mask:#x}")
            lo = [i for i in range(16) if not i & d]
            for i in lo:
                if d == 8 and i + 8 >= nrows: new[i] = cur[i]
                else: B(f"v_cndmask_b32_dpp v{new[i]}, v{cur[i+d]}, v{cur[i]}, vcc {cx} row_mask:0xf bank_mask:0xf")
            B("s_not_b64 vcc, vcc")
            for i in lo:
                if d == 8 and i + 8 >= nrows: B(f"v_mov_b32_dpp v{new[i+d]}, v{cur[i]} {cy} row_mask:0xf bank_mask:0xf")
                else: B(f"v_cndmask_b32_dpp v{new[i+d]}, v{cur[i]}, v{cur[i+d]}, vcc {cy} row_mask:0xf bank_mask:0xf")
            cur = new
    def kmfma(t, c):
        for ks in range(4):
            B(f"v_mfma_f32_16x16x32_bf16 {v(KD+4*t,4)}, {v(OUT+4*ks,4)}, {v(BF+4*ks,4)}, {'0' if ks == 0 and c == 0 else v(KD+4*t,4)}")
    def direct(z, l, ra, rc):
        if l == 1: B(f"v_exp_f32 v{tmp[0]}, v{ra}\nv_rndne_f32 v{tmp[1]}, v{rc}\nv_sub_f32 v{tmp[1]}, v{rc}, v{tmp[1]}")
        else: B(f"v_mul_f32 v{tmp[0]}, {f2u(float(l))}, v{ra}\nv_mul_f32 v{tmp[2]}, {f2u(float(l))}, v{rc}\nv_exp_f32 v{tmp[0]}, v{tmp[0]}\nv_rndne_f32 v{tmp[1]}, v{tmp[2]}\nv_sub_f32 v{tmp[1]}, v{tmp[2]}, v{tmp[1]}")
        B(f"v_cos_f32 v{z}, v{tmp[1]}\nv_sin_f32 v{z+1}, v{tmp[1]}\nv_mul_f32 v{z}, v{z}, v{tmp[0]}\nv_mul_f32 v{z+1}, v{z+1}, v{tmp[0]}\nv_sub_f32 v{neg[z]}, 0, v{z+1}")
    rowof = {}
    for r in range(8): rowof[r] = r; rowof[128 + r] = 8 + r
    for r in range(4): rowof[256 + 2*r] = r; rowof[384 + 2*r] = 4 + r
    for k, l in enumerate([512, 516, 640, 644, 768, 772, 896, 900]): rowof[l] = 8 + k
    for r in range(9): rowof[1024 + 128*r] = r
    reg = {}
    nxt = [70]
    def R(l):
        if l not in reg: reg[l] = nxt[0]; nxt[0] += 2
        return reg[l]
    for l, n in ((8, 47), (1, 58), (128, 59)): neg[R(l)] = n
    def tables(c):
        p = P
        dt, ra, rc = 44, 45, 46
        if c == 0:
            B(f"s_lshl_b32 s38, s36, 16\ns_and_b32 s39, s36, 0xffff0000\ns_cmp_ge_u32 s24, 2\ns_cselect_b32 s38, s39, s38")
            B(f"v_mov_b32 v{dt}, {f2u(L2E)}\nv_mul_f32 v{dt}, s38, v{dt}\nv_exp_f32 v{dt}, v{dt}")
        for k in range(6): B(f"v_and_b32 v{p+k}, 0xffff0000, v{p+6+k}" if c else f"v_lshlrev_b32 v{p+k}, 16, v{p+6+k}")
        if c == 0: B(f"v_cvt_pk_bf16_f32 v{dt}, v{dt}, v{dt}\nv_lshlrev_b32 v{dt}, 16, v{dt}")
        for k in range(4): B(f"v_mul_f32 v{p+k}, v{dt}, v{p+k}")
        B(f"v_mul_f32 v{ra}, {f2u(L2E)}, v{p}\nv_mul_f32 v{rc}, {f2u(1/(2*math.pi))}, v{p+1}")
        W = 68
        cmul(W, p + 4, p + 2)
        direct(R(8), 8, ra, rc); direct(R(1), 1, ra, rc); direct(R(128), 128, ra, rc)
        F = [W, 56]
        put(0, W, True)
        early_steps = [(l, l - 1, 1) for l in range(2, 8)] + [(128 + l, l, 128) for l in range(1, 8)]
        for fi in range(1, 16):
            cmul(F[fi & 1], F[(fi - 1) & 1], R(8)); put(fi, F[fi & 1], True)
            if fi - 1 < len(early_steps):
                z, x, y = early_steps[fi - 1]; cmul(R(z), R(x), R(y))
        transpose(BF)
        B(f"v_mov_b32 v{PBK[bank[0]]}, 0x3f80")
        for l in list(range(1, 8)) + list(range(128, 136)): put(rowof[l], R(l))
        s1 = [(256 + 2*l, 128 + l, 128 + l) for l in range(4)]
        for z, x, y in s1[:2]: cmul(R(z), R(x), R(y))
        transpose(OUT)
        for z, x, y in s1[2:]: cmul(R(z), R(x), R(y))
        kmfma(0, c)
        s1 += [(384 + l, 256 + l, 128) for l in (0, 2, 4, 6)] + [(512, 256, 256), (516, 258, 258), (768, 384, 384), (772, 386, 386), (640, 512, 128), (644, 516, 128), (896, 768, 128), (900, 772, 128)]
        for z, x, y in s1[:4]: put(rowof[z], R(z))
        for z, x, y in s1[4:]: cmul(R(z), R(x), R(y)); put(rowof[z], R(z))
        s2 = [(1024, 512, 512), (1280, 640, 640), (1536, 768, 768), (1792, 896, 896), (1152, 1024, 128), (1408, 1280, 128), (1664, 1536, 128), (1920, 1792, 128), (2048, 1024, 1024)]
        z, x, y = s2[0]; cmul(R(z), R(x), R(y))
        transpose(OUT)
        z, x, y = s2[1]; cmul(R(z), R(x), R(y))
        kmfma(1, c)
        for z, x, y in s2[:2]: put(rowof[z], R(z))
        for z, x, y in s2[2:]: cmul(R(z), R(x), R(y)); put(rowof[z], R(z))
        transpose(OUT, 9)
        kmfma(2, c)
    def kput():
        for t in range(3):
            for r in range(4):
                if t == 2 and r == 0: A("s_mov_b32 exec_hi, 0xffff")
                if t == 2 and r == 1: A("s_mov_b32 exec_hi, 0")
                A(f"ds_write_b32 v{DA}, v{KD+4*t+r} offset:{t*1280 + r*80}")
        A("s_mov_b64 exec, -1")
    def publish_u():
        A(f"""
        s_waitcnt vmcnt({1 if opt.get('pf', 0) else 0})
        s_cmp_lg_u32 s96, 0
        s_cbranch_scc1 S_havetag
        """)
        get_nonce(A, 'SA', 8, 60, 96)
        A(f"""
S_havetag:
        s_lshl_b32 s38, s27, 5
        s_add_u32 s38, s38, s26
        s_lshl_b32 s38, s38, 2
        s_add_u32 s38, s38, s24
        s_lshl_b32 s38, s38, 3
        s_add_u32 s38, s38, {FL_U}
        v_mov_b32 v10, s38
        v_mov_b32 v8, s96
        v_mov_b32 v9, s97
        s_mov_b64 exec, 1
        buffer_store_dwordx2 v[8:9], v10, s[56:59], 0 offen sc1
        s_mov_b64 exec, -1
        """)
    ST.mark(A)
    A(f"s_waitcnt vmcnt({5 + (1 if early else 0)}) lgkmcnt(0)\nv_readfirstlane_b32 s36, v26\nv_readfirstlane_b32 s37, v27")
    ST.mark(A)
    def t_hook():
        A(f"s_waitcnt vmcnt({1 if early else 0})\nv_readfirstlane_b32 s96, v30\nv_readfirstlane_b32 s97, v31")
        tpart()
        touch(1 if early else 0)
    def pollissue():
        A(f"""
        v_lshlrev_b32 v6, 4, v12
        s_lshr_b32 s38, s25, 5
        s_lshl_b32 s38, s38, 10
        s_add_u32 s38, s38, {FL_U}
        v_add_u32 v6, s38, v6
        buffer_load_dwordx4 v[8:11], v6, s[56:59], 0 offen sc1
        """)
    def udma():
        A("s_waitcnt vmcnt(0)")
        poll_flags4(A, 'SU', 6, 8, 56, 96, 99, first_issued=True)
        A(f"""
        s_barrier
        v_lshlrev_b32 v6, 6, v12
        s_lshr_b32 s38, s25, 1
        s_lshl_b32 s38, s38, 14
        s_and_b32 s39, s25, 1
        s_lshl_b32 s39, s39, 5
        s_add_u32 s38, s38, s39
        s_lshl_b32 s39, s24, 12
        s_add_u32 s38, s38, s39
        s_lshl_b32 s39, s24, 10
        s_add_u32 m0, s39, {UB[0] + 512}
        s_nop 0
        buffer_load_dwordx4 v6, s[12:15], s38 offen lds
        s_add_u32 m0, s39, {UB[1] + 512}
        s_add_u32 s38, s38, 16
        buffer_load_dwordx4 v6, s[12:15], s38 offen lds
        """)
    tables(0); n0 = len(B.l); tables(1)
    seq = schedule(B.l, filler='v_mov_b32 v29, v29')
    print('S table ops', len(B.l), 'scheduled', len(seq), 'nops', seq.count('s_nop 0'), 'fillers', seq.count('v_mov_b32 v29, v29'))
    def keepvcc(f):
        def g():
            A("s_mov_b64 s[28:29], vcc"); f(); A("s_mov_b64 vcc, s[28:29]")
        return g
    firstput = next(i for i, x in enumerate(seq) if 'v_cvt_pk_bf16_f32 v152' in x)
    hk = {firstput: t_hook, int(len(seq) * opt.get('pub_at', 0.2)): publish_u, len(seq) // 2: lambda: ST.mark(A),
          int(len(seq) * opt.get('poll_at', 0.8)): pollissue, int(len(seq) * opt.get('udma_at', 0.95)): keepvcc(udma)}
    for i, x in enumerate(seq):
        if i in hk: hk[i]()
        A(x)
    ST.mark(A)
    A(f"""
    v_and_b32 v6, 15, v12                 ; rho / n
    v_lshrrev_b32 v7, 4, v12              ; kg
    s_lshr_b32 s32, s24, 1                ; ch
    s_and_b32 s27, s24, 1                 ; par
    v_not_b32 v8, v6
    v_and_b32 v8, 3, v8
    v_mul_u32_u24 v8, {CP}, v8
    v_and_b32 v9, 12, v6
    v_lshlrev_b32 v9, 1, v9
    v_sub_u32 v8, v8, v9
    v_lshl_add_u32 v8, v7, 4, v8
    s_mul_i32 s38, s32, {CH}
    s_lshl_b32 s39, s27, 6
    s_sub_u32 s38, s38, s39
    s_add_u32 s38, s38, {2*2044 - 32*127 + 64}
    v_add_u32 v1, s38, v8                 ; vA
    """)
    kput()
    A(f"""
    v_lshlrev_b32 v8, 5, v6
    v_lshl_add_u32 v9, v7, 4, v8
    s_mul_i32 s38, s32, {UB[1]-UB[0]}
    s_add_u32 s38, s38, {UB[0] + 512}
    s_sub_u32 s39, s38, s39
    s_sub_u32 s39, s39, {32*13}
    v_add_u32 v2, s39, v9                 ; vB
    v_lshl_add_u32 v3, v7, 3, v8
    v_add_u32 v4, s38, v3
    v_lshlrev_b32 v5, 4, v12
    s_lshl_b32 s38, s24, 12
    s_add_u32 s38, s38, {RED}
    v_add_u32 v14, s38, v5
    s_xor_b32 s38, s24, 1
    s_lshl_b32 s38, s38, 12
    s_add_u32 s38, s38, {RED}
    v_add_u32 v15, s38, v5
    s_lshl_b32 s35, s37, 16
    s_and_b32 s38, s37, 0xffff0000
    s_cmp_eq_u32 s32, 1
    s_cselect_b32 s35, s38, s35           ; Dskip (f32)
    s_lshl_b32 s33, s25, 1
    s_add_u32 s33, s33, s32
    s_lshl_b32 s33, s33, 12               ; d*4096
    v_lshlrev_b32 v6, 4, v0
    v_add_u32 v7, {2*CP - 4}, v6
    v_add_u32 v8, {3*CP - 4}, v6
    v_add_u32 v9, {CH + 2*CP - 4}, v6
    v_add_u32 v10, {CH + 3*CP - 4}, v6
    s_waitcnt lgkmcnt(0)
    s_barrier
    """)
    ST.mark(A)
    E = [64, 80]
    for c in range(2):
        for e in range(9):
            A(f"ds_read_b32 v{100 + 20*c + e}, v{GA+e} offset:{2*c*CMPSZ}\nds_read_b32 v{110 + 20*c + e}, v{GA+e} offset:{(2*c+1)*CMPSZ}")
    def copies(c, e, o):
        A(f"""ds_write_b128 v6, {v(e,4)} offset:{c*CH}
        ds_write_b128 v6, {v(o,4)} offset:{c*CH + CP}
        ds_write2_b32 v{7+2*c}, v{e}, v{e+1} offset0:0 offset1:1
        ds_write2_b32 v{7+2*c}, v{e+2}, v{e+3} offset0:2 offset1:3
        ds_write2_b32 v{8+2*c}, v{o}, v{o+1} offset0:0 offset1:1
        ds_write2_b32 v{8+2*c}, v{o+2}, v{o+3} offset0:2 offset1:3""")
    for c in range(2):
        A(f"s_waitcnt lgkmcnt({15 if c == 0 else 6})")
        b = 100 + 20*c
        for e in range(9): A(f"v_add_f32 v{b+e}, v{b+e}, v{b+10+e}")
        for j in range(4): A(f"v_cvt_pk_bf16_f32 v{E[c]+j}, v{b+2*j}, v{b+2*j+1}\nv_cvt_pk_bf16_f32 v{E[c]+8+j}, v{b+2*j+1}, v{b+2*j+2}")
        copies(c, E[c], E[c] + 8)
    A(f"s_cmp_lg_u32 s24, 0\ns_cbranch_scc1 S_nozero\ns_mov_b64 exec, 3")
    for k in range(4): A(f"v_mov_b32 v{96+k}, 0")
    for k in range(6, 11): A(f"v_add_u32 v{k}, 4096, v{k}")
    for c in range(2): copies(c, 96, 96)
    A("s_mov_b64 exec, -1\nS_nozero:\ns_waitcnt vmcnt(0) lgkmcnt(0)\ns_barrier")
    ST.mark(A)
    ACC, BR, AR = 16, [64, 96], 48
    L = Lds(A)
    def rdB(e, j): L.issue(f"ds_read_b128 {v(BR[e&1] + 4*j, 4)}, v2 offset:{512*j + 32*(13 - (1 + 4*e))}", ('B', e, j))
    def rdA(n):
        e, q = divmod(n, 8)
        o = 32 * (127 - 16*q - (1 + 4*e)) - 64; r = AR + 4 * (n % 4)
        L.issue(f"ds_read_b64 {v(r,2)}, v1 offset:{o}", ('A0', n)); L.issue(f"ds_read_b64 {v(r+2,2)}, v1 offset:{o+8}", ('A', n))
    rdA(0)
    for j in range(8): rdB(0, j)
    rdA(1); rdA(2)
    for n in range(32):
        e, q = divmod(n, 8)
        for j in range(q, 8):
            L.need(('A', n), ('B', e, j - q))
            first = (e == 0 and q == 0)
            A(f"v_mfma_f32_16x16x32_bf16 {v(ACC+4*j,4)}, {v(AR+4*(n%4),4)}, {v(BR[e&1]+4*(j-q),4)}, {'0' if first else v(ACC+4*j,4)}")
            if j == q:
                if n + 3 < 32: rdA(n + 3)
                if e < 3 and q < 4: rdB(e + 1, 2*q); rdB(e + 1, 2*q + 1)
    ST.mark(A)
    A("s_cmp_eq_u32 s27, 1\ns_cbranch_scc1 S_epi1")
    for par in range(2):
        if par: A("S_epi1:")
        keep = [j for j in range(8) if (j & 1) == par]; send = [j for j in range(8) if (j & 1) != par]
        for k, j in enumerate(keep): A(f"ds_read_b64 {v(64+2*k,2)}, v4 offset:{512*j}")
        A("s_nop 3")
        for k, j in enumerate(send): A(f"ds_write_b128 v14, {v(ACC+4*j,4)} offset:{k*1024}")
        A("s_waitcnt lgkmcnt(0)\ns_barrier")
        for k, j in enumerate(keep): A(f"ds_read_b128 {v(80+4*k,4)}, v15 offset:{k*1024}")
        for k, j in enumerate(keep):
            for r in range(4):
                src = 64 + 2*k + r // 2
                A(f"v_and_b32 v{96+4*k+r}, 0xffff0000, v{src}" if r & 1 else f"v_lshlrev_b32 v{96+4*k+r}, 16, v{src}")
            for r in range(4): A(f"v_fmac_f32 v{ACC+4*j+r}, s35, v{96+4*k+r}")
        for k, j in enumerate(keep):
            A(f"s_waitcnt lgkmcnt({3-k})")
            for r in range(4): A(f"v_add_f32 v{ACC+4*j+r}, v{ACC+4*j+r}, v{80+4*k+r}")
            A(f"v_cvt_pk_bf16_f32 v{112+2*k}, v{ACC+4*j}, v{ACC+4*j+1}\nv_cvt_pk_bf16_f32 v{113+2*k}, v{ACC+4*j+2}, v{ACC+4*j+3}")
            A(f"buffer_store_dwordx2 {v(112+2*k,2)}, v3, s[16:19], s33 offen offset:{512*j} sc1")
        if par == 0: A("s_branch S_done")
    A(f"""
S_done:
    s_waitcnt vmcnt(0)
    s_barrier
    s_cmp_lg_u32 s24, 0
    s_cbranch_scc1 S_end
    s_lshl_b32 s38, s25, 3
    s_add_u32 s38, s38, {FL_A}
    v_mov_b32 v10, s38
    v_mov_b32 v8, s96
    v_mov_b32 v9, s97
    s_mov_b64 exec, 1
    buffer_store_dwordx2 v[8:9], v10, s[56:59], 0 offen sc1
    s_mov_b64 exec, -1
S_end:
    """)
    ST.finish(A, tsbase)
    A("s_endpgm")
    return nxt[0]
```

```python
import re
class Op:
    __slots__ = ('t', 'r', 'w', 'kind', 'preds', 'done', 'pos')
    def __init__(self, t):
        self.t = t.strip()
        m = self.t.split(None, 1)
        name = m[0]; ops = m[1] if len(m) > 1 else ''
        regs = []
        for tok in re.split(r',\s*', ops.split(' row_')[0].split(' quad_perm')[0].split(' op_sel')[0]):
            tok = tok.strip().lstrip('-')
            mm = re.fullmatch(r'v\[(\d+):(\d+)\]', tok)
            if mm: regs.append([f"v{i}" for i in range(int(mm.group(1)), int(mm.group(2)) + 1)]); continue
            if re.fullmatch(r'v\d+', tok): regs.append([tok]); continue
            if tok.startswith('vcc'): regs.append(['vcc']); continue
            if re.fullmatch(r's\d+', tok): regs.append([tok]); continue
            regs.append([])
        self.w = set(regs[0]); self.r = set(x for g in regs[1:] for x in g)
        if name.startswith('v_fmac'): self.r |= self.w
        if name in ('s_mov_b32',) and 'vcc' in self.w: self.r |= {'vcc'}
        if name.startswith('s_') and name not in ('s_mov_b32',): self.w |= {'scc'}
        if name.startswith('s_cselect'): self.r |= {'scc'}; self.w -= {'scc'}
        if name.startswith('s_cmp'): self.r |= self.w - {'scc'}; self.w = {'scc'}
        k = 'v'
        if name.startswith('s_'): k = 's'
        elif 'mfma' in name: k = 'm'
        elif name.endswith('_dpp'): k = 'd'
        elif name in ('v_exp_f32', 'v_sin_f32', 'v_cos_f32', 'v_rcp_f32', 'v_log_f32'): k = 't'
        self.kind = k
        self.done = False; self.pos = -1
    @property
    def vccr(self): return self.kind != 's' and 'vcc' in self.r

def schedule(lines, filler='v_mov_b32 v255, v255', window=400):
    ops = [Op(x) for l in lines for x in l.split('\n') if x.strip()]
    lastw = {}; readers = {}
    for i, o in enumerate(ops):
        p = {}
        def add(j, d): p[j] = max(p.get(j, 0), d)
        for r in o.r:
            if r in lastw:
                j = lastw[r]; pk = ops[j].kind; d = 1
                if pk in 'vdt' and o.kind in 'dm' and r != 'vcc': d = 3
                elif pk == 't' and o.kind != 't': d = 2
                elif pk == 'm' and o.kind != 'm': d = 10
                add(j, d)
        for w in o.w:
            if w in lastw: add(lastw[w], 10 if ops[lastw[w]].kind == 'm' and o.kind != 'm' else 1)
            for j in readers.get(w, []):
                if j != i: add(j, 1)
        o.preds = p
        for r in o.r: readers.setdefault(r, []).append(i)
        for w in o.w: lastw[w] = i; readers[w] = []
    out = []; n = 0; first = 0; lastv = None
    while first < len(ops):
        cand = []
        for i in range(first, min(len(ops), first + window)):
            o = ops[i]
            if o.done: continue
            if all(ops[j].done and n - ops[j].pos >= d for j, d in o.preds.items()): cand.append(o)
        pick = None
        sal = [o for o in cand if o.kind == 's']
        if sal: pick = sal[0]
        elif cand:
            vc = [o for o in cand if o.vccr]; nv = [o for o in cand if not o.vccr]
            if lastv is not None and lastv.vccr: pick = nv[0] if nv else None
            else: pick = vc[0] if vc else nv[0]
            if pick is None and filler is None: pick = vc[0]
            if pick is None:
                out.append(filler); n += 1; lastv = None; continue
        if pick is None:
            out.append('s_nop 0'); n += 1; continue
        pick.done = True; pick.pos = n; out.append(pick.t); n += 1
        if pick.kind != 's': lastv = pick
        while first < len(ops) and ops[first].done: first += 1
    return out
```

```python
import sys
from common2 import *
from role_fg import role_fg
from role_s3 import role_s
def build(out, diag=False, opt={}):
    hdr = open('cdna_kernels/' + NAME + '.s.ref').read().split('; Override launch')[0]
    K = NAME + '_kernel'
    src = hdr + """; @launch grid=(448,1,1) block=(256,1,1) lds=81920
.amdgcn_target "amdgcn-amd-amdhsa--gfx950"
.text
"""
    A = Asm(); ST = Stamps(diag)
    A("""
    s_cmp_ge_u32 s2, 448
    s_cbranch_scc1 K_exit
    """)
    ST.start(A)
    A("""
    s_and_b32 s3, s2, 7
    s_lshr_b32 s33, s2, 3                 ; j
    """)
    if opt.get('pfcode', 1):
        A("""
    s_getpc_b64 s[4:5]
K_pc:
    s_mul_i32 s6, s33, 5
    v_add_u32 v1, s6, v0
    v_lshlrev_b32 v1, 7, v1
    v_min_u32 v1, K_exit - K_pc, v1
    v_cmp_gt_u32 vcc, 5, v0
    s_and_saveexec_b64 s[6:7], vcc
    s_cbranch_execz K_nopf
    global_load_dword v251, v1, s[4:5]
K_nopf:
    s_mov_b64 exec, s[6:7]
    """)
    A("""
    s_cmp_ge_u32 s33, 28
    s_cbranch_scc1 K_s
    s_lshr_b32 s25, s3, 1
    s_lshl_b32 s25, s25, 2
    s_and_b32 s26, s33, 3
    s_add_u32 s25, s25, s26               ; rb
    s_and_b32 s26, s3, 1
    s_mul_i32 s26, s26, 7
    s_lshr_b32 s33, s33, 2
    s_add_u32 s26, s26, s33               ; cb
    """)
    role_fg(A, ST, opt)
    A("""
K_s:
    s_sub_u32 s33, s33, 28
    s_mov_b32 s87, s33
    s_mul_i32 s25, s3, 28
    s_add_u32 s25, s25, s33
    s_lshl_b32 s26, s3, 2
    s_and_b32 s27, s33, 3
    s_add_u32 s26, s26, s27               ; rt_s
    s_lshr_b32 s27, s33, 2                ; ct_s
    """)
    ST.n = 1 if diag else 0
    role_s(A, ST, opt)
    A("K_exit:\ns_endpgm")
    src += kernel_head(K) + A.text() + '.section .rodata,"a"\n' + kernel_desc(K, 252, 102)
    open(out, 'w').write(src)
if __name__ == '__main__':
    opt = eval(sys.argv[3]) if len(sys.argv) > 3 else {}
    build(sys.argv[1], {'diag': True, 'rt': 'rt'}.get(sys.argv[2], False) if len(sys.argv) > 2 else False, opt)
```

```python
NAME = 'gated_mix__ssm_conv_s4__glu_gated_geglu__prompt'
KA = dict(u=0, Are=8, Aim=16, Bre=24, Bim=32, Cre=40, Cim=48, ldt=56, Dsk=64, Bx=72, Wg=80, Wu=88, Wd=96, gw=104, out=112, dbg=120, ws=128)
WS_H, WS_H_SZ = 0x0, 64 * 112 * 1024
WS_U2, WS_U2_SZ = 0x800000, 112 * 16384
WS_AT, WS_AT_SZ = 0xA00000, 448 * 4096
WS_G, WS_G_SZ = 0xC00000, 8192
WS_TS = 0xD00000
SZ_U = 2048 * 448 * 2
SZ_W = 448 * 1792 * 2
SZ_P = 448 * 256 * 2

import os
WSOFF = int(os.environ.get('WSOFF', '0'), 0)
class Asm:
    def __init__(self):
        self.l = []
    def __call__(self, s=''):
        for x in s.split('\n'):
            x = x.strip()
            if not x: continue
            if x.endswith(':') or x.startswith('.'): self.l.append(x)
            else: self.l.append('    ' + x)
    def text(self): return '\n'.join(self.l) + '\n'

def v(a, n=1): return f"v{a}" if n == 1 else f"v[{a}:{a+n-1}]"
def s(a, n=1): return f"s{a}" if n == 1 else f"s[{a}:{a+n-1}]"

def srd(A, d, ptr, size, off=0):
    if ptr == 6: off += WSOFF
    if off:
        A(f"s_add_u32 s{d}, s{ptr}, {off}\ns_addc_u32 s{d+1}, s{ptr+1}, 0")
    else:
        A(f"s_mov_b32 s{d}, s{ptr}\ns_mov_b32 s{d+1}, s{ptr+1}")
    A(f"s_mov_b32 s{d+2}, {size}\ns_mov_b32 s{d+3}, 0x00020000")

def kernel_head(name):
    return f""".globl {name}
.p2align 8
.type {name},@function
{name}:
"""
def kernel_desc(name, nv, ns=96):
    return f""".p2align 6
.amdhsa_kernel {name}
  .amdhsa_next_free_vgpr {nv}
  .amdhsa_next_free_sgpr {ns}
  .amdhsa_accum_offset {(nv + 3) // 4 * 4}
  .amdhsa_group_segment_fixed_size 0
  .amdhsa_kernarg_size 136
  .amdhsa_user_sgpr_count 2
  .amdhsa_user_sgpr_kernarg_segment_ptr 1
  .amdhsa_system_sgpr_workgroup_id_x 1
.end_amdhsa_kernel
"""
def f2u(x):
    import struct
    return '0x%08x' % struct.unpack('<I', struct.pack('<f', x))[0]

def interleave(main, fill, per=None):
    out = []
    n = len(main); k = 0
    for i, m in enumerate(main):
        out.append(m)
        c = per[i] if per else (len(fill) - k + (n - i) - 1) // (n - i)
        for _ in range(c):
            if k < len(fill): out.append(fill[k]); k += 1
    out += fill[k:]
    return out

class Stamps:
    def __init__(self, on): self.on = on; self.n = 0; self.clk = 's_memrealtime' if on == 'rt' else 's_memtime'
    def start(self, A):
        if not self.on: return
        self.n = 1
        A(f"s_mov_b32 s90, s2\n{self.clk} s[64:65]\ns_memrealtime s[92:93]\ns_getreg_b32 s91, hwreg(HW_REG_HW_ID)\ns_getreg_b32 s89, hwreg(HW_REG_XCC_ID)")
    def mark(self, A):
        if not self.on: return
        A(f"{self.clk} s[{64+2*self.n}:{65+2*self.n}]\ns_waitcnt lgkmcnt(0)"); self.n += 1
    def finish(self, A, base=0):
        if not self.on: return
        A("s_waitcnt vmcnt(0)")
        self.mark(A)
        A(f"""s_memrealtime s[94:95]
        s_load_dwordx2 s[60:61], s[0:1], {KA['ws']}
        s_waitcnt lgkmcnt(0)
        s_add_u32 s60, s60, {WS_TS}
        s_addc_u32 s61, s61, 0
        s_mov_b32 s62, 0x100000
        s_mov_b32 s63, 0x00020000
        s_add_u32 s90, s90, {base}
        s_lshl_b32 s90, s90, 2
        s_add_u32 s90, s90, s24
        s_lshl_b32 s90, s90, 6
        v_mov_b32 v1, s90
        s_mov_b64 exec, 1
        v_mov_b32 v2, s92
        buffer_store_dword v2, v1, s[60:63], 0 offen
        v_mov_b32 v3, s94
        buffer_store_dword v3, v1, s[60:63], 0 offen offset:4
        v_mov_b32 v4, s91
        buffer_store_dword v4, v1, s[60:63], 0 offen offset:8
        v_mov_b32 v5, s89
        buffer_store_dword v5, v1, s[60:63], 0 offen offset:12""")
        for k in range(1, self.n):
            A(f"s_sub_u32 s88, s{64+2*k}, s64\nv_mov_b32 v{5+k}, s88\nbuffer_store_dword v{5+k}, v1, s[60:63], 0 offen offset:{12+4*k}")
        A("s_waitcnt vmcnt(0)")
```

```python
from common2 import *
import math
XBUF = [49152, 65536]; WBUF = [0, 16384, 32768]
ACC = 64
FR = [16, 40]
V_XD, V_WGD, V_WUD = 1, 2, 3
V_XR = 4; V_WR = 8; V_ST = 12
NW = 16
NS = 9
HN = 5
GACC = 16; HR = 80; WH = 120; ATILE = 73728
def slot_of(n): return n % NS if n < NS else ((n - NS) % NS if n < 2 * NS else (n - 2 * NS) % NS)
def role_fg(A, ST, opt, tsbase=0):
    usepk = opt.get('usepk', True)
    A(f"""
    s_load_dwordx2 s[4:5], s[0:1], {KA['u']}
    s_load_dwordx4 s[28:31], s[0:1], {KA['Wg']}
    s_load_dwordx2 s[6:7], s[0:1], {KA['ws']}
    s_load_dwordx2 s[48:49], s[0:1], {KA['Wd']}
    s_load_dwordx4 s[52:55], s[0:1], {KA['out']}
    s_setprio {opt.get('prio_fg', 2)}
    v_lshrrev_b32 v13, 6, v0
    v_and_b32 v0, 63, v0
    v_readfirstlane_b32 s24, v13
    v_lshrrev_b32 v14, 3, v0              ; lane>>3
    v_lshrrev_b32 v15, 4, v0              ; lane>>4
    s_and_b32 s27, s24, 1                 ; wr
    s_lshr_b32 s32, s24, 1                ; wc
    s_lshl_b32 s33, s27, 2
    v_add_u32 v16, s33, v15
    v_and_b32 v17, 7, v0
    v_xor_b32 v17, v17, v16
    v_lshlrev_b32 v17, 4, v17
    v_mov_b32 v18, 896
    v_mad_u32_u24 v{V_XD}, v14, v18, v17
    v_lshlrev_b32 v16, 1, v15
    v_and_b32 v17, 15, v0
    v_xor_b32 v17, v17, v16
    v_lshlrev_b32 v17, 4, v17
    v_mov_b32 v18, 3584
    v_mad_u32_u24 v{V_WGD}, v15, v18, v17
    v_xor_b32 v{V_WUD}, 128, v{V_WGD}
    s_lshl_b32 s34, s25, 4
    s_add_u32 s34, s34, s24
    s_mul_i32 s34, s34, {8*896}
    s_mul_i32 s35, s24, {4*3584}
    s_lshl_b32 s37, s26, 8
    s_add_u32 s35, s35, s37
    s_lshl_b32 s36, s24, 10
    s_and_b32 s85, s25, 3                 ; rbl
    v_bfe_u32 v19, v0, 1, 3
    v_lshl_add_u32 v19, v15, 5, v19
    s_lshl_b32 s38, s85, 3
    v_add_u32 v19, s38, v19
    v_mul_u32_u24 v19, 3584, v19
    v_and_b32 v20, 1, v0
    v_lshl_add_u32 v19, v20, 7, v19
    v_add_u32 v22, s37, v19
    v_and_b32 v19, 31, v0
    v_min_u32 v19, 18, v19
    s_cmp_ge_u32 s26, 7
    s_cselect_b32 s38, 7, 0
    s_sub_u32 s38, s26, s38
    s_lshl_b32 s85, s85, 1
    s_add_u32 s85, s85, s38
    s_cmp_ge_u32 s85, 7
    s_cselect_b32 s86, 7, 0
    s_sub_u32 s85, s85, s86
    s_mov_b32 s60, {'s85' if opt.get('rot', 0) else 0}
    s_mov_b32 s62, s60
    s_mul_i32 s38, s38, 19
    v_add_u32 v19, s38, v19
    v_min_u32 v19, 127, v19
    s_lshl_b32 s38, s25, 7
    v_add_u32 v19, s38, v19
    v_mul_u32_u24 v19, 896, v19
    v_lshrrev_b32 v20, 5, v0
    v_lshl_add_u32 v23, v20, 7, v19
    s_waitcnt lgkmcnt(0)
    """)
    ST.mark(A)
    srd(A, 8, 4, SZ_U); srd(A, 12, 28, SZ_W); srd(A, 16, 30, SZ_W)
    def dmaX(b, i):
        pre = "s_lshl_b32 s61, s60, 7\ns_add_u32 s61, s61, s34\ns_add_u32 s60, s60, 1\ns_cmp_eq_u32 s60, 7\ns_cselect_b32 s60, 0, s60\n" if i == 0 else ''
        return (pre + f"s_add_u32 m0, s36, {XBUF[b & 1] + i * 4096}\n"
                f"s_add_u32 s38, s61, {i * 32 * 896}\n"
                f"buffer_load_dwordx4 v{V_XD}, s[8:11], s38 offen lds")
    def dmaW(st, m, i):
        pre = f"s_mul_i32 s63, s62, {64*3584}\ns_add_u32 s63, s63, s35\ns_add_u32 s62, s62, 1\ns_cmp_eq_u32 s62, 7\ns_cselect_b32 s62, 0, s62\n" if (st & 1) == 0 and m == 0 and i == 0 else ''
        return (pre + f"s_add_u32 m0, s36, {WBUF[st % 3] + m * 8192 + i * 4096}\n"
                f"s_add_u32 s38, s63, {(32 * (st & 1) + 16 * i) * 3584}\n"
                f"buffer_load_dwordx4 v{V_WUD if m else V_WGD}, s[{16 if m else 12}:{19 if m else 15}], s38 offen lds")
    def stW(st): return [dmaW(st, m, i) for i in range(2) for m in range(2)]
    def stX(b): return [dmaX(b, i) for i in range(4)]
    srd(A, 44, 54, 256)
    A(f"""
    s_xor_b32 s33, s24, 3
    s_or_b32 s33, s2, s33
    s_cmp_lg_u32 s33, 0
    s_cbranch_scc1 FG_notag
    s_memrealtime s[40:41]
    v_mov_b32 v28, 0
    s_waitcnt lgkmcnt(0)
    s_or_b32 s40, s40, 1
    v_mov_b32 v26, s40
    v_mov_b32 v27, s41
    s_mov_b64 exec, 1
    buffer_store_dwordx2 v[26:27], v28, s[44:47], 0 offen sc1
    s_mov_b64 exec, -1
FG_notag:
    """)
    if opt.get('pf', 0):
        A(f"""
        s_cmp_eq_u32 s24, 3
        s_cbranch_scc1 FG_pf3
        s_cmp_eq_u32 s24, 2
        s_cbranch_scc1 FG_pf2
        s_cmp_eq_u32 s24, 1
        s_cbranch_scc1 FG_pf1
        buffer_load_dword v24, v22, s[12:15], 0 offen
        s_branch FG_pf3
FG_pf1:
        buffer_load_dword v24, v22, s[16:19], 0 offen
        s_branch FG_pf3
FG_pf2:
        buffer_load_dword v24, v23, s[8:11], 0 offen
FG_pf3:
        """)
    burst12 = opt.get('burst', 20) == 12
    for x in stX(0) + stW(0) + stW(1) + ([] if burst12 else stX(1) + stW(2)): A(x)
    srd(A, 20, 6, WS_H_SZ, WS_H); srd(A, 56, 6, WS_FL_SZ, WS_FL)
    A(f"""
    {'s_waitcnt vmcnt(0)' + chr(10) + 's_endpgm' if opt.get('skip_fg') else ''}
    v_and_b32 v16, 31, v0                 ; t
    v_lshrrev_b32 v17, 5, v0              ; h
    v_bfe_u32 v18, v0, 1, 3               ; (t>>1)&7
    s_lshl_b32 s33, s27, 13
    s_add_u32 s33, s33, {XBUF[0]}
    v_lshlrev_b32 v16, 7, v16
    v_add_u32 v16, s33, v16
    """)
    for k in range(4):
        A(f"v_or_b32 v19, {2*k}, v17\nv_xor_b32 v19, v19, v18\nv_lshl_add_u32 v{V_XR+k}, v19, 4, v16")
    A(f"""
    v_bfe_u32 v16, v0, 4, 1               ; m
    v_bfe_u32 v18, v0, 2, 2               ; r
    v_and_b32 v19, 3, v0                  ; c
    v_lshlrev_b32 v20, 13, v16
    v_lshl_add_u32 v20, v17, 11, v20
    v_lshl_add_u32 v20, v18, 8, v20
    v_lshl_add_u32 v20, v19, 3, v20
    v_lshl_or_b32 v21, v16, 2, v18
    s_lshl_b32 s33, s32, 2
    v_xor_b32 v21, s33, v21
    """)
    for j in range(4):
        A(f"v_xor_b32 v19, {j}, v21\nv_lshl_add_u32 v{V_WR+j}, v19, 5, v20")
    A(f"""
    s_lshl_b32 s33, s25, 1
    s_add_u32 s33, s33, s27
    s_mul_i32 s33, s33, 224
    s_lshl_b32 s37, s26, 3
    s_add_u32 s33, s33, s37
    s_lshl_b32 s37, s32, 2
    s_add_u32 s33, s33, s37
    s_lshl_b32 s39, s33, 10
    v_lshlrev_b32 v{V_ST}, 4, v0
    """)
    def reads(n):
        st, ks = n >> 1, n & 1
        b, ks4 = n >> 2, n & 3
        f = FR[n & 1]
        xr = [f"ds_read_b128 {v(f + 4*tt, 4)}, v{V_XR+ks4} offset:{XBUF[b & 1] - XBUF[0] + tt * 4096}" for tt in range(2)]
        wr = [[f"ds_read_b64_tr_b16 {v(f + 8 + 4*j + 2*p, 2)}, v{V_WR+j} offset:{WBUF[st % 3] + ks * 4096 + p * 1024}" for p in range(2)] for j in range(4)]
        return [xr[0]] + wr[0] + [xr[1]] + wr[1] + wr[2] + wr[3]
    def mfmas(n):
        f = FR[n & 1]
        out = []
        for j in range(4):
            for tt in range(2):
                a = ACC + (tt * 4 + j) * 16
                out.append(f"v_mfma_f32_32x32x16_bf16 {v(a,16)}, {v(f+8+4*j,4)}, {v(f+4*tt,4)}, {'0' if n == 0 else v(a, 16)}")
        return out
    A(f"s_waitcnt vmcnt({4 if burst12 else 12})\ns_barrier")
    ST.mark(A)
    for x in reads(0): A(x)
    gsetup = f"""
    s_cmp_ge_u32 s26, 7
    s_cselect_b32 s42, 1, 0               ; half
    s_mul_i32 s43, s42, 7
    s_sub_u32 s43, s26, s43
    s_lshl_b32 s50, s25, 1
    s_add_u32 s50, s50, s42               ; rt
    s_mov_b32 s8, s48
    s_mov_b32 s9, s49
    s_mov_b32 s10, {SZ_W}
    s_mul_i32 s36, s24, {NS*2048}
    v_lshrrev_b32 v14, 3, v0
    v_bfe_u32 v15, v0, 4, 1
    v_lshlrev_b32 v15, 2, v15
    v_and_b32 v13, 7, v0
    v_xor_b32 v13, v13, v15
    v_lshlrev_b32 v13, 4, v13
    v_mov_b32 v15, 896
    v_mad_u32_u24 v1, v14, v15, v13
    v_lshl_add_u32 v2, v14, 12, v13
    s_mov_b32 s86, s85
    s_lshl_b32 s51, s43, 7
    """
    if opt.get('wdtouch', 1): gsetup += f"""
    v_mul_u32_u24 v3, 896, v0
    s_lshl_b32 s34, s85, 2
    s_add_u32 s34, s34, s24
    s_mul_i32 s34, s34, {64*896}
    s_add_u32 s34, s34, s51
    buffer_load_dword v13, v3, s[8:11], s34 offen
    """
    for n in range(28):
        dm = []
        if n & 1:
            sp = (n + 1) >> 1
            if sp <= 13:
                young = 0
                if sp == 1: young = 8
                else:
                    if sp + 1 <= 13: young += 4
                    if (sp + 1) % 2 == 0 and (sp + 1) // 2 <= 6: young += 4
                    if sp == 13 and opt.get('wdtouch', 1): young += 1
                A(f"s_waitcnt vmcnt({young}) lgkmcnt(0)\ns_barrier")
                if opt.get('stage_stamps') and sp % 2 == 0: ST.mark(A)
                if sp + 2 <= 13: dm += stW(sp + 2)
                if sp % 2 == 0 and sp // 2 + 1 <= 6: dm += stX(sp // 2 + 1)
            else:
                A("s_waitcnt lgkmcnt(0)\ns_barrier")
            pend = dm[len(dm)//2:]; dm = dm[:len(dm)//2]
        else:
            A("s_waitcnt lgkmcnt(0)")
            if n > 0: dm = pend
            elif burst12: dm = stX(1) + stW(2)
        rd = reads(n + 1) if n < 27 else []
        mm = mfmas(n)
        seq = []
        di = 0
        for i, m in enumerate(mm):
            seq.append(m)
            seq += rd[2*i:2*i+2]
            if i >= 3 and di < len(dm): seq.append(dm[di]); di += 1
        seq += dm[di:]
        if n == 23: seq = seq[:3] + [gsetup] + seq[3:]
        if n == 27:
            pass
        if n < 27:
            for x in seq: A(x)
        else:
            last = seq
    VM = Vm(A)
    def ldW(n):
        r = []
        for i in range(2):
            pre = f"s_lshl_b32 s34, s85, 2\ns_add_u32 s34, s34, s24\ns_mul_i32 s34, s34, {64*896}\ns_add_u32 s34, s34, s51\ns_add_u32 s85, s85, 1\ns_cmp_eq_u32 s85, 7\ns_cselect_b32 s85, 0, s85\n" if (n & 3) == 0 and i == 0 else ''
            r.append((pre + f"s_add_u32 m0, s36, {slot_of(n) * 2048 + i * 1024}\ns_add_u32 s38, s34, {(16*(n & 3) + 8*i) * 896}\nbuffer_load_dwordx4 v1, s[8:11], s38 offen lds", ('W', n)))
        return r
    def ldH(n):
        r = []
        for bt in range(2):
            pre = f"s_lshl_b32 s33, s86, 2\ns_add_u32 s33, s33, s24\ns_lshl_b32 s33, s33, 12\ns_add_u32 s35, s33, s40\ns_add_u32 s37, s33, s41\ns_add_u32 s86, s86, 1\ns_cmp_eq_u32 s86, 7\ns_cselect_b32 s86, 0, s86\n" if (n & 3) == 0 and bt == 0 else ''
            r.append((pre + f"buffer_load_dwordx4 {v(HR + (n % HN) * 8 + 4*bt, 4)}, v{V_ST}, s[20:23], s{35 + 2*bt} offen offset:{(n & 3) * 1024}", ('H', n)))
        return r
    A(last[0])
    wpre = [x for n in range(NS) for x in ldW(n)]
    k = 0
    for mi, m in enumerate(last[1:]):
        A(m)
        if mi in opt.get('wpre_last', (0, 2, 4, 6)): VM.issue(*wpre[k]); k += 1
    ST.mark(A)
    k2 = -2.0 * math.sqrt(2.0 / math.pi) * math.log2(math.e)
    C1, C2, ONE = 4, 6, 8
    A(f"""
    v_mov_b32 v{C1}, {f2u(k2)}
    v_mov_b32 v{C1+1}, {f2u(k2)}
    v_mov_b32 v{C2}, {f2u(k2*0.044715)}
    v_mov_b32 v{C2+1}, {f2u(k2*0.044715)}
    v_mov_b32 v{ONE}, 1.0
    v_mov_b32 v{ONE+1}, 1.0
    v_mov_b32 v52, 0
    buffer_load_dwordx2 v[50:51], v52, s[44:47], 0 offen sc1
    """)
    order = [(tt, j) for j in range(4) for tt in range(2)]
    for idx, (tt, j) in enumerate(order):
        a = ACC + (tt * 4 + j) * 16
        T = 16 + 16 * (idx & 1)
        O = T + 8
        for _ in range(opt.get('wpre_epi', 5)):
            if k < len(wpre): VM.issue(*wpre[k]); k += 1
        if usepk:
            for p in range(4): A(f"v_pk_mul_f32 {v(T+2*p,2)}, {v(a+2*p,2)}, {v(a+2*p,2)}")
            for p in range(4): A(f"v_pk_fma_f32 {v(T+2*p,2)}, {v(T+2*p,2)}, {v(C2,2)}, {v(C1,2)}")
            for p in range(4): A(f"v_pk_mul_f32 {v(T+2*p,2)}, {v(T+2*p,2)}, {v(a+2*p,2)}")
            for p in range(8): A(f"v_exp_f32 v{T+p}, v{T+p}")
            for p in range(4): A(f"v_pk_mul_f32 {v(a+2*p,2)}, {v(a+2*p,2)}, {v(a+8+2*p,2)}")
            for p in range(4): A(f"v_pk_add_f32 {v(T+2*p,2)}, {v(T+2*p,2)}, {v(ONE,2)}")
            for p in range(8): A(f"v_rcp_f32 v{T+p}, v{T+p}")
            A("s_nop 0")
            for p in range(4): A(f"v_pk_mul_f32 {v(a+2*p,2)}, {v(a+2*p,2)}, {v(T+2*p,2)}")
        else:
            for p in range(8): A(f"v_mul_f32 v{T+p}, v{a+p}, v{a+p}")
            for p in range(8): A(f"v_fma_f32 v{T+p}, v{T+p}, v{C2}, v{C1}")
            for p in range(8): A(f"v_mul_f32 v{T+p}, v{T+p}, v{a+p}")
            for p in range(8): A(f"v_exp_f32 v{T+p}, v{T+p}")
            for p in range(8): A(f"v_mul_f32 v{a+p}, v{a+p}, v{a+8+p}")
            for p in range(8): A(f"v_add_f32 v{T+p}, 1.0, v{T+p}")
            for p in range(8): A(f"v_rcp_f32 v{T+p}, v{T+p}")
            A("s_nop 0")
            for p in range(8): A(f"v_mul_f32 v{a+p}, v{a+p}, v{T+p}")
        for p in range(4): A(f"v_cvt_pk_bf16_f32 v{O+p}, v{a+2*p}, v{a+2*p+1}")
        A(f"s_add_u32 s38, s39, {(tt * 112 + j) * 1024}")
        A(f"buffer_store_dwordx4 {v(O,4)}, v{V_ST}, s[20:23], s38 offen sc1")
    ST.mark(A)
    if opt.get('f_only'):
        ST.finish(A, tsbase); A("s_endpgm"); return
    A(f"""
    s_lshl_b32 s40, s50, 1
    s_add_u32 s40, s40, s27
    s_xor_b32 s41, s40, 1
    s_mul_i32 s40, s40, {112*1024}
    s_mul_i32 s41, s41, {112*1024}
    v_bfe_u32 v14, v0, 4, 1               ; c16
    v_lshrrev_b32 v15, 5, v0              ; h
    v_bfe_u32 v16, v0, 2, 2               ; r
    v_and_b32 v17, 3, v0
    v_lshl_add_u32 v18, v15, 2, v16
    v_lshlrev_b32 v18, 7, v18
    v_lshl_add_u32 v18, v17, 3, v18
    v_and_b32 v19, 2, v16
    v_xor_b32 v19, v19, v14
    v_lshl_add_u32 v18, v19, 5, v18
    s_lshl_b32 s33, s32, 6
    v_xor_b32 v7, s33, v18
    v_add_u32 v7, s36, v7
    v_xor_b32 v8, 64, v7
    s_lshl_b32 s33, s27, 6
    v_xor_b32 v9, s33, v18
    s_lshl_b32 s33, s32, 12
    s_add_u32 s33, s33, {ATILE}
    v_add_u32 v9, s33, v9
    ; own flag address (v10) : FH[rb][wr][2cb+wc] ; poll address (v11): FH[rb][half][w + 4*min(lane,6)]
    s_lshl_b32 s33, s25, 1
    s_add_u32 s33, s33, s27
    s_lshl_b32 s33, s33, 5
    s_lshl_b32 s38, s26, 1
    s_add_u32 s33, s33, s38
    s_add_u32 s33, s33, s32
    s_lshl_b32 s33, s33, 3
    v_mov_b32 v10, s33
    v_min_u32 v11, 6, v0
    v_lshlrev_b32 v11, 5, v11
    s_lshl_b32 s33, s50, 5
    s_add_u32 s33, s33, s24
    s_lshl_b32 s33, s33, 3
    v_add_u32 v11, s33, v11
    ; late poll addresses: v3 = FA[ct] (64 lanes x 2 flags); v5 = FU[k>>1][4rt + 2(k&1)], k = min(lane, 13)
    v_min_u32 v5, 13, v0
    v_and_b32 v4, 1, v5
    v_lshrrev_b32 v5, 1, v5
    v_lshlrev_b32 v5, 10, v5
    v_lshl_add_u32 v5, v4, 4, v5
    s_lshl_b32 s33, s50, 5
    s_add_u32 s33, s33, {FL_U}
    v_add_u32 v5, s33, v5
    v_lshlrev_b32 v3, 4, v0
    s_lshl_b32 s33, s43, 10
    s_add_u32 s33, s33, {FL_A}
    v_add_u32 v3, s33, v3
    s_setprio {opt.get('prio_g', 0)}
    """)
    assert k == len(wpre)
    def wreg(n): return WH + 8 * (n if n < NW else (n - NW))
    def greads(n):
        f = wreg(n)
        return [f"ds_read_b64_tr_b16 {v(f + 4*bd + 2*p, 2)}, v{7+bd} offset:{slot_of(n) * 2048 + p * 1024}" for bd in range(2) for p in range(2)]
    A(f"s_waitcnt vmcnt({opt.get('stores_after', 5)})")
    for n in range(NS):
        for x in greads(n): A(x)
    A(f"""
    s_waitcnt vmcnt(0)
    v_readfirstlane_b32 s96, v50
    v_readfirstlane_b32 s97, v51
    s_nop 3
    s_cmp_lg_u32 s96, 0
    s_cbranch_scc1 FG_havetag
    """)
    get_nonce(A, 'FG', 50, 44, 96)
    A(f"""
FG_havetag:
    v_mov_b32 v50, s96
    v_mov_b32 v51, s97
    s_mov_b64 exec, 1
    buffer_store_dwordx2 v[50:51], v10, s[56:59], 0 offen sc1
    s_mov_b64 exec, -1
    s_waitcnt lgkmcnt(0)
    """)
    VM.drain()
    ST.mark(A)
    for n in range(NS, 2 * NS):
        for x in ldW(n): A(x[0])
    A("buffer_load_dwordx4 v[56:59], v5, s[56:59], 0 offen sc1\nbuffer_load_dwordx2 v[52:53], v11, s[56:59], 0 offen sc1\ns_waitcnt vmcnt(0)")
    if not opt.get('skip_s'): poll_flags4(A, 'FGU', 5, 56, 56, 96, 99, first_issued=True, sleep=8)
    A(f"v_and_b32 v4, 31, v0\nv_lshlrev_b32 v5, 5, v4\ns_lshl_b32 s33, s50, 1\ns_add_u32 s33, s33, s27\ns_lshl_b32 s33, s33, 10")
    srd(A, 16, 6, WS_GP_SZ, WS_GP)
    A("buffer_load_dwordx4 v[56:59], v5, s[16:19], s33 offen\nbuffer_load_dwordx3 v[60:62], v5, s[16:19], s33 offen offset:16")
    for n in range(NS, NW):
        for x in greads(n): A(x)
    A("s_waitcnt lgkmcnt(0)")
    NPRE = 2 * NS + (NW - NS)
    for n in range(2 * NS, NPRE):
        for x in ldW(n): VM.issue(*x)
    poll_flags(A, 'FGH', 11, 52, 56, 96, 99, first_issued=True, sleep=opt.get('sleep_h', 4))
    ST.mark(A)
    for n in range(HN - 1):
        for x in ldH(n): VM.issue(*x)
    srd(A, 12, 6, WS_AT_SZ, WS_AT)
    A(f"""
    s_waitcnt vmcnt({2*(HN-1) + 2*(NPRE - 2*NS)})
    v_add_f32 v56, v56, v57
    v_add_f32 v58, v58, v59
    v_add_f32 v60, v60, v61
    v_add_f32 v56, v56, v58
    v_add_f32 v60, v60, v62
    v_add_f32 v56, v56, v60
    v_cvt_pk_bf16_f32 v56, v56, v56
    v_lshlrev_b32 v56, 16, v56
    v_mul_f32 v56, {f2u(-math.log2(math.e))}, v56
    v_exp_f32 v6, v56
    s_nop 0
    v_add_f32 v6, 1.0, v6
    v_rcp_f32 v6, v6
    s_nop 0
    v_cvt_pk_bf16_f32 v6, v6, v6
    v_lshlrev_b32 v6, 16, v6
    """)
    LP, LC = opt.get('late_poll', 18), opt.get('late_check', 24)
    RD = 2
    for n in range(28):
        c = VM.count(('H', n), ('W', n + RD))
        A(f"s_waitcnt {'vmcnt(%d) ' % c if c is not None else ''}" + ("lgkmcnt(4)" if NW <= n < 27 else "lgkmcnt(0)" if n == 27 else ("" if c is not None else "lgkmcnt(15)")))
        if n == LC:
            c = VM.count('poll')
            if c is not None: A(f"s_waitcnt vmcnt({c})")
            if not opt.get('skip_s'): poll_flags4(A, 'FGA', 3, 248, 56, 96, 99, first_issued=True, sleep=opt.get('sleep_a', 8))
            VM.issue(f"""s_lshl_b32 s33, s43, 3
            s_add_u32 s33, s33, s24
            s_lshl_b32 s33, s33, 15
            s_lshl_b32 s38, s50, 7
            s_add_u32 s33, s33, s38
            s_lshl_b32 s39, s24, 10
            s_add_u32 m0, s39, {ATILE}
            s_add_u32 s38, s33, {32*4096}
            buffer_load_dwordx4 v2, s[12:15], s33 offen lds""", 'at')
            VM.issue(f"s_add_u32 m0, s39, {ATILE + 4096}\ns_nop 0\nbuffer_load_dwordx4 v2, s[12:15], s38 offen lds", 'at')
        rd = greads(n + RD) if NW <= n + RD < 28 else []
        ld = ldH(n + HN - 1) if n + HN - 1 < 28 else []
        m_ = n + RD - 2 + NS
        lw = ldW(m_) if NPRE <= m_ < 28 and n + RD - 2 >= NW else []
        f = wreg(n)
        mm = []
        for bd in range(2):
            for bt in range(2):
                a = GACC + (bd * 2 + bt) * 16
                mm.append(f"v_mfma_f32_32x32x16_bf16 {v(a,16)}, {v(f+4*bd,4)}, {v(HR+(n%HN)*8+4*bt,4)}, {'0' if n == 0 else v(a,16)}")
        ldq = ld + lw
        for i, m in enumerate(mm):
            A(m)
            if i < 2:
                for x in rd[2*i:2*i+2]: A(x)
            if i < len(ldq): VM.issue(*ldq[i])
        if n == LP: VM.issue(f"buffer_load_dwordx4 v[248:251], v3, s[56:59], 0 offen sc1", 'poll')
    ST.mark(A)
    A("s_barrier")
    for b in range(1, 4):
        A(f"s_xor_b32 s33, s24, {b}\ns_mul_i32 s33, s33, {3*4096}\nv_add_u32 v{12+b}, s33, v{V_ST}")
    A(f"""
    s_mul_i32 s33, s24, {3*4096}
    v_add_u32 v10, s33, v{V_ST}
    v_mov_b32 v11, 896
    v_lshrrev_b32 v5, 5, v0
    v_lshlrev_b32 v5, 4, v5
    v_mad_u32_u24 v11, v4, v11, v5
    """)
    for b in range(1, 4):
        for k in range(4):
            A(f"ds_write_b128 v{12+b}, {v(GACC + 16*b + 4*k, 4)} offset:{(b-1)*4096 + k*1024}")
    A(f"""
    s_lshl_b32 s33, s50, 1
    s_add_u32 s33, s33, s27
    s_mul_i32 s33, s33, {32*896}
    s_lshl_b32 s38, s43, 7
    s_add_u32 s33, s33, s38
    s_lshl_b32 s38, s32, 6
    s_add_u32 s33, s33, s38
    s_mov_b32 s39, 0xffff0000
    """)
    srd(A, 20, 52, SZ_U)
    AT_, RB, TM, PK = 80, 96, 144, 160
    A("s_waitcnt vmcnt(0) lgkmcnt(0)\ns_barrier")
    for j in range(4):
        A(f"ds_read_b64_tr_b16 {v(AT_ + 2*j, 2)}, v9 offset:{j*1024}")
    for b in range(3):
        for k in range(4):
            A(f"ds_read_b128 {v(RB + 16*b + 4*k, 4)}, v10 offset:{b*4096 + k*1024}")
    A("s_waitcnt lgkmcnt(12)")
    for k in range(16):
        src = AT_ + k // 2
        if k & 1: A(f"v_and_b32 v{TM+k}, s39, v{src}")
        else: A(f"v_lshlrev_b32 v{TM+k}, 16, v{src}")
    for b in range(3):
        A(f"s_waitcnt lgkmcnt({4*(2-b)})")
        for k in range(16): A(f"v_add_f32 v{GACC+k}, v{GACC+k}, v{RB+16*b+k}")
    for k in range(16): A(f"v_sub_f32 v{TM+k}, v{TM+k}, v{GACC+k}")
    for k in range(16): A(f"v_fmac_f32 v{GACC+k}, v6, v{TM+k}")
    for k in range(8): A(f"v_cvt_pk_bf16_f32 v{PK+k}, v{GACC+2*k}, v{GACC+1+2*k}")
    A("s_nop 1")
    for jj in range(2):
        A(f"v_permlane32_swap_b32 v{PK+4*jj}, v{PK+2+4*jj}\nv_permlane32_swap_b32 v{PK+1+4*jj}, v{PK+3+4*jj}")
    for jj in range(2):
        A(f"buffer_store_dwordx4 {v(PK+4*jj,4)}, v11, s[20:23], s33 offen offset:{32*jj}")
    ST.finish(A, tsbase)
    A("s_endpgm")
```

```python
from common2 import *
from sched import schedule
import math
WT = 49664 // 4
FINE = 32
CMP = 4 * WT; CMPSZ = 41 * 80
UB = [CMP + 4 * CMPSZ, CMP + 4 * CMPSZ + 4608]
CP = 4160; CH = 4 * CP
RED = 33280
L2E = math.log2(math.e)
assert UB[1] + 4608 <= 81920

class Lds:
    def __init__(self, A): self.A = A; self.q = []
    def issue(self, ins, tag): self.A(ins); self.q.append(tag)
    def need(self, *tags):
        idx = max((i for i, t in enumerate(self.q) if t in tags), default=-1)
        if idx < 0: return
        n = len(self.q) - 1 - idx
        self.A(f"s_waitcnt lgkmcnt({min(n, 15)})")
        self.q = self.q[idx + 1:] if n <= 15 else self.q[len(self.q) - 15:]

def role_s(A, ST, opt, tsbase=0):
    if opt.get('skip_s'): A('s_endpgm')
    P = 32
    early = opt.get('pf', 0) and opt.get('pf_early', 0)
    A(f"""
    s_load_dwordx8 s[40:47], s[0:1], {KA['Are']}
    s_load_dwordx8 s[48:55], s[0:1], {KA['Cre']}
    s_load_dwordx2 s[4:5], s[0:1], {KA['u']}
    s_load_dwordx2 s[28:29], s[0:1], {KA['gw']}
    s_load_dwordx4 s[56:59], s[0:1], {KA['dbg']}
    s_load_dwordx4 s[16:19], s[0:1], {KA['Wg']}
    s_setprio {opt.get('prio_s0', 3)}
    v_lshrrev_b32 v13, 6, v0
    v_lshlrev_b32 v1, 2, v0
    v_readfirstlane_b32 s24, v13
    s_lshl_b32 s33, s25, 10               ; d0*512
    s_lshl_b32 s34, s25, 2                ; d0*2
    v_and_b32 v12, 63, v0                 ; lane
    v_lshrrev_b32 v14, 3, v12
    v_bfe_u32 v15, v12, 4, 1
    v_lshlrev_b32 v15, 1, v15
    v_and_b32 v3, 7, v12
    v_xor_b32 v3, v3, v15
    v_lshlrev_b32 v3, 4, v3
    v_mov_b32 v15, 896
    v_mad_u32_u24 v3, v14, v15, v3
    v_xor_b32 v4, 64, v3                  ; rows 8-15
    s_lshl_b32 s38, s26, 2
    s_add_u32 s38, s38, s24
    s_mul_i32 s38, s38, {16*896}
    s_lshl_b32 s39, s27, 7
    s_add_u32 s31, s38, s39               ; X soffset
    s_lshr_b32 s35, s24, 1
    s_mul_i32 s35, s35, {UB[1]-UB[0]}
    s_and_b32 s39, s24, 1
    s_lshl_b32 s39, s39, 11
    s_add_u32 s35, s35, s39
    s_add_u32 s35, s35, {UB[0]+512}
    v_and_b32 v5, 3, v12
    v_lshlrev_b32 v6, 5, v5
    v_mov_b32 v7, 0
    """)
    if opt.get('pf', 0) or opt.get('s_pfonly'): A(f"""
    s_and_b32 s85, s87, 3                 ; rbl
    s_lshr_b32 s86, s87, 2                ; cbl
    v_lshrrev_b32 v6, 4, v12
    v_bfe_u32 v7, v12, 1, 3
    v_lshl_add_u32 v6, v6, 5, v7
    s_lshl_b32 s38, s85, 3
    v_add_u32 v6, s38, v6
    v_mul_u32_u24 v6, 3584, v6
    v_and_b32 v7, 1, v12
    v_lshl_add_u32 v6, v7, 7, v6
    s_and_b32 s38, s3, 1
    s_mul_i32 s38, s38, 7
    s_add_u32 s38, s38, s86
    s_lshl_b32 s38, s38, 8
    v_add_u32 v248, s38, v6
    v_and_b32 v6, 31, v12
    v_min_u32 v6, 18, v6
    s_mul_i32 s38, s86, 19
    v_add_u32 v6, s38, v6
    v_min_u32 v6, 127, v6
    s_lshr_b32 s38, s3, 1
    s_lshl_b32 s38, s38, 2
    s_add_u32 s38, s38, s85
    s_lshl_b32 s38, s38, 7
    v_add_u32 v6, s38, v6
    v_mul_u32_u24 v6, 896, v6
    v_lshrrev_b32 v7, 5, v12
    v_lshl_add_u32 v249, v7, 7, v6
    """)
    def touch(step):
        if not opt.get('pf', 0): return
        lab = f"S_t{step}"
        if step == 0:
            plan = [(44, 248, 4*32*3584), (48, 248, 4*32*3584), (8, 249, 256), (8, 249, 512)]
        elif step == 1:
            plan = [(44, 248, 8*32*3584), (48, 248, 8*32*3584), (8, 249, 768), (44, 248, 12*32*3584)]
        else:
            plan = [None, None, None, (48, 248, 12*32*3584)]
        for w, pl in enumerate(plan):
            if pl is None: continue
            A(f"s_cmp_lg_u32 s24, {w}\ns_cbranch_scc1 {lab}_{w}\ns_mov_b32 s38, {pl[2]}\nbuffer_load_dword v250, v{pl[1]}, s[{pl[0]}:{pl[0]+3}], s38 offen\n{lab}_{w}:")
    A(f"""
    v_and_b32 v5, 3, v12
    v_lshlrev_b32 v6, 5, v5
    v_mov_b32 v7, 0
    s_mov_b32 s10, {SZ_P}
    s_mov_b32 s11, 0x00020000
    s_waitcnt lgkmcnt(0)
    """)
    if opt.get('s_pfonly'):
        srd(A, 8, 4, SZ_U); srd(A, 44, 16, SZ_W); srd(A, 48, 18, SZ_W)
        first, gap = opt['s_pfonly']
        A("s_cmp_eq_u32 s24, 3\ns_cbranch_scc1 S_pfend\ns_mov_b32 exec_hi, 0")
        for b in range(first, 7):
            for w, (sr, vr, so) in enumerate([(44, 248, b*64*3584), (48, 248, b*64*3584), (8, 249, b*128)]):
                A(f"s_cmp_lg_u32 s24, {w}\ns_cbranch_scc1 S_pf{b}_{w}\ns_mov_b32 s38, {so}\nbuffer_load_dword v250, v{vr}, s[{sr}:{sr+3}], s38 offen\nS_pf{b}_{w}:")
            for _ in range(gap // 64 // 15): A("s_sleep 15")
            if (gap // 64) % 15: A(f"s_sleep {(gap // 64) % 15}")
        A("S_pfend:\ns_endpgm")
        return
    ST.mark(A)
    A(f"s_mov_b32 s12, s52\ns_mov_b32 s13, s53\ns_mov_b32 s14, 896\ns_mov_b32 s15, 0x00020000\nbuffer_load_dword v26, v7, s[12:15], s34 offen")
    A(f"s_mov_b32 s12, s54\ns_mov_b32 s13, s55\nbuffer_load_dword v27, v7, s[12:15], s34 offen")
    for k in range(6):
        A(f"s_mov_b32 s8, s{40+2*k}\ns_mov_b32 s9, s{41+2*k}")
        A(f"buffer_load_dword v{P+6+k}, v1, s[8:11], s33 offen")
    srd(A, 8, 4, SZ_U); srd(A, 20, 28, 896); srd(A, 60, 56, 256)
    A(f"""
    s_mov_b32 m0, s35
    s_add_u32 s39, s31, {8*896}
    buffer_load_dwordx4 v3, s[8:11], s31 offen lds
    s_add_u32 m0, s35, 1024
    s_nop 0
    buffer_load_dwordx4 v4, s[8:11], s39 offen lds
    s_lshl_b32 s39, s27, 7
    buffer_load_dwordx4 v[160:163], v6, s[20:23], s39 offen
    buffer_load_dwordx4 v[164:167], v6, s[20:23], s39 offen offset:16
    buffer_load_dwordx2 v[30:31], v7, s[60:63], 0 offen sc1
    s_mov_b32 s6, s58
    s_mov_b32 s7, s59
    """)
    srd(A, 44, 16, SZ_W); srd(A, 48, 18, SZ_W)
    srd(A, 12, 6, WS_U2_SZ, WS_U2); srd(A, 16, 6, WS_AT_SZ, WS_AT); srd(A, 20, 6, WS_GP_SZ, WS_GP); srd(A, 56, 6, WS_FL_SZ, WS_FL)
    if early: touch(0)
    ST.mark(A)
    A(f"""
    v_mov_b32 v4, 0
    v_mov_b32 v6, {CMP + 64}
    ds_write_b32 v6, v4
    ds_write_b32 v6, v4 offset:{CMPSZ}
    ds_write_b32 v6, v4 offset:{2*CMPSZ}
    ds_write_b32 v6, v4 offset:{3*CMPSZ}
    v_and_b32 v6, 127, v0
    v_lshlrev_b32 v6, 2, v6
    v_lshrrev_b32 v7, 7, v0
    v_mov_b32 v14, {UB[1]-UB[0]}
    v_mad_u32_u24 v6, v7, v14, v6
    v_add_u32 v6, {UB[0]}, v6
    ds_write_b32 v6, v4
    """)
    DA, GA = 28, 16
    A(f"""
    s_setprio {opt.get('prio_s', 1)}
    v_and_b32 v6, 15, v12
    v_lshrrev_b32 v7, 4, v12
    v_mul_u32_u24 v8, 320, v7
    v_lshl_add_u32 v8, v6, 2, v8
    s_mul_i32 s39, s24, {CMPSZ}
    s_add_u32 s39, s39, {CMP}
    v_add_u32 v{DA}, s39, v8
    v_mul_u32_u24 v8, 288, v6
    v_lshl_add_u32 v8, v7, 4, v8
    s_mul_i32 s87, s24, 9216
    v_add_u32 v25, s87, v8
    """)
    A(f"v_lshlrev_b32 v6, 3, v0\nv_sub_u32 v6, 2047, v6\nv_cvt_f32_u32 v6, v6")
    T0 = 48
    for e in range(10): A(f"v_add_f32 v{T0+e}, {f2u(-1.0*e)}, v6")
    for e in range(0, 10, 2): A(f"v_cvt_pk_bf16_f32 v{T0+10+e//2}, v{T0+e}, v{T0+1+e}")
    for e in range(9):
        A(f"v_and_b32 v{T0+e}, 0xffff0000, v{T0+10+e//2}" if e & 1 else f"v_lshlrev_b32 v{T0+e}, 16, v{T0+10+e//2}")
    E_, V_ = 70, 80
    for e in range(9): A(f"v_frexp_exp_i32_f32 v{E_+e}, v{T0+e}\nv_cvt_u32_f32 v{V_+e}, v{T0+e}")
    for e in range(9): A(f"v_subrev_u32 v{E_+e}, 8, v{E_+e}\nv_lshrrev_b32 v{T0+e}, 7, v{V_+e}\nv_and_b32 v{GA+e}, 7, v{V_+e}")
    for e in range(9): A(f"v_max_i32 v{E_+e}, 0, v{E_+e}\nv_lshl_or_b32 v{T0+e}, v{T0+e}, 3, v{GA+e}\nv_bfe_u32 v{V_+e}, v{V_+e}, 3, 4")
    for e in range(9): A(f"v_lshrrev_b32 v{T0+e}, v{E_+e}, v{T0+e}\nv_lshlrev_b32 v{V_+e}, 2, v{V_+e}")
    for e in range(9): A(f"v_lshl_add_u32 v{T0+e}, v{E_+e}, 3, v{T0+e}\nv_add_u32 v{V_+e}, {CMP}, v{V_+e}")
    A("v_mov_b32 v7, 80")
    for e in range(9): A(f"v_mad_u32_u24 v{GA+e}, v{T0+e}, v7, v{V_+e}")
    A(f"v_mov_b32 v7, {CMP + 64}\nv_cmp_eq_u32 vcc, 255, v0\ns_nop 1\nv_cndmask_b32 v{GA+8}, v{GA+8}, v7, vcc")
    A(f"""
    v_lshrrev_b32 v5, 4, v12              ; g
    v_bfe_u32 v6, v12, 2, 2               ; r
    v_and_b32 v7, 3, v12                  ; c
    v_and_b32 v8, 1, v5                   ; tb
    v_lshl_add_u32 v9, v8, 3, v6
    v_lshlrev_b32 v9, 7, v9
    v_lshl_add_u32 v9, v7, 3, v9
    v_add_u32 v9, s35, v9
    v_lshrrev_b32 v10, 1, v6
    v_lshl_or_b32 v10, v8, 1, v10
    v_lshrrev_b32 v11, 1, v5
    v_xor_b32 v10, v10, v11
    v_lshl_add_u32 v13, v10, 5, v9
    v_xor_b32 v10, 2, v10
    v_lshl_add_u32 v14, v10, 5, v9
    v_lshl_add_u32 v10, v11, 2, v6
    v_lshlrev_b32 v10, 14, v10
    v_lshl_add_u32 v10, v8, 6, v10
    v_lshl_add_u32 v15, v7, 4, v10
    v_lshrrev_b32 v5, 2, v12
    v_bfe_u32 v6, v5, 1, 1
    v_bfe_u32 v8, v5, 3, 1
    v_lshl_or_b32 v6, v8, 1, v6
    v_xor_b32 v6, v6, v7
    v_lshlrev_b32 v6, 5, v6
    v_lshl_add_u32 v6, v5, 7, v6
    v_add_u32 v6, s35, v6
    v_lshlrev_b32 v5, 5, v5
    s_lshl_b32 s38, s27, 18
    s_lshl_b32 s39, s26, 2
    s_add_u32 s39, s39, s24
    s_lshl_b32 s32, s39, 7
    s_add_u32 s30, s38, s32               ; U2 soffset
    s_lshl_b32 s39, s39, 9
    s_lshl_b32 s32, s27, 2
    s_add_u32 s31, s39, s32
    s_add_u32 s32, s30, {8*16384}
    """)
    def tpart():
        A(f"""
        ds_read_b64_tr_b16 v[168:169], v13
        ds_read_b64_tr_b16 v[170:171], v13 offset:512
        ds_read_b64_tr_b16 v[172:173], v14
        ds_read_b64_tr_b16 v[174:175], v14 offset:512
        ds_read_b128 v[176:179], v6
        ds_read_b128 v[180:183], v6 offset:16
        v_mov_b32 v8, 0
        s_waitcnt lgkmcnt(2)
        {'' if opt.get('no_tstore') else 'buffer_store_dwordx4 v[168:171], v15, s[12:15], s30 offen ' + opt.get('tsc', 'sc1')}
        {'' if opt.get('no_tstore') else 'buffer_store_dwordx4 v[172:175], v15, s[12:15], s32 offen ' + opt.get('tsc', 'sc1')}
        s_waitcnt lgkmcnt(0)
        """)
        for i in range(8): A(f"v_dot2_f32_bf16 v8, v{176+i}, v{160+i}, v8")
        A(f"""
        s_nop 2
        v_add_f32_dpp v8, v8, v8 quad_perm:[1,0,3,2] row_mask:0xf bank_mask:0xf
        s_nop 1
        v_add_f32_dpp v8, v8, v8 quad_perm:[2,3,0,1] row_mask:0xf bank_mask:0xf
        s_mov_b32 exec_lo, 0x11111111
        s_mov_b32 exec_hi, 0x11111111
        {'' if opt.get('no_tstore') or opt.get('no_gp') else 'buffer_store_dword v8, v5, s[20:23], s31 offen ' + opt.get('tsc', 'sc1')}
        s_mov_b64 exec, -1
        """)
    B = Asm()
    tmp = [60, 61, 62, 63]
    pk = [64, 65, 66, 67]
    cnt = [0]
    neg = {}
    def cmul(z, x, y):
        if y in neg:
            B(f"v_mul_f32 v{z}, v{x}, v{y}\nv_mul_f32 v{z+1}, v{x}, v{y+1}\nv_fmac_f32 v{z}, v{x+1}, v{neg[y]}\nv_fmac_f32 v{z+1}, v{x+1}, v{y}")
        elif x == y:
            t = tmp[cnt[0] & 1]
            B(f"v_mul_f32 v{z}, v{x}, v{x}\nv_add_f32 v{t}, v{x}, v{x}\nv_fma_f32 v{z}, -v{x+1}, v{x+1}, v{z}\nv_mul_f32 v{z+1}, v{t}, v{x+1}")
        else:
            B(f"v_mul_f32 v{z}, v{x}, v{y}\nv_mul_f32 v{z+1}, v{x}, v{y+1}\nv_fma_f32 v{z}, -v{x+1}, v{y+1}, v{z}\nv_fmac_f32 v{z+1}, v{x+1}, v{y}")
    PBK, PB, OUT, BF, KD = [152, 168], 184, 200, 216, 232
    bank = [0]
    useL = opt.get('tr', 'dpp') == 'lds'
    def wr(row): B(f"ds_write_addtid_b32 v{PBK[bank[0]] + row} offset:{bank[0]*4608 + row*288}")
    def put(row, z, ng=False):
        cnt[0] += 1
        B(f"v_cvt_pk_bf16_f32 v{PBK[bank[0]] + row}, v{z}, {'-' if ng else ''}v{z+1}")
        if useL: wr(row)
    def transpose(dst, nrows=16):
        if useL:
            for ks in range(4): B(f"ds_read_b128 {v(dst+4*ks,4)}, v25 offset:{bank[0]*4608 + ks*64}")
            bank[0] ^= 1
            return
        PA = PBK[bank[0]]; bank[0] ^= 1
        cur = [PA + i for i in range(16)]
        for d, mask in ((8, 0x00ff00ff), (4, 0x0f0f0f0f), (2, 0x33333333), (1, 0x55555555)):
            if d == 1: new = [dst + i for i in range(16)]
            else:
                free = [r for r in list(range(PA, PA + 16)) + list(range(PB, PB + 16)) if r not in cur]
                new = free[:16]
            cx = {8: 'row_ror:8', 4: 'row_ror:4', 2: 'quad_perm:[2,3,0,1]', 1: 'quad_perm:[1,0,3,2]'}[d]
            cy = {8: 'row_ror:8', 4: 'row_ror:12', 2: 'quad_perm:[2,3,0,1]', 1: 'quad_perm:[1,0,3,2]'}[d]
            B(f"s_mov_b32 vcc_lo, {mask:#x}\ns_mov_b32 vcc_hi, {mask:#x}")
            lo = [i for i in range(16) if not i & d]
            for i in lo:
                if d == 8 and i + 8 >= nrows: new[i] = cur[i]
                else: B(f"v_cndmask_b32_dpp v{new[i]}, v{cur[i+d]}, v{cur[i]}, vcc {cx} row_mask:0xf bank_mask:0xf")
            B("s_not_b64 vcc, vcc")
            for i in lo:
                if d == 8 and i + 8 >= nrows: B(f"v_mov_b32_dpp v{new[i+d]}, v{cur[i]} {cy} row_mask:0xf bank_mask:0xf")
                else: B(f"v_cndmask_b32_dpp v{new[i+d]}, v{cur[i]}, v{cur[i+d]}, vcc {cy} row_mask:0xf bank_mask:0xf")
            cur = new
    def kmfma(t, c):
        for ks in range(4):
            B(f"v_mfma_f32_16x16x32_bf16 {v(KD+4*t,4)}, {v(OUT+4*ks,4)}, {v(BF+4*ks,4)}, {'0' if ks == 0 and c == 0 else v(KD+4*t,4)}")
    def direct(z, l, ra, rc):
        if l == 1: B(f"v_exp_f32 v{tmp[0]}, v{ra}\nv_rndne_f32 v{tmp[1]}, v{rc}\nv_sub_f32 v{tmp[1]}, v{rc}, v{tmp[1]}")
        else: B(f"v_mul_f32 v{tmp[0]}, {f2u(float(l))}, v{ra}\nv_mul_f32 v{tmp[2]}, {f2u(float(l))}, v{rc}\nv_exp_f32 v{tmp[0]}, v{tmp[0]}\nv_rndne_f32 v{tmp[1]}, v{tmp[2]}\nv_sub_f32 v{tmp[1]}, v{tmp[2]}, v{tmp[1]}")
        B(f"v_cos_f32 v{z}, v{tmp[1]}\nv_sin_f32 v{z+1}, v{tmp[1]}\nv_mul_f32 v{z}, v{z}, v{tmp[0]}\nv_mul_f32 v{z+1}, v{z+1}, v{tmp[0]}\nv_sub_f32 v{neg[z]}, 0, v{z+1}")
    rowof = {}
    for r in range(8): rowof[r] = r; rowof[128 + r] = 8 + r
    for r in range(4): rowof[256 + 2*r] = r; rowof[384 + 2*r] = 4 + r
    for k, l in enumerate([512, 516, 640, 644, 768, 772, 896, 900]): rowof[l] = 8 + k
    for r in range(9): rowof[1024 + 128*r] = r
    reg = {}
    nxt = [70]
    def R(l):
        if l not in reg: reg[l] = nxt[0]; nxt[0] += 2
        return reg[l]
    for l, n in ((8, 47), (1, 58), (128, 59)): neg[R(l)] = n
    def tables(c):
        p = P
        dt, ra, rc = 44, 45, 46
        if c == 0:
            B(f"s_lshl_b32 s38, s36, 16\ns_and_b32 s39, s36, 0xffff0000\ns_cmp_ge_u32 s24, 2\ns_cselect_b32 s38, s39, s38")
            B(f"v_mov_b32 v{dt}, {f2u(L2E)}\nv_mul_f32 v{dt}, s38, v{dt}\nv_exp_f32 v{dt}, v{dt}")
        for k in range(6): B(f"v_and_b32 v{p+k}, 0xffff0000, v{p+6+k}" if c else f"v_lshlrev_b32 v{p+k}, 16, v{p+6+k}")
        if c == 0: B(f"v_cvt_pk_bf16_f32 v{dt}, v{dt}, v{dt}\nv_lshlrev_b32 v{dt}, 16, v{dt}")
        for k in range(4): B(f"v_mul_f32 v{p+k}, v{dt}, v{p+k}")
        B(f"v_mul_f32 v{ra}, {f2u(L2E)}, v{p}\nv_mul_f32 v{rc}, {f2u(1/(2*math.pi))}, v{p+1}")
        W = 68
        cmul(W, p + 4, p + 2)
        direct(R(8), 8, ra, rc); direct(R(1), 1, ra, rc); direct(R(128), 128, ra, rc)
        F = [W, 56]
        put(0, W, True)
        early_steps = [(l, l - 1, 1) for l in range(2, 8)] + [(128 + l, l, 128) for l in range(1, 8)]
        for fi in range(1, 16):
            cmul(F[fi & 1], F[(fi - 1) & 1], R(8)); put(fi, F[fi & 1], True)
            if fi - 1 < len(early_steps):
                z, x, y = early_steps[fi - 1]; cmul(R(z), R(x), R(y))
        transpose(BF)
        B(f"v_mov_b32 v{PBK[bank[0]]}, 0x3f80")
        if useL: wr(0)
        for l in list(range(1, 8)) + list(range(128, 136)): put(rowof[l], R(l))
        s1 = [(256 + 2*l, 128 + l, 128 + l) for l in range(4)]
        for z, x, y in s1[:2]: cmul(R(z), R(x), R(y))
        transpose(OUT)
        for z, x, y in s1[2:]: cmul(R(z), R(x), R(y))
        kmfma(0, c)
        s1 += [(384 + l, 256 + l, 128) for l in (0, 2, 4, 6)] + [(512, 256, 256), (516, 258, 258), (768, 384, 384), (772, 386, 386), (640, 512, 128), (644, 516, 128), (896, 768, 128), (900, 772, 128)]
        for z, x, y in s1[:4]: put(rowof[z], R(z))
        for z, x, y in s1[4:]: cmul(R(z), R(x), R(y)); put(rowof[z], R(z))
        s2 = [(1024, 512, 512), (1280, 640, 640), (1536, 768, 768), (1792, 896, 896), (1152, 1024, 128), (1408, 1280, 128), (1664, 1536, 128), (1920, 1792, 128), (2048, 1024, 1024)]
        z, x, y = s2[0]; cmul(R(z), R(x), R(y))
        transpose(OUT)
        z, x, y = s2[1]; cmul(R(z), R(x), R(y))
        kmfma(1, c)
        for z, x, y in s2[:2]: put(rowof[z], R(z))
        for z, x, y in s2[2:]: cmul(R(z), R(x), R(y)); put(rowof[z], R(z))
        transpose(OUT, 9)
        kmfma(2, c)
    def kput():
        for t in range(3):
            for r in range(4):
                if t == 2 and r == 0: A("s_mov_b32 exec_hi, 0xffff")
                if t == 2 and r == 1: A("s_mov_b32 exec_hi, 0")
                A(f"ds_write_b32 v{DA}, v{KD+4*t+r} offset:{t*1280 + r*80}")
        A("s_mov_b64 exec, -1")
    def publish_u():
        A(f"""
        s_waitcnt vmcnt({1 if opt.get('pf', 0) else 0})
        s_cmp_lg_u32 s96, 0
        s_cbranch_scc1 S_havetag
        """)
        get_nonce(A, 'SA', 8, 60, 96)
        A(f"""
S_havetag:
        s_lshl_b32 s38, s27, 5
        s_add_u32 s38, s38, s26
        s_lshl_b32 s38, s38, 2
        s_add_u32 s38, s38, s24
        s_lshl_b32 s38, s38, 3
        s_add_u32 s38, s38, {FL_U}
        v_mov_b32 v10, s38
        v_mov_b32 v8, s96
        v_mov_b32 v9, s97
        s_mov_b64 exec, 1
        buffer_store_dwordx2 v[8:9], v10, s[56:59], 0 offen sc1
        s_mov_b64 exec, -1
        """)
    ST.mark(A)
    A(f"s_waitcnt vmcnt({5 + (1 if early else 0)}) lgkmcnt(0)\nv_readfirstlane_b32 s36, v26\nv_readfirstlane_b32 s37, v27")
    ST.mark(A)
    def t_hook():
        A(f"s_waitcnt vmcnt({1 if early else 0})\nv_readfirstlane_b32 s96, v30\nv_readfirstlane_b32 s97, v31")
        tpart()
        touch(1 if early else 0)
        A("s_mov_b32 m0, s87")
    def pollissue():
        A(f"""
        v_lshlrev_b32 v6, 4, v12
        s_lshr_b32 s38, s25, 5
        s_lshl_b32 s38, s38, 10
        s_add_u32 s38, s38, {FL_U}
        v_add_u32 v6, s38, v6
        buffer_load_dwordx4 v[8:11], v6, s[56:59], 0 offen sc1
        """)
    def udma():
        A("s_waitcnt vmcnt(0)")
        poll_flags4(A, 'SU', 6, 8, 56, 96, 99, first_issued=True)
        A(f"""
        s_barrier
        v_lshlrev_b32 v6, 6, v12
        s_lshr_b32 s38, s25, 1
        s_lshl_b32 s38, s38, 14
        s_and_b32 s39, s25, 1
        s_lshl_b32 s39, s39, 5
        s_add_u32 s38, s38, s39
        s_lshl_b32 s39, s24, 12
        s_add_u32 s38, s38, s39
        s_lshl_b32 s39, s24, 10
        s_add_u32 m0, s39, {UB[0] + 512}
        s_nop 0
        buffer_load_dwordx4 v6, s[12:15], s38 offen lds
        s_add_u32 m0, s39, {UB[1] + 512}
        s_add_u32 s38, s38, 16
        buffer_load_dwordx4 v6, s[12:15], s38 offen lds
        s_mov_b32 m0, s87
        """)
    tables(0); n0 = len(B.l); tables(1)
    if useL:
        raw = [x.strip() for x in B.l]
        seq = []; pend = []; since = 0; age = 0
        for x in raw:
            if x.startswith('v_mfma'):
                pend.append(x); age = 0; continue
            if pend and (age >= 14 or x.startswith('ds_read')):
                seq.append(f"s_waitcnt lgkmcnt({since})"); seq += pend; pend = []
            seq.append(x); age += 1
            if x.startswith('ds_read'): since = 0
            elif x.startswith('ds_write'): since += 1
            if x.split()[0] in ('v_sin_f32',): seq.append('s_nop 0')
        seq.append(f"s_waitcnt lgkmcnt({since})"); seq += pend
    else:
        seq = schedule(B.l, filler='v_mov_b32 v29, v29')
    print('S table ops', len(B.l), 'scheduled', len(seq), 'nops', seq.count('s_nop 0'), 'fillers', seq.count('v_mov_b32 v29, v29'))
    def keepvcc(f):
        def g():
            A("s_mov_b64 s[28:29], vcc"); f(); A("s_mov_b64 vcc, s[28:29]")
        return g
    firstput = next(i for i, x in enumerate(seq) if 'v_cvt_pk_bf16_f32 v152' in x)
    hk = {firstput: t_hook, int(len(seq) * opt.get('pub_at', 0.2)): publish_u, len(seq) // 2: lambda: ST.mark(A),
          int(len(seq) * opt.get('poll_at', 0.6)): pollissue, int(len(seq) * opt.get('udma_at', 0.75)): keepvcc(udma)}
    for i, x in enumerate(seq):
        if i in hk: hk[i]()
        A(x)
    ST.mark(A)
    A(f"""
    v_and_b32 v6, 15, v12                 ; rho / n
    v_lshrrev_b32 v7, 4, v12              ; kg
    s_lshr_b32 s32, s24, 1                ; ch
    s_and_b32 s27, s24, 1                 ; par
    v_not_b32 v8, v6
    v_and_b32 v8, 3, v8
    v_mul_u32_u24 v8, {CP}, v8
    v_and_b32 v9, 12, v6
    v_lshlrev_b32 v9, 1, v9
    v_sub_u32 v8, v8, v9
    v_lshl_add_u32 v8, v7, 4, v8
    s_mul_i32 s38, s32, {CH}
    s_lshl_b32 s39, s27, 6
    s_sub_u32 s38, s38, s39
    s_add_u32 s38, s38, {2*2044 - 32*127 + 64}
    v_add_u32 v1, s38, v8                 ; vA
    """)
    kput()
    A(f"""
    v_lshlrev_b32 v8, 5, v6
    v_lshl_add_u32 v9, v7, 4, v8
    s_mul_i32 s38, s32, {UB[1]-UB[0]}
    s_add_u32 s38, s38, {UB[0] + 512}
    s_sub_u32 s39, s38, s39
    s_sub_u32 s39, s39, {32*13}
    v_add_u32 v2, s39, v9                 ; vB
    v_lshl_add_u32 v3, v7, 3, v8
    v_add_u32 v4, s38, v3
    v_and_b32 v3, 2, v7
    v_lshl_add_u32 v3, v3, 3, v8
    v_and_b32 v5, 1, v7
    v_lshl_add_u32 v3, v5, 10, v3
    v_lshlrev_b32 v5, 4, v12
    s_lshl_b32 s38, s24, 12
    s_add_u32 s38, s38, {RED}
    v_add_u32 v14, s38, v5
    s_xor_b32 s38, s24, 1
    s_lshl_b32 s38, s38, 12
    s_add_u32 s38, s38, {RED}
    v_add_u32 v15, s38, v5
    s_lshl_b32 s35, s37, 16
    s_and_b32 s38, s37, 0xffff0000
    s_cmp_eq_u32 s32, 1
    s_cselect_b32 s35, s38, s35           ; Dskip (f32)
    s_lshl_b32 s33, s25, 1
    s_add_u32 s33, s33, s32
    s_lshl_b32 s33, s33, 12               ; d*4096
    v_lshlrev_b32 v6, 4, v0
    v_add_u32 v7, {2*CP - 4}, v6
    v_add_u32 v8, {3*CP - 4}, v6
    v_add_u32 v9, {CH + 2*CP - 4}, v6
    v_add_u32 v10, {CH + 3*CP - 4}, v6
    s_waitcnt lgkmcnt(0)
    s_barrier
    """)
    ST.mark(A)
    E = [64, 80]
    for c in range(2):
        for e in range(9):
            A(f"ds_read_b32 v{100 + 20*c + e}, v{GA+e} offset:{2*c*CMPSZ}\nds_read_b32 v{110 + 20*c + e}, v{GA+e} offset:{(2*c+1)*CMPSZ}")
    def copies(c, e, o):
        A(f"""ds_write_b128 v6, {v(e,4)} offset:{c*CH}
        ds_write_b128 v6, {v(o,4)} offset:{c*CH + CP}
        ds_write2_b32 v{7+2*c}, v{e}, v{e+1} offset0:0 offset1:1
        ds_write2_b32 v{7+2*c}, v{e+2}, v{e+3} offset0:2 offset1:3
        ds_write2_b32 v{8+2*c}, v{o}, v{o+1} offset0:0 offset1:1
        ds_write2_b32 v{8+2*c}, v{o+2}, v{o+3} offset0:2 offset1:3""")
    for c in range(2):
        A(f"s_waitcnt lgkmcnt({15 if c == 0 else 6})")
        b = 100 + 20*c
        for e in range(9): A(f"v_add_f32 v{b+e}, v{b+e}, v{b+10+e}")
        for j in range(4): A(f"v_cvt_pk_bf16_f32 v{E[c]+j}, v{b+2*j}, v{b+2*j+1}\nv_cvt_pk_bf16_f32 v{E[c]+8+j}, v{b+2*j+1}, v{b+2*j+2}")
        copies(c, E[c], E[c] + 8)
    A(f"s_cmp_lg_u32 s24, 0\ns_cbranch_scc1 S_nozero\ns_mov_b64 exec, 3")
    for k in range(4): A(f"v_mov_b32 v{96+k}, 0")
    for k in range(6, 11): A(f"v_add_u32 v{k}, 4096, v{k}")
    for c in range(2): copies(c, 96, 96)
    A("s_mov_b64 exec, -1\nS_nozero:\ns_waitcnt vmcnt(0) lgkmcnt(0)\ns_barrier")
    ST.mark(A)
    ACC, BR, AR = 16, [64, 96], 48
    L = Lds(A)
    def rdB(e, j): L.issue(f"ds_read_b128 {v(BR[e&1] + 4*j, 4)}, v2 offset:{512*j + 32*(13 - (1 + 4*e))}", ('B', e, j))
    def rdA(n):
        e, q = divmod(n, 8)
        o = 32 * (127 - 16*q - (1 + 4*e)) - 64; r = AR + 4 * (n % 4)
        L.issue(f"ds_read_b64 {v(r,2)}, v1 offset:{o}", ('A0', n)); L.issue(f"ds_read_b64 {v(r+2,2)}, v1 offset:{o+8}", ('A', n))
    rdA(0)
    for j in range(8): rdB(0, j)
    rdA(1); rdA(2)
    for n in range(32):
        e, q = divmod(n, 8)
        for j in range(q, 8):
            L.need(('A', n), ('B', e, j - q))
            first = (e == 0 and q == 0)
            A(f"v_mfma_f32_16x16x32_bf16 {v(ACC+4*j,4)}, {v(AR+4*(n%4),4)}, {v(BR[e&1]+4*(j-q),4)}, {'0' if first else v(ACC+4*j,4)}")
            if j == q:
                if n + 3 < 32: rdA(n + 3)
                if e < 3 and q < 4: rdB(e + 1, 2*q); rdB(e + 1, 2*q + 1)
    ST.mark(A)
    A("s_cmp_eq_u32 s27, 1\ns_cbranch_scc1 S_epi1")
    for par in range(2):
        if par: A("S_epi1:")
        keep = [j for j in range(8) if (j & 1) == par]; send = [j for j in range(8) if (j & 1) != par]
        for k, j in enumerate(keep): A(f"ds_read_b64 {v(64+2*k,2)}, v4 offset:{512*j}")
        A("s_nop 3")
        for k, j in enumerate(send): A(f"ds_write_b128 v14, {v(ACC+4*j,4)} offset:{k*1024}")
        A("s_waitcnt lgkmcnt(0)\ns_barrier")
        for k, j in enumerate(keep): A(f"ds_read_b128 {v(80+4*k,4)}, v15 offset:{k*1024}")
        for k, j in enumerate(keep):
            for r in range(4):
                src = 64 + 2*k + r // 2
                A(f"v_and_b32 v{96+4*k+r}, 0xffff0000, v{src}" if r & 1 else f"v_lshlrev_b32 v{96+4*k+r}, 16, v{src}")
            for r in range(4): A(f"v_fmac_f32 v{ACC+4*j+r}, s35, v{96+4*k+r}")
        for k, j in enumerate(keep):
            A(f"s_waitcnt lgkmcnt({3-k})")
            for r in range(4): A(f"v_add_f32 v{ACC+4*j+r}, v{ACC+4*j+r}, v{80+4*k+r}")
            A(f"v_cvt_pk_bf16_f32 v{112+2*k}, v{ACC+4*j}, v{ACC+4*j+1}\nv_cvt_pk_bf16_f32 v{113+2*k}, v{ACC+4*j+2}, v{ACC+4*j+3}")
            if k & 1:
                b = 112 + 2*(k-1)
                A(f"s_nop 1\nv_permlane16_swap_b32 v{b}, v{b+2}\nv_permlane16_swap_b32 v{b+1}, v{b+3}")
                A(f"buffer_store_dwordx4 {v(b,4)}, v3, s[16:19], s33 offen offset:{512*keep[k-1]} sc1")
        if par == 0: A("s_branch S_done")
    A(f"""
S_done:
    s_lshl_b32 s38, s25, 2
    s_add_u32 s38, s38, s24
    s_lshl_b32 s38, s38, 3
    s_add_u32 s38, s38, {FL_A}
    v_mov_b32 v10, s38
    v_mov_b32 v8, s96
    v_mov_b32 v9, s97
    s_mov_b64 exec, 1
    s_waitcnt vmcnt(0)
    buffer_store_dwordx2 v[8:9], v10, s[56:59], 0 offen sc1
    s_mov_b64 exec, -1
S_end:
    """)
    ST.finish(A, tsbase)
    A("s_endpgm")
    return nxt[0]
```

```python
from common2 import *
import math
XBUF = [49152, 65536]; WBUF = [0, 16384, 32768]
ACC = 64
FR = [16, 40]
V_XD, V_WGD, V_WUD = 1, 2, 3
V_XR = 4; V_WR = 8; V_ST = 12
NS = 9
SLOT = [32768, 40960, 65536, 73728, 0, 8192, 16384, 24576, 49152]
GACC = 16; HR = 80; ATILE = 57344
NE = 7
def role_fg(A, ST, opt, tsbase=0):
    usepk = opt.get('usepk', True)
    HRS = [104, 160, 168, 112, 120]
    HN = len(HRS)
    GB = [16, 32, 48, 176]
    held = [192 + 8 * i_ for i_ in range(7)] + [64, 72, 128, 136, 80, 88, 144, 152, 96]
    NW = len(held)
    slots = {}
    freeslots = list(range(NS))
    def slot_of(n):
        if n not in slots: slots[n] = freeslots.pop(0)
        return slots[n]
    def release(n): freeslots.append(slots[n])
    A(f"""
    s_load_dwordx2 s[4:5], s[0:1], {KA['u']}
    s_load_dwordx4 s[28:31], s[0:1], {KA['Wg']}
    s_load_dwordx2 s[6:7], s[0:1], {KA['ws']}
    s_load_dwordx2 s[48:49], s[0:1], {KA['Wd']}
    s_load_dwordx4 s[52:55], s[0:1], {KA['out']}
    s_setprio {opt.get('prio_fg', 2)}
    v_lshrrev_b32 v13, 6, v0
    v_and_b32 v0, 63, v0
    v_readfirstlane_b32 s24, v13
    v_lshrrev_b32 v14, 3, v0              ; lane>>3
    v_lshrrev_b32 v15, 4, v0              ; lane>>4
    s_and_b32 s27, s24, 1                 ; wr
    s_lshr_b32 s32, s24, 1                ; wc
    s_lshl_b32 s33, s27, 2
    v_add_u32 v16, s33, v15
    v_and_b32 v17, 7, v0
    v_xor_b32 v17, v17, v16
    v_lshlrev_b32 v17, 4, v17
    v_mov_b32 v18, 896
    v_mad_u32_u24 v{V_XD}, v14, v18, v17
    v_lshlrev_b32 v16, 1, v15
    v_and_b32 v17, 15, v0
    v_xor_b32 v17, v17, v16
    v_lshlrev_b32 v17, 4, v17
    v_mov_b32 v18, 3584
    v_mad_u32_u24 v{V_WGD}, v15, v18, v17
    v_xor_b32 v{V_WUD}, 128, v{V_WGD}
    s_lshl_b32 s34, s25, 4
    s_add_u32 s34, s34, s24
    s_mul_i32 s34, s34, {8*896}
    s_mul_i32 s35, s24, {4*3584}
    s_lshl_b32 s37, s26, 8
    s_add_u32 s35, s35, s37
    s_lshl_b32 s36, s24, 10
    s_and_b32 s85, s25, 3                 ; rbl
    v_bfe_u32 v19, v0, 1, 3
    v_lshl_add_u32 v19, v15, 5, v19
    s_lshl_b32 s38, s85, 3
    v_add_u32 v19, s38, v19
    v_mul_u32_u24 v19, 3584, v19
    v_and_b32 v20, 1, v0
    v_lshl_add_u32 v19, v20, 7, v19
    v_add_u32 v22, s37, v19
    v_and_b32 v19, 31, v0
    v_min_u32 v19, 18, v19
    s_cmp_ge_u32 s26, 7
    s_cselect_b32 s38, 7, 0
    s_sub_u32 s38, s26, s38
    s_lshl_b32 s85, s85, 1
    s_add_u32 s85, s85, s38
    s_cmp_ge_u32 s85, 7
    s_cselect_b32 s86, 7, 0
    s_sub_u32 s85, s85, s86
    s_mov_b32 s60, {'s85' if opt.get('rot', 0) else 0}
    s_mov_b32 s62, s60
    s_mul_i32 s38, s38, 19
    v_add_u32 v19, s38, v19
    v_min_u32 v19, 127, v19
    s_lshl_b32 s38, s25, 7
    v_add_u32 v19, s38, v19
    v_mul_u32_u24 v19, 896, v19
    v_lshrrev_b32 v20, 5, v0
    v_lshl_add_u32 v23, v20, 7, v19
    s_waitcnt lgkmcnt(0)
    """)
    ST.mark(A)
    srd(A, 8, 4, SZ_U); srd(A, 12, 28, SZ_W); srd(A, 16, 30, SZ_W)
    def dmaX(b, i):
        pre = "s_lshl_b32 s61, s60, 7\ns_add_u32 s61, s61, s34\ns_add_u32 s60, s60, 1\ns_cmp_eq_u32 s60, 7\ns_cselect_b32 s60, 0, s60\n" if i == 0 else ''
        return (pre + f"s_add_u32 m0, s36, {XBUF[b & 1] + i * 4096}\n"
                f"s_add_u32 s38, s61, {i * 32 * 896}\n"
                f"buffer_load_dwordx4 v{V_XD}, s[8:11], s38 offen lds")
    def dmaW(st, m, i):
        pre = f"s_mul_i32 s63, s62, {64*3584}\ns_add_u32 s63, s63, s35\ns_add_u32 s62, s62, 1\ns_cmp_eq_u32 s62, 7\ns_cselect_b32 s62, 0, s62\n" if (st & 1) == 0 and m == 0 and i == 0 else ''
        return (pre + f"s_add_u32 m0, s36, {WBUF[st % 3] + m * 8192 + i * 4096}\n"
                f"s_add_u32 s38, s63, {(32 * (st & 1) + 16 * i) * 3584}\n"
                f"buffer_load_dwordx4 v{V_WUD if m else V_WGD}, s[{16 if m else 12}:{19 if m else 15}], s38 offen lds")
    def stW(st): return [dmaW(st, m, i) for i in range(2) for m in range(2)]
    def stX(b): return [dmaX(b, i) for i in range(4)]
    srd(A, 44, 54, 256)
    A(f"""
    s_xor_b32 s33, s24, 3
    s_or_b32 s33, s2, s33
    s_cmp_lg_u32 s33, 0
    s_cbranch_scc1 FG_notag
    s_memrealtime s[40:41]
    v_mov_b32 v28, 0
    s_waitcnt lgkmcnt(0)
    s_or_b32 s40, s40, 1
    v_mov_b32 v26, s40
    v_mov_b32 v27, s41
    s_mov_b64 exec, 1
    buffer_store_dwordx2 v[26:27], v28, s[44:47], 0 offen sc1
    s_mov_b64 exec, -1
FG_notag:
    """)
    if opt.get('pf', 0):
        A(f"""
        s_cmp_eq_u32 s24, 3
        s_cbranch_scc1 FG_pf3
        s_cmp_eq_u32 s24, 2
        s_cbranch_scc1 FG_pf2
        s_cmp_eq_u32 s24, 1
        s_cbranch_scc1 FG_pf1
        buffer_load_dword v24, v22, s[12:15], 0 offen
        s_branch FG_pf3
FG_pf1:
        buffer_load_dword v24, v22, s[16:19], 0 offen
        s_branch FG_pf3
FG_pf2:
        buffer_load_dword v24, v23, s[8:11], 0 offen
FG_pf3:
        """)
    burst12 = opt.get('burst', 20) == 12
    for x in stX(0) + stW(0) + stW(1) + ([] if burst12 else stX(1) + stW(2)): A(x)
    srd(A, 20, 6, WS_H_SZ, WS_H); srd(A, 56, 6, WS_FL_SZ, WS_FL)
    A(f"""
    {'s_waitcnt vmcnt(0)' + chr(10) + 's_endpgm' if opt.get('skip_fg') else ''}
    v_and_b32 v16, 31, v0                 ; t
    v_lshrrev_b32 v17, 5, v0              ; h
    v_bfe_u32 v18, v0, 1, 3               ; (t>>1)&7
    s_lshl_b32 s33, s27, 13
    s_add_u32 s33, s33, {XBUF[0]}
    v_lshlrev_b32 v16, 7, v16
    v_add_u32 v16, s33, v16
    """)
    for k in range(4):
        A(f"v_or_b32 v19, {2*k}, v17\nv_xor_b32 v19, v19, v18\nv_lshl_add_u32 v{V_XR+k}, v19, 4, v16")
    A(f"""
    v_bfe_u32 v16, v0, 4, 1               ; m
    v_bfe_u32 v18, v0, 2, 2               ; r
    v_and_b32 v19, 3, v0                  ; c
    v_lshlrev_b32 v20, 13, v16
    v_lshl_add_u32 v20, v17, 11, v20
    v_lshl_add_u32 v20, v18, 8, v20
    v_lshl_add_u32 v20, v19, 3, v20
    v_lshl_or_b32 v21, v16, 2, v18
    s_lshl_b32 s33, s32, 2
    v_xor_b32 v21, s33, v21
    """)
    for j in range(4):
        A(f"v_xor_b32 v19, {j}, v21\nv_lshl_add_u32 v{V_WR+j}, v19, 5, v20")
    A(f"""
    s_lshl_b32 s33, s25, 1
    s_add_u32 s33, s33, s27
    s_mul_i32 s33, s33, 224
    s_lshl_b32 s37, s26, 3
    s_add_u32 s33, s33, s37
    s_lshl_b32 s37, s32, 2
    s_add_u32 s33, s33, s37
    s_lshl_b32 s39, s33, 10
    v_lshlrev_b32 v{V_ST}, 4, v0
    """)
    def reads(n):
        st, ks = n >> 1, n & 1
        b, ks4 = n >> 2, n & 3
        f = FR[n & 1]
        xr = [f"ds_read_b128 {v(f + 4*tt, 4)}, v{V_XR+ks4} offset:{XBUF[b & 1] - XBUF[0] + tt * 4096}" for tt in range(2)]
        wr = [[f"ds_read_b64_tr_b16 {v(f + 8 + 4*j + 2*p, 2)}, v{V_WR+j} offset:{WBUF[st % 3] + ks * 4096 + p * 1024}" for p in range(2)] for j in range(4)]
        return [xr[0]] + wr[0] + [xr[1]] + wr[1] + wr[2] + wr[3]
    def mfmas(n):
        f = FR[n & 1]
        out = []
        for j in range(4):
            for tt in range(2):
                a = ACC + (tt * 4 + j) * 16
                out.append(f"v_mfma_f32_32x32x16_bf16 {v(a,16)}, {v(f+8+4*j,4)}, {v(f+4*tt,4)}, {'0' if n == 0 else v(a, 16)}")
        return out
    A(f"s_waitcnt vmcnt({4 if burst12 else 12})\ns_barrier")
    ST.mark(A)
    for x in reads(0): A(x)
    gsetup = f"""
    s_cmp_ge_u32 s26, 7
    s_cselect_b32 s42, 1, 0               ; half
    s_mul_i32 s43, s42, 7
    s_sub_u32 s43, s26, s43               ; ct
    s_lshl_b32 s50, s25, 1
    s_add_u32 s50, s50, s42               ; rt
    s_mov_b32 s8, s48
    s_mov_b32 s9, s49
    s_mov_b32 s10, {SZ_W if not opt.get('fakeW') else 0}
    s_lshl_b32 s36, s24, 11
    v_lshrrev_b32 v14, 3, v0
    v_bfe_u32 v15, v0, 4, 1
    v_lshlrev_b32 v15, 2, v15
    v_and_b32 v13, 7, v0
    v_xor_b32 v13, v13, v15
    v_lshlrev_b32 v13, 4, v13
    v_mov_b32 v15, 896
    v_mad_u32_u24 v1, v14, v15, v13
    v_lshl_add_u32 v2, v14, 12, v13
    s_mov_b32 s86, s85
    s_lshl_b32 s51, s43, 7
    """
    gsetup2 = f"""
    v_bfe_u32 v248, v0, 4, 1              ; c16
    v_lshrrev_b32 v249, 5, v0             ; h
    v_bfe_u32 v250, v0, 2, 2              ; r
    v_and_b32 v251, 3, v0
    v_lshl_add_u32 v15, v249, 2, v250
    v_lshlrev_b32 v15, 7, v15
    v_lshl_add_u32 v15, v251, 3, v15
    v_and_b32 v249, 2, v250
    v_xor_b32 v249, v249, v248
    v_lshl_add_u32 v15, v249, 5, v15      ; tile-0 address inside a 2 KB stage
    s_lshl_b32 s33, s32, 6
    v_xor_b32 v13, s33, v15
    v_add_u32 v13, s36, v13
    v_xor_b32 v14, 64, v13
    v_add_u32 v3, 65536, v13
    v_min_u32 v248, 13, v0
    v_and_b32 v249, 1, v248
    v_lshrrev_b32 v248, 1, v248
    v_lshlrev_b32 v248, 10, v248
    v_lshl_add_u32 v248, v249, 4, v248
    s_lshl_b32 s33, s50, 5
    s_add_u32 s33, s33, {FL_U}
    v_add_u32 v248, s33, v248
    v_mov_b32 v249, 0
    """
    gsetup3 = f"""
    s_lshl_b32 s40, s50, 1
    s_add_u32 s40, s40, s27
    s_xor_b32 s41, s40, 1
    s_mul_i32 s40, s40, {112*1024}
    s_mul_i32 s41, s41, {112*1024}
    v_xor_b32 v8, 64, v3
    s_lshl_b32 s33, s27, 6
    v_xor_b32 v9, s33, v15
    s_lshl_b32 s33, s32, 12
    s_add_u32 s33, s33, {ATILE}
    v_add_u32 v9, s33, v9
    s_lshl_b32 s33, s25, 1
    s_add_u32 s33, s33, s27
    s_lshl_b32 s33, s33, 9
    s_lshl_b32 s38, s26, 1
    s_add_u32 s38, s38, s32
    s_and_b32 s37, s38, 3
    s_lshl_b32 s37, s37, 7
    s_add_u32 s33, s33, s37
    s_lshr_b32 s38, s38, 2
    s_lshl_b32 s38, s38, 3
    s_add_u32 s33, s33, s38
    v_mov_b32 v10, s33
    v_min_u32 v11, 6, v0
    v_lshlrev_b32 v11, 3, v11
    s_lshl_b32 s33, s50, 2
    s_add_u32 s33, s33, s24
    s_lshl_b32 s33, s33, 7
    v_add_u32 v11, s33, v11
    v_add_u32 v5, 64, v11
    v_lshlrev_b32 v7, 4, v0
    s_lshl_b32 s33, s43, 10
    s_add_u32 s33, s33, {FL_A}
    v_add_u32 v7, s33, v7
    v_and_b32 v4, 31, v0
    """
    VM = Vm(A)
    def jof(n): return (n & 1) + (2 if n >= 14 else 0)
    def ldW(n):
        r = []
        for i in range(2):
            pre = f"s_lshl_b32 s34, s85, 2\ns_add_u32 s34, s34, s24\ns_mul_i32 s34, s34, {64*896}\ns_add_u32 s34, s34, s51\ns_add_u32 s85, s85, 1\ns_cmp_eq_u32 s85, 7\ns_cselect_b32 s85, 0, s85\n" if (n & 1) == 0 and i == 0 else ''
            r.append((pre + f"s_add_u32 m0, s36, {SLOT[slot_of(n)] + i * 1024}\ns_add_u32 s38, s34, {(16*jof(n) + 8*i) * 896}\nbuffer_load_dwordx4 v1, s[8:11], s38 offen lds", ('W', n)))
        return r
    def ldH(n):
        r = []
        for bt in range(2):
            pre = f"s_lshl_b32 s33, s86, 2\ns_add_u32 s33, s33, s24\ns_lshl_b32 s33, s33, 12\ns_add_u32 s35, s33, s40\ns_add_u32 s37, s33, s41\ns_add_u32 s86, s86, 1\ns_cmp_eq_u32 s86, 7\ns_cselect_b32 s86, 0, s86\n" if (n & 1) == 0 and bt == 0 else ''
            r.append((pre + f"buffer_load_dwordx4 {v(HRS[n % HN] + 4*bt, 4)}, v{V_ST}, s[20:23], s{35 + 2*bt} offen offset:{jof(n) * 1024}", ('H', n)))
        return r
    def wreg(n): return held[n % NW]
    def greads(n):
        f = wreg(n); o = SLOT[slot_of(n)]
        regs = (3, 8) if o >= 65536 else (13, 14)
        return [f"ds_read_b64_tr_b16 {v(f + 4*bd + 2*p, 2)}, v{regs[bd]} offset:{o % 65536 + p * 1024}" for bd in range(2) for p in range(2)]
    def vwait(*tags, extra=''):
        c = VM.count(*tags)
        if c is not None or extra: A("s_waitcnt " + (f"vmcnt({c}) " if c is not None else '') + extra)
    for n in range(28):
        dm = []
        if n & 1:
            sp = (n + 1) >> 1
            if sp <= 13:
                young = 0
                if sp == 1: young = 8
                else:
                    if sp + 1 <= 13: young += 4
                    if (sp + 1) % 2 == 0 and (sp + 1) // 2 <= 6: young += 4
                    if sp == 13: young += len(VM.q)
                A(f"s_waitcnt vmcnt({young}) lgkmcnt(0)\ns_barrier")
                if opt.get('stage_stamps') and sp % 2 == 0: ST.mark(A)
                if sp + 2 <= 13: dm += stW(sp + 2)
                if sp % 2 == 0 and sp // 2 + 1 <= 6: dm += stX(sp // 2 + 1)
            else:
                A("s_waitcnt lgkmcnt(0)\ns_barrier")
            pend = dm[len(dm)//2:]; dm = dm[:len(dm)//2]
        else:
            A("s_waitcnt lgkmcnt(0)")
            if n > 0: dm = pend
            elif burst12: dm = stX(1) + stW(2)
        rd = reads(n + 1) if n < 27 else []
        ex = [x for m_ in {23: [0, 1], 24: [2, 3], 26: [4, 5], 27: [6, 7, 8]}.get(n, []) for x in ldW(m_)]
        if n == 25: ex = [("buffer_load_dwordx2 v[250:251], v249, s[44:47], 0 offen sc1", 'tag')]
        if n == 27: ex.append(("buffer_load_dwordx4 v[56:59], v248, s[56:59], 0 offen sc1", 'fu'))
        di = 0
        for i, m in enumerate(mfmas(n)):
            A(m)
            for x in rd[2*i:2*i+2]: A(x)
            if i == 1 and n in (23, 25, 27): A({23: gsetup, 25: gsetup2, 27: gsetup3}[n])
            if i >= 3 and di < len(dm): A(dm[di]); di += 1
            if ex and i >= (4 if n < 27 else 1): VM.issue(*ex.pop(0))
        for x in dm[di:]: A(x)
        for x in ex: VM.issue(*x)
    ST.mark(A)
    k2 = -2.0 * math.sqrt(2.0 / math.pi) * math.log2(math.e)
    C1, C2, ONE = 28, 30, 44
    A(f"""
    v_mov_b32 v{C1}, {f2u(k2)}
    v_mov_b32 v{C1+1}, {f2u(k2)}
    v_mov_b32 v{C2}, {f2u(k2*0.044715)}
    v_mov_b32 v{C2+1}, {f2u(k2*0.044715)}
    v_mov_b32 v{ONE}, 1.0
    v_mov_b32 v{ONE+1}, 1.0
    """)
    def flag(off):
        VM.issue(f"s_mov_b64 exec, 1\nbuffer_store_dwordx2 v[50:51], v10, s[56:59], 0 offen offset:{off} sc1\ns_mov_b64 exec, -1", ('flag', off))
    E1, E2, PER = opt.get('e1', 1), opt.get('e2', 7), opt.get('e_per', 5)
    order = [(tt, j) for j in range(4) for tt in range(2)]
    wq = []
    for idx, (tt, j) in enumerate(order):
        a = ACC + (tt * 4 + j) * 16
        T = 16 + 16 * (idx & 1)
        O = T + 8
        if idx == E1:
            vwait(('W', 8), 'tag', 'fu')
            for n_ in range(NS):
                for x in greads(n_): A(x)
            A(f"v_readfirstlane_b32 s96, v250\nv_readfirstlane_b32 s97, v251\ns_nop 3\ns_cmp_lg_u32 s96, 0\ns_cbranch_scc1 FG_havetag")
            get_nonce(A, 'FG', 60, 44, 96)
            A("FG_havetag:\nv_mov_b32 v50, s96\nv_mov_b32 v51, s97")
            if not opt.get('skip_s'): poll_flags4(A, 'FGU', 248, 56, 56, 96, 99, first_issued=True, sleep=8)
            A(f"v_lshlrev_b32 v249, 5, v4\ns_lshl_b32 s33, s50, 1\ns_add_u32 s33, s33, s27\ns_lshl_b32 s33, s33, 10")
            srd(A, 16, 6, WS_GP_SZ, WS_GP)
            VM.issue("buffer_load_dwordx4 v[56:59], v249, s[16:19], s33 offen", 'gp')
            VM.issue("buffer_load_dwordx3 v[60:62], v249, s[16:19], s33 offen offset:16", 'gp')
        if idx == E1 + 1:
            A("s_waitcnt lgkmcnt(0)")
            for n_ in range(NS): release(n_)
            wq = [x for n_ in range(NS, 2 * NS) for x in ldW(n_)]
        if idx == E2:
            assert not wq
            vwait(('st', 3), ('W', NW - 1))
            flag(0)
            for n_ in range(NS, NW):
                for x in greads(n_): A(x)
        for _ in range(PER):
            if wq: VM.issue(*wq.pop(0))
        if usepk:
            for p in range(4): A(f"v_pk_mul_f32 {v(T+2*p,2)}, {v(a+2*p,2)}, {v(a+2*p,2)}")
            for p in range(4): A(f"v_pk_fma_f32 {v(T+2*p,2)}, {v(T+2*p,2)}, {v(C2,2)}, {v(C1,2)}")
            for p in range(4): A(f"v_pk_mul_f32 {v(T+2*p,2)}, {v(T+2*p,2)}, {v(a+2*p,2)}")
            for p in range(8): A(f"v_exp_f32 v{T+p}, v{T+p}")
            for p in range(4): A(f"v_pk_mul_f32 {v(a+2*p,2)}, {v(a+2*p,2)}, {v(a+8+2*p,2)}")
            for p in range(4): A(f"v_pk_add_f32 {v(T+2*p,2)}, {v(T+2*p,2)}, {v(ONE,2)}")
            for p in range(8): A(f"v_rcp_f32 v{T+p}, v{T+p}")
            A("s_nop 0")
            for p in range(4): A(f"v_pk_mul_f32 {v(a+2*p,2)}, {v(a+2*p,2)}, {v(T+2*p,2)}")
        else:
            for p in range(8): A(f"v_mul_f32 v{T+p}, v{a+p}, v{a+p}")
            for p in range(8): A(f"v_fma_f32 v{T+p}, v{T+p}, v{C2}, v{C1}")
            for p in range(8): A(f"v_mul_f32 v{T+p}, v{T+p}, v{a+p}")
            for p in range(8): A(f"v_exp_f32 v{T+p}, v{T+p}")
            for p in range(8): A(f"v_mul_f32 v{a+p}, v{a+p}, v{a+8+p}")
            for p in range(8): A(f"v_add_f32 v{T+p}, 1.0, v{T+p}")
            for p in range(8): A(f"v_rcp_f32 v{T+p}, v{T+p}")
            A("s_nop 0")
            for p in range(8): A(f"v_mul_f32 v{a+p}, v{a+p}, v{T+p}")
        for p in range(4): A(f"v_cvt_pk_bf16_f32 v{O+p}, v{a+2*p}, v{a+2*p+1}")
        if idx == 7: VM.issue("buffer_load_dwordx2 v[52:53], v11, s[56:59], 0 offen sc1", 'pollA')
        VM.issue(f"s_add_u32 s38, s39, {(tt * 112 + j) * 1024}\nbuffer_store_dwordx4 {v(O,4)}, v{V_ST}, s[20:23], s38 offen {opt.get('hsc', 'sc1')}", ('st', idx))
    ST.mark(A)
    if opt.get('f_only'):
        ST.finish(A, tsbase); A("s_endpgm"); return
    A(f"""
    s_setprio {opt.get('prio_g', 0)}
    v_add_f32 v56, v56, v57
    v_add_f32 v58, v58, v59
    v_add_f32 v60, v60, v61
    v_add_f32 v56, v56, v58
    v_add_f32 v60, v60, v62
    v_add_f32 v56, v56, v60
    v_cvt_pk_bf16_f32 v56, v56, v56
    v_lshlrev_b32 v56, 16, v56
    v_mul_f32 v56, {f2u(-math.log2(math.e))}, v56
    v_exp_f32 v6, v56
    s_waitcnt lgkmcnt(0)
    v_add_f32 v6, 1.0, v6
    v_rcp_f32 v6, v6
    """)
    for n_ in range(NS, NW): release(n_)
    srd(A, 12, 6, WS_AT_SZ, WS_AT)
    A("v_cvt_pk_bf16_f32 v6, v6, v6\nv_lshlrev_b32 v6, 16, v6")
    vwait('pollA')
    ST.mark(A)
    poll_flags(A, 'FGH', 11, 52, 56, 96, 99, first_issued=True, sleep=opt.get('sleep_h', 2))
    ST.mark(A)
    if opt.get('fakeH'): A(f"s_mov_b32 s40, 0\ns_mov_b32 s41, {112*1024}")
    for n in range(HN - 1):
        for x in ldH(n): VM.issue(*x)
    atdma = f"""s_lshl_b32 s33, s43, 3
            s_add_u32 s33, s33, s24
            s_lshl_b32 s33, s33, 15
            s_lshl_b32 s38, s50, 7
            s_add_u32 s33, s33, s38
            s_lshl_b32 s39, s24, 10
            s_add_u32 m0, s39, {ATILE}
            s_add_u32 s38, s33, {32*4096}
            buffer_load_dwordx4 v2, s[12:15], s33 offen lds
            s_add_u32 m0, s39, {ATILE + 4096}
            s_nop 0
            buffer_load_dwordx4 v2, s[12:15], s38 offen lds"""
    RD = 2
    PB_ISSUE = opt.get('pb_issue', 5); PB_CHECK = 14 - (HN - 1)
    LP = 28 - HN
    for n in range(28):
        vwait(('H', n), ('W', n + RD), extra="lgkmcnt(4)" if NW <= n < 27 else "lgkmcnt(0)" if n == 27 else '')
        if n == 0: VM.count(('st', 7)); flag(64)
        if n == PB_CHECK:
            vwait('pollB')
            poll_flags(A, 'FGB', 5, 248, 56, 96, 99, first_issued=True, sleep=opt.get('sleep_h', 2))
        if n == 27:
            vwait('poll')
            A(f"""
            v_cmp_ne_u64 vcc, s[96:97], v[248:249]
            v_cmp_ne_u64 s[100:101], s[96:97], v[250:251]
            s_nop 1
            s_or_b64 vcc, vcc, s[100:101]
            s_cselect_b32 s98, {0 if opt.get('skip_s') else 1}, 0
            s_cmp_lg_u32 s98, 0
            s_cbranch_scc1 FG_atlater
            """)
            A(atdma)
            A("FG_atlater:")
        rd = greads(n + RD) if NW <= n + RD < 28 else []
        ld = ldH(n + HN - 1) if n + HN - 1 < 28 else []
        if n >= NW: release(n)
        lw = []
        m_ = max(slots) + 1
        if m_ < 28 and freeslots and n >= opt.get('w_from', 0): lw = ldW(m_)
        f = wreg(n)
        ldq = ld + lw
        bi = 0
        for bd in range(2):
            for bt in range(2):
                a = GB[bd * 2 + bt]
                A(f"v_mfma_f32_32x32x16_bf16 {v(a,16)}, {v(f+4*bd,4)}, {v(HRS[n%HN]+4*bt,4)}, {'0' if n == 0 else v(a,16)}")
                if bi < 2:
                    for x in rd[2*bi:2*bi+2]: A(x)
                if bi < len(ldq): VM.issue(*ldq[bi])
                bi += 1
        if n == PB_ISSUE: VM.issue("buffer_load_dwordx2 v[248:249], v5, s[56:59], 0 offen sc1", 'pollB')
        if n == LP: VM.issue("buffer_load_dwordx4 v[248:251], v7, s[56:59], 0 offen sc1", 'poll')
    ST.mark(A)
    A("s_barrier")
    for b in range(1, 4):
        A(f"s_xor_b32 s33, s24, {b}\ns_mul_i32 s33, s33, {3*4096}\nv_add_u32 v{12+b}, s33, v{V_ST}")
    A(f"""
    s_mul_i32 s33, s24, {3*4096}
    v_add_u32 v10, s33, v{V_ST}
    v_mov_b32 v11, 896
    v_lshrrev_b32 v5, 5, v0
    v_lshlrev_b32 v5, 4, v5
    v_mad_u32_u24 v11, v4, v11, v5
    """)
    for b in range(1, 4):
        for k in range(4):
            A(f"ds_write_b128 v{12+b}, {v(GB[b] + 4*k, 4)} offset:{(b-1)*4096 + k*1024}")
    A("s_cmp_eq_u32 s98, 0\ns_cbranch_scc1 FG_atdone")
    poll_flags4(A, 'FGA', 7, 248, 56, 96, 99, sleep=opt.get('sleep_a', 4))
    A(atdma)
    A(f"""
FG_atdone:
    s_lshl_b32 s33, s50, 1
    s_add_u32 s33, s33, s27
    s_mul_i32 s33, s33, {32*896}
    s_lshl_b32 s38, s43, 7
    s_add_u32 s33, s33, s38
    s_lshl_b32 s38, s32, 6
    s_add_u32 s33, s33, s38
    s_mov_b32 s39, 0xffff0000
    """)
    srd(A, 20, 52, SZ_U)
    AT_, RB, TM, PK = 80, 96, 144, 160
    G0 = GB[0]
    A("s_waitcnt vmcnt(0) lgkmcnt(0)\ns_barrier")
    for j in range(4):
        A(f"ds_read_b64_tr_b16 {v(AT_ + 2*j, 2)}, v9 offset:{j*1024}")
    for b in range(3):
        for k in range(4):
            A(f"ds_read_b128 {v(RB + 16*b + 4*k, 4)}, v10 offset:{b*4096 + k*1024}")
    A("s_waitcnt lgkmcnt(12)")
    for k in range(16):
        src = AT_ + k // 2
        if k & 1: A(f"v_and_b32 v{TM+k}, s39, v{src}")
        else: A(f"v_lshlrev_b32 v{TM+k}, 16, v{src}")
    for b in range(3):
        A(f"s_waitcnt lgkmcnt({4*(2-b)})")
        for k in range(16): A(f"v_add_f32 v{G0+k}, v{G0+k}, v{RB+16*b+k}")
    for k in range(16): A(f"v_sub_f32 v{TM+k}, v{TM+k}, v{G0+k}")
    for k in range(16): A(f"v_fmac_f32 v{G0+k}, v6, v{TM+k}")
    for k in range(8): A(f"v_cvt_pk_bf16_f32 v{PK+k}, v{G0+2*k}, v{G0+1+2*k}")
    A("s_nop 1")
    for jj in range(2):
        A(f"v_permlane32_swap_b32 v{PK+4*jj}, v{PK+2+4*jj}\nv_permlane32_swap_b32 v{PK+1+4*jj}, v{PK+3+4*jj}")
    for jj in range(2):
        A(f"buffer_store_dwordx4 {v(PK+4*jj,4)}, v11, s[20:23], s33 offen offset:{32*jj} {opt.get('outsc', '')}")
    ST.finish(A, tsbase)
    A("s_endpgm")
```

```python
from common2 import *
from sched import schedule
import math
WT = 49664 // 4
FINE = 32
CMP = 4 * WT; CMPSZ = 41 * 80
UB = [CMP + 4 * CMPSZ, CMP + 4 * CMPSZ + 4608]
CP = 4160; CH = 4 * CP
RED = 33280
L2E = math.log2(math.e)
assert UB[1] + 4608 <= 81920

class Lds:
    def __init__(self, A): self.A = A; self.q = []
    def issue(self, ins, tag): self.A(ins); self.q.append(tag)
    def need(self, *tags):
        idx = max((i for i, t in enumerate(self.q) if t in tags), default=-1)
        if idx < 0: return
        n = len(self.q) - 1 - idx
        self.A(f"s_waitcnt lgkmcnt({min(n, 15)})")
        self.q = self.q[idx + 1:] if n <= 15 else self.q[len(self.q) - 15:]

def role_s(A, ST, opt, tsbase=0):
    if opt.get('skip_s'): A('s_endpgm')
    P = 32
    early = opt.get('pf', 0) and opt.get('pf_early', 0)
    A(f"""
    s_load_dwordx8 s[40:47], s[0:1], {KA['Are']}
    s_load_dwordx8 s[48:55], s[0:1], {KA['Cre']}
    s_load_dwordx2 s[4:5], s[0:1], {KA['u']}
    s_load_dwordx2 s[28:29], s[0:1], {KA['gw']}
    s_load_dwordx4 s[56:59], s[0:1], {KA['dbg']}
    s_load_dwordx4 s[16:19], s[0:1], {KA['Wu']}
    s_setprio {opt.get('prio_s0', 3)}
    v_lshrrev_b32 v13, 6, v0
    v_lshlrev_b32 v1, 2, v0
    v_readfirstlane_b32 s24, v13
    s_lshl_b32 s33, s25, 10               ; d0*512
    s_lshl_b32 s34, s25, 2                ; d0*2
    v_and_b32 v12, 63, v0                 ; lane
    v_lshrrev_b32 v14, 3, v12
    v_bfe_u32 v15, v12, 4, 1
    v_lshlrev_b32 v15, 1, v15
    v_and_b32 v3, 7, v12
    v_xor_b32 v3, v3, v15
    v_lshlrev_b32 v3, 4, v3
    v_mov_b32 v15, 896
    v_mad_u32_u24 v3, v14, v15, v3
    v_xor_b32 v4, 64, v3                  ; rows 8-15
    s_lshl_b32 s38, s26, 2
    s_add_u32 s38, s38, s24
    s_mul_i32 s38, s38, {16*896}
    s_lshl_b32 s39, s27, 7
    s_add_u32 s31, s38, s39               ; X soffset
    s_lshr_b32 s35, s24, 1
    s_mul_i32 s35, s35, {UB[1]-UB[0]}
    s_and_b32 s39, s24, 1
    s_lshl_b32 s39, s39, 11
    s_add_u32 s35, s35, s39
    s_add_u32 s35, s35, {UB[0]+512}
    v_and_b32 v5, 3, v12
    v_lshlrev_b32 v6, 5, v5
    v_mov_b32 v7, 0
    """)
    if opt.get('pf', 0) or opt.get('s_pfonly'): A(f"""
    s_and_b32 s85, s87, 3                 ; rbl
    s_lshr_b32 s86, s87, 2                ; cbl
    v_lshrrev_b32 v6, 4, v12
    v_bfe_u32 v7, v12, 1, 3
    v_lshl_add_u32 v6, v6, 5, v7
    s_lshl_b32 s38, s85, 3
    v_add_u32 v6, s38, v6
    v_mul_u32_u24 v6, 3584, v6
    v_and_b32 v7, 1, v12
    v_lshl_add_u32 v6, v7, 7, v6
    s_and_b32 s38, s3, 1
    s_mul_i32 s38, s38, 7
    s_add_u32 s38, s38, s86
    s_lshl_b32 s38, s38, 8
    v_add_u32 v248, s38, v6
    v_and_b32 v6, 31, v12
    v_min_u32 v6, 18, v6
    s_mul_i32 s38, s86, 19
    v_add_u32 v6, s38, v6
    v_min_u32 v6, 127, v6
    s_lshr_b32 s38, s3, 1
    s_lshl_b32 s38, s38, 2
    s_add_u32 s38, s38, s85
    s_lshl_b32 s38, s38, 7
    v_add_u32 v6, s38, v6
    v_mul_u32_u24 v6, 896, v6
    v_lshrrev_b32 v7, 5, v12
    v_lshl_add_u32 v249, v7, 7, v6
    """)
    def touch(step):
        if not opt.get('pf', 0): return
        lab = f"S_t{step}"
        if step == 0:
            plan = [(44, 248, 4*32*3584), (48, 248, 4*32*3584), (8, 249, 256), (8, 249, 512)]
        elif step == 1:
            plan = [(44, 248, 8*32*3584), (48, 248, 8*32*3584), (8, 249, 768), (44, 248, 12*32*3584)]
        else:
            plan = [None, None, None, (48, 248, 12*32*3584)]
        for w, pl in enumerate(plan):
            if pl is None: continue
            A(f"s_cmp_lg_u32 s24, {w}\ns_cbranch_scc1 {lab}_{w}\ns_mov_b32 s38, {pl[2]}\nbuffer_load_dword v250, v{pl[1]}, s[{pl[0]}:{pl[0]+3}], s38 offen\n{lab}_{w}:")
    A(f"""
    v_and_b32 v5, 3, v12
    v_lshlrev_b32 v6, 5, v5
    v_mov_b32 v7, 0
    s_mov_b32 s10, {SZ_P}
    s_mov_b32 s11, 0x00020000
    s_waitcnt lgkmcnt(0)
    """)
    if opt.get('s_pfonly'):
        srd(A, 8, 4, SZ_U); srd(A, 44, 16, SZ_W); srd(A, 48, 18, SZ_W)
        first, gap = opt['s_pfonly']
        A("s_cmp_eq_u32 s24, 3\ns_cbranch_scc1 S_pfend\ns_mov_b32 exec_hi, 0")
        for b in range(first, 7):
            for w, (sr, vr, so) in enumerate([(44, 248, b*64*3584), (48, 248, b*64*3584), (8, 249, b*128)]):
                A(f"s_cmp_lg_u32 s24, {w}\ns_cbranch_scc1 S_pf{b}_{w}\ns_mov_b32 s38, {so}\nbuffer_load_dword v250, v{vr}, s[{sr}:{sr+3}], s38 offen\nS_pf{b}_{w}:")
            for _ in range(gap // 64 // 15): A("s_sleep 15")
            if (gap // 64) % 15: A(f"s_sleep {(gap // 64) % 15}")
        A("S_pfend:\ns_endpgm")
        return
    ST.mark(A)
    A(f"s_mov_b32 s12, s52\ns_mov_b32 s13, s53\ns_mov_b32 s14, 896\ns_mov_b32 s15, 0x00020000\nbuffer_load_dword v26, v7, s[12:15], s34 offen")
    A(f"s_mov_b32 s12, s54\ns_mov_b32 s13, s55\nbuffer_load_dword v27, v7, s[12:15], s34 offen")
    for k in range(6):
        A(f"s_mov_b32 s8, s{40+2*k}\ns_mov_b32 s9, s{41+2*k}")
        A(f"buffer_load_dword v{P+6+k}, v1, s[8:11], s33 offen")
    srd(A, 8, 4, SZ_U); srd(A, 20, 28, 896); srd(A, 60, 56, 256)
    A(f"""
    s_mov_b32 m0, s35
    s_add_u32 s39, s31, {8*896}
    buffer_load_dwordx4 v3, s[8:11], s31 offen lds
    s_add_u32 m0, s35, 1024
    s_nop 0
    buffer_load_dwordx4 v4, s[8:11], s39 offen lds
    s_lshl_b32 s39, s27, 7
    buffer_load_dwordx4 v[160:163], v6, s[20:23], s39 offen
    buffer_load_dwordx4 v[164:167], v6, s[20:23], s39 offen offset:16
    buffer_load_dwordx2 v[30:31], v7, s[60:63], 0 offen sc1
    s_mov_b32 s6, s58
    s_mov_b32 s7, s59
    """)
    srd(A, 48, 18, SZ_W)
    A(f"s_lshl_b32 s85, s87, 2\ns_add_u32 s85, s85, s24\ns_lshl_b32 s85, s85, 13\ns_mov_b32 s86, s87\nv_lshlrev_b32 v248, 7, v12")
    srd(A, 12, 6, WS_U2_SZ, WS_U2); srd(A, 16, 6, WS_AT_SZ, WS_AT); srd(A, 20, 6, WS_GP_SZ, WS_GP); srd(A, 56, 6, WS_FL_SZ, WS_FL)
    if early: touch(0)
    ST.mark(A)
    A(f"""
    v_mov_b32 v4, 0
    v_mov_b32 v6, {CMP + 64}
    ds_write_b32 v6, v4
    ds_write_b32 v6, v4 offset:{CMPSZ}
    ds_write_b32 v6, v4 offset:{2*CMPSZ}
    ds_write_b32 v6, v4 offset:{3*CMPSZ}
    v_and_b32 v6, 127, v0
    v_lshlrev_b32 v6, 2, v6
    v_lshrrev_b32 v7, 7, v0
    v_mov_b32 v14, {UB[1]-UB[0]}
    v_mad_u32_u24 v6, v7, v14, v6
    v_add_u32 v6, {UB[0]}, v6
    ds_write_b32 v6, v4
    """)
    DA, GA = 28, 16
    A(f"""
    s_setprio {opt.get('prio_s', 1)}
    v_and_b32 v6, 15, v12
    v_lshrrev_b32 v7, 4, v12
    v_mul_u32_u24 v8, 320, v7
    v_lshl_add_u32 v8, v6, 2, v8
    s_mul_i32 s39, s24, {CMPSZ}
    s_add_u32 s39, s39, {CMP}
    v_add_u32 v{DA}, s39, v8
    v_mul_u32_u24 v8, 288, v6
    v_lshl_add_u32 v8, v7, 4, v8
    s_mul_i32 s87, s24, 9216
    v_add_u32 v25, s87, v8
    """)
    A(f"v_lshlrev_b32 v6, 3, v0\nv_sub_u32 v6, 2047, v6\nv_cvt_f32_u32 v6, v6")
    T0 = 48
    for e in range(10): A(f"v_add_f32 v{T0+e}, {f2u(-1.0*e)}, v6")
    for e in range(0, 10, 2): A(f"v_cvt_pk_bf16_f32 v{T0+10+e//2}, v{T0+e}, v{T0+1+e}")
    for e in range(9):
        A(f"v_and_b32 v{T0+e}, 0xffff0000, v{T0+10+e//2}" if e & 1 else f"v_lshlrev_b32 v{T0+e}, 16, v{T0+10+e//2}")
    E_, V_ = 70, 80
    for e in range(9): A(f"v_frexp_exp_i32_f32 v{E_+e}, v{T0+e}\nv_cvt_u32_f32 v{V_+e}, v{T0+e}")
    for e in range(9): A(f"v_subrev_u32 v{E_+e}, 8, v{E_+e}\nv_lshrrev_b32 v{T0+e}, 7, v{V_+e}\nv_and_b32 v{GA+e}, 7, v{V_+e}")
    for e in range(9): A(f"v_max_i32 v{E_+e}, 0, v{E_+e}\nv_lshl_or_b32 v{T0+e}, v{T0+e}, 3, v{GA+e}\nv_bfe_u32 v{V_+e}, v{V_+e}, 3, 4")
    for e in range(9): A(f"v_lshrrev_b32 v{T0+e}, v{E_+e}, v{T0+e}\nv_lshlrev_b32 v{V_+e}, 2, v{V_+e}")
    for e in range(9): A(f"v_lshl_add_u32 v{T0+e}, v{E_+e}, 3, v{T0+e}\nv_add_u32 v{V_+e}, {CMP}, v{V_+e}")
    A("v_mov_b32 v7, 80")
    for e in range(9): A(f"v_mad_u32_u24 v{GA+e}, v{T0+e}, v7, v{V_+e}")
    A(f"v_mov_b32 v7, {CMP + 64}\nv_cmp_eq_u32 vcc, 255, v0\ns_nop 1\nv_cndmask_b32 v{GA+8}, v{GA+8}, v7, vcc")
    A(f"""
    v_lshrrev_b32 v5, 4, v12              ; g
    v_bfe_u32 v6, v12, 2, 2               ; r
    v_and_b32 v7, 3, v12                  ; c
    v_and_b32 v8, 1, v5                   ; tb
    v_lshl_add_u32 v9, v8, 3, v6
    v_lshlrev_b32 v9, 7, v9
    v_lshl_add_u32 v9, v7, 3, v9
    v_add_u32 v9, s35, v9
    v_lshrrev_b32 v10, 1, v6
    v_lshl_or_b32 v10, v8, 1, v10
    v_lshrrev_b32 v11, 1, v5
    v_xor_b32 v10, v10, v11
    v_lshl_add_u32 v13, v10, 5, v9
    v_xor_b32 v10, 2, v10
    v_lshl_add_u32 v14, v10, 5, v9
    v_lshl_add_u32 v10, v11, 2, v6
    v_lshlrev_b32 v10, 14, v10
    v_lshl_add_u32 v10, v8, 6, v10
    v_lshl_add_u32 v15, v7, 4, v10
    v_lshrrev_b32 v5, 2, v12
    v_bfe_u32 v6, v5, 1, 1
    v_bfe_u32 v8, v5, 3, 1
    v_lshl_or_b32 v6, v8, 1, v6
    v_xor_b32 v6, v6, v7
    v_lshlrev_b32 v6, 5, v6
    v_lshl_add_u32 v6, v5, 7, v6
    v_add_u32 v6, s35, v6
    v_lshlrev_b32 v5, 5, v5
    s_lshl_b32 s38, s27, 18
    s_lshl_b32 s39, s26, 2
    s_add_u32 s39, s39, s24
    s_lshl_b32 s32, s39, 7
    s_add_u32 s30, s38, s32               ; U2 soffset
    s_lshl_b32 s39, s39, 9
    s_lshl_b32 s32, s27, 2
    s_add_u32 s31, s39, s32
    s_add_u32 s32, s30, {8*16384}
    """)
    def tpart():
        A(f"""
        ds_read_b64_tr_b16 v[168:169], v13
        ds_read_b64_tr_b16 v[170:171], v13 offset:512
        ds_read_b64_tr_b16 v[172:173], v14
        ds_read_b64_tr_b16 v[174:175], v14 offset:512
        ds_read_b128 v[176:179], v6
        ds_read_b128 v[180:183], v6 offset:16
        v_mov_b32 v8, 0
        s_waitcnt lgkmcnt(2)
        {'' if opt.get('no_tstore') else 'buffer_store_dwordx4 v[168:171], v15, s[12:15], s30 offen ' + opt.get('tsc', 'sc1')}
        {'' if opt.get('no_tstore') else 'buffer_store_dwordx4 v[172:175], v15, s[12:15], s32 offen ' + opt.get('tsc', 'sc1')}
        s_waitcnt lgkmcnt(0)
        """)
        for i in range(8): A(f"v_dot2_f32_bf16 v8, v{176+i}, v{160+i}, v8")
        A(f"""
        s_nop 2
        v_add_f32_dpp v8, v8, v8 quad_perm:[1,0,3,2] row_mask:0xf bank_mask:0xf
        s_nop 1
        v_add_f32_dpp v8, v8, v8 quad_perm:[2,3,0,1] row_mask:0xf bank_mask:0xf
        s_mov_b32 exec_lo, 0x11111111
        s_mov_b32 exec_hi, 0x11111111
        {'' if opt.get('no_tstore') or opt.get('no_gp') else 'buffer_store_dword v8, v5, s[20:23], s31 offen ' + opt.get('tsc', 'sc1')}
        s_mov_b64 exec, -1
        """)
    B = Asm()
    tmp = [60, 61, 62, 63]
    pk = [64, 65, 66, 67]
    cnt = [0]
    neg = {}
    def cmul(z, x, y):
        if y in neg:
            B(f"v_mul_f32 v{z}, v{x}, v{y}\nv_mul_f32 v{z+1}, v{x}, v{y+1}\nv_fmac_f32 v{z}, v{x+1}, v{neg[y]}\nv_fmac_f32 v{z+1}, v{x+1}, v{y}")
        elif x == y:
            t = tmp[cnt[0] & 1]
            B(f"v_mul_f32 v{z}, v{x}, v{x}\nv_add_f32 v{t}, v{x}, v{x}\nv_fma_f32 v{z}, -v{x+1}, v{x+1}, v{z}\nv_mul_f32 v{z+1}, v{t}, v{x+1}")
        else:
            B(f"v_mul_f32 v{z}, v{x}, v{y}\nv_mul_f32 v{z+1}, v{x}, v{y+1}\nv_fma_f32 v{z}, -v{x+1}, v{y+1}, v{z}\nv_fmac_f32 v{z+1}, v{x+1}, v{y}")
    PBK, PB, OUT, BF, KD = [152, 168], 184, 200, 216, 232
    bank = [0]
    useL = opt.get('tr', 'dpp') == 'lds'
    def wr(row): B(f"ds_write_addtid_b32 v{PBK[bank[0]] + row} offset:{bank[0]*4608 + row*288}")
    def put(row, z, ng=False):
        cnt[0] += 1
        B(f"v_cvt_pk_bf16_f32 v{PBK[bank[0]] + row}, v{z}, {'-' if ng else ''}v{z+1}")
        if useL: wr(row)
    def transpose(dst, nrows=16):
        if useL:
            for ks in range(4): B(f"ds_read_b128 {v(dst+4*ks,4)}, v25 offset:{bank[0]*4608 + ks*64}")
            bank[0] ^= 1
            return
        PA = PBK[bank[0]]; bank[0] ^= 1
        cur = [PA + i for i in range(16)]
        for d, mask in ((8, 0x00ff00ff), (4, 0x0f0f0f0f), (2, 0x33333333), (1, 0x55555555)):
            if d == 1: new = [dst + i for i in range(16)]
            else:
                free = [r for r in list(range(PA, PA + 16)) + list(range(PB, PB + 16)) if r not in cur]
                new = free[:16]
            cx = {8: 'row_ror:8', 4: 'row_ror:4', 2: 'quad_perm:[2,3,0,1]', 1: 'quad_perm:[1,0,3,2]'}[d]
            cy = {8: 'row_ror:8', 4: 'row_ror:12', 2: 'quad_perm:[2,3,0,1]', 1: 'quad_perm:[1,0,3,2]'}[d]
            B(f"s_mov_b32 vcc_lo, {mask:#x}\ns_mov_b32 vcc_hi, {mask:#x}")
            lo = [i for i in range(16) if not i & d]
            for i in lo:
                if d == 8 and i + 8 >= nrows: new[i] = cur[i]
                else: B(f"v_cndmask_b32_dpp v{new[i]}, v{cur[i+d]}, v{cur[i]}, vcc {cx} row_mask:0xf bank_mask:0xf")
            B("s_not_b64 vcc, vcc")
            for i in lo:
                if d == 8 and i + 8 >= nrows: B(f"v_mov_b32_dpp v{new[i+d]}, v{cur[i]} {cy} row_mask:0xf bank_mask:0xf")
                else: B(f"v_cndmask_b32_dpp v{new[i+d]}, v{cur[i]}, v{cur[i+d]}, vcc {cy} row_mask:0xf bank_mask:0xf")
            cur = new
    def kmfma(t, c):
        for ks in range(4):
            B(f"v_mfma_f32_16x16x32_bf16 {v(KD+4*t,4)}, {v(OUT+4*ks,4)}, {v(BF+4*ks,4)}, {'0' if ks == 0 and c == 0 else v(KD+4*t,4)}")
    def direct(z, l, ra, rc):
        if l == 1: B(f"v_exp_f32 v{tmp[0]}, v{ra}\nv_rndne_f32 v{tmp[1]}, v{rc}\nv_sub_f32 v{tmp[1]}, v{rc}, v{tmp[1]}")
        else: B(f"v_mul_f32 v{tmp[0]}, {f2u(float(l))}, v{ra}\nv_mul_f32 v{tmp[2]}, {f2u(float(l))}, v{rc}\nv_exp_f32 v{tmp[0]}, v{tmp[0]}\nv_rndne_f32 v{tmp[1]}, v{tmp[2]}\nv_sub_f32 v{tmp[1]}, v{tmp[2]}, v{tmp[1]}")
        B(f"v_cos_f32 v{z}, v{tmp[1]}\nv_sin_f32 v{z+1}, v{tmp[1]}\nv_mul_f32 v{z}, v{z}, v{tmp[0]}\nv_mul_f32 v{z+1}, v{z+1}, v{tmp[0]}\nv_sub_f32 v{neg[z]}, 0, v{z+1}")
    rowof = {}
    for r in range(8): rowof[r] = r; rowof[128 + r] = 8 + r
    for r in range(4): rowof[256 + 2*r] = r; rowof[384 + 2*r] = 4 + r
    for k, l in enumerate([512, 516, 640, 644, 768, 772, 896, 900]): rowof[l] = 8 + k
    for r in range(9): rowof[1024 + 128*r] = r
    reg = {}
    nxt = [70]
    def R(l):
        if l not in reg: reg[l] = nxt[0]; nxt[0] += 2
        return reg[l]
    for l, n in ((8, 47), (1, 58), (128, 59)): neg[R(l)] = n
    def tables(c):
        p = P
        dt, ra, rc = 44, 45, 46
        if c == 0:
            B(f"s_lshl_b32 s38, s36, 16\ns_and_b32 s39, s36, 0xffff0000\ns_cmp_ge_u32 s24, 2\ns_cselect_b32 s38, s39, s38")
            B(f"v_mov_b32 v{dt}, {f2u(L2E)}\nv_mul_f32 v{dt}, s38, v{dt}\nv_exp_f32 v{dt}, v{dt}")
        for k in range(6): B(f"v_and_b32 v{p+k}, 0xffff0000, v{p+6+k}" if c else f"v_lshlrev_b32 v{p+k}, 16, v{p+6+k}")
        if c == 0: B(f"v_cvt_pk_bf16_f32 v{dt}, v{dt}, v{dt}\nv_lshlrev_b32 v{dt}, 16, v{dt}")
        for k in range(4): B(f"v_mul_f32 v{p+k}, v{dt}, v{p+k}")
        B(f"v_mul_f32 v{ra}, {f2u(L2E)}, v{p}\nv_mul_f32 v{rc}, {f2u(1/(2*math.pi))}, v{p+1}")
        W = 68
        cmul(W, p + 4, p + 2)
        direct(R(8), 8, ra, rc); direct(R(1), 1, ra, rc); direct(R(128), 128, ra, rc)
        F = [W, 56]
        put(0, W, True)
        early_steps = [(l, l - 1, 1) for l in range(2, 8)] + [(128 + l, l, 128) for l in range(1, 8)]
        for fi in range(1, 16):
            cmul(F[fi & 1], F[(fi - 1) & 1], R(8)); put(fi, F[fi & 1], True)
            if fi - 1 < len(early_steps):
                z, x, y = early_steps[fi - 1]; cmul(R(z), R(x), R(y))
        transpose(BF)
        B(f"v_mov_b32 v{PBK[bank[0]]}, 0x3f80")
        if useL: wr(0)
        for l in list(range(1, 8)) + list(range(128, 136)): put(rowof[l], R(l))
        s1 = [(256 + 2*l, 128 + l, 128 + l) for l in range(4)]
        for z, x, y in s1[:2]: cmul(R(z), R(x), R(y))
        transpose(OUT)
        for z, x, y in s1[2:]: cmul(R(z), R(x), R(y))
        kmfma(0, c)
        s1 += [(384 + l, 256 + l, 128) for l in (0, 2, 4, 6)] + [(512, 256, 256), (516, 258, 258), (768, 384, 384), (772, 386, 386), (640, 512, 128), (644, 516, 128), (896, 768, 128), (900, 772, 128)]
        for z, x, y in s1[:4]: put(rowof[z], R(z))
        for z, x, y in s1[4:]: cmul(R(z), R(x), R(y)); put(rowof[z], R(z))
        s2 = [(1024, 512, 512), (1280, 640, 640), (1536, 768, 768), (1792, 896, 896), (1152, 1024, 128), (1408, 1280, 128), (1664, 1536, 128), (1920, 1792, 128), (2048, 1024, 1024)]
        z, x, y = s2[0]; cmul(R(z), R(x), R(y))
        transpose(OUT)
        z, x, y = s2[1]; cmul(R(z), R(x), R(y))
        kmfma(1, c)
        for z, x, y in s2[:2]: put(rowof[z], R(z))
        for z, x, y in s2[2:]: cmul(R(z), R(x), R(y)); put(rowof[z], R(z))
        transpose(OUT, 9)
        kmfma(2, c)
    def kput():
        for t in range(3):
            for r in range(4):
                if t == 2 and r == 0: A("s_mov_b32 exec_hi, 0xffff")
                if t == 2 and r == 1: A("s_mov_b32 exec_hi, 0")
                A(f"ds_write_b32 v{DA}, v{KD+4*t+r} offset:{t*1280 + r*80}")
        A("s_mov_b64 exec, -1")
    def publish_u():
        A(f"""
        s_waitcnt vmcnt({1 if opt.get('pf', 0) else 0})
        s_cmp_lg_u32 s96, 0
        s_cbranch_scc1 S_havetag
        """)
        get_nonce(A, 'SA', 8, 60, 96)
        A(f"""
S_havetag:
        s_lshl_b32 s38, s27, 5
        s_add_u32 s38, s38, s26
        s_lshl_b32 s38, s38, 2
        s_add_u32 s38, s38, s24
        s_lshl_b32 s38, s38, 3
        s_add_u32 s38, s38, {FL_U}
        v_mov_b32 v10, s38
        v_mov_b32 v8, s96
        v_mov_b32 v9, s97
        s_mov_b64 exec, 1
        buffer_store_dwordx2 v[8:9], v10, s[56:59], 0 offen sc1
        s_mov_b64 exec, -1
        """)
    ST.mark(A)
    A(f"s_waitcnt vmcnt({5 + (1 if early else 0)}) lgkmcnt(0)\nv_readfirstlane_b32 s36, v26\nv_readfirstlane_b32 s37, v27")
    ST.mark(A)
    def t_hook():
        A(f"s_waitcnt vmcnt({1 if early else 0})\nv_readfirstlane_b32 s96, v30\nv_readfirstlane_b32 s97, v31")
        tpart()
        touch(1 if early else 0)
        A("s_mov_b32 m0, s87")
    def pollissue():
        A(f"""
        v_lshlrev_b32 v6, 4, v12
        s_lshr_b32 s38, s25, 5
        s_lshl_b32 s38, s38, 10
        s_add_u32 s38, s38, {FL_U}
        v_add_u32 v6, s38, v6
        buffer_load_dwordx4 v[8:11], v6, s[56:59], 0 offen sc1
        """)
    def udma():
        A("s_waitcnt vmcnt(0)")
        poll_flags4(A, 'SU', 6, 8, 56, 96, 99, first_issued=True)
        A(f"""
        s_barrier
        v_lshlrev_b32 v6, 6, v12
        s_lshr_b32 s38, s25, 1
        s_lshl_b32 s38, s38, 14
        s_and_b32 s39, s25, 1
        s_lshl_b32 s39, s39, 5
        s_add_u32 s38, s38, s39
        s_lshl_b32 s39, s24, 12
        s_add_u32 s38, s38, s39
        s_lshl_b32 s39, s24, 10
        s_add_u32 m0, s39, {UB[0] + 512}
        s_nop 0
        buffer_load_dwordx4 v6, s[12:15], s38 offen lds
        s_add_u32 m0, s39, {UB[1] + 512}
        s_add_u32 s38, s38, 16
        buffer_load_dwordx4 v6, s[12:15], s38 offen lds
        s_mov_b32 m0, s87
        """)
    tables(0); n0 = len(B.l); tables(1)
    if useL:
        raw = [x.strip() for x in B.l]
        seq = []; pend = []; since = 0; age = 0
        for x in raw:
            if x.startswith('v_mfma'):
                pend.append(x); age = 0; continue
            if pend and (age >= 14 or x.startswith('ds_read')):
                seq.append(f"s_waitcnt lgkmcnt({since})"); seq += pend; pend = []
            seq.append(x); age += 1
            if x.startswith('ds_read'): since = 0
            elif x.startswith('ds_write'): since += 1
            if x.split()[0] in ('v_sin_f32',): seq.append('s_nop 0')
        seq.append(f"s_waitcnt lgkmcnt({since})"); seq += pend
    else:
        seq = schedule(B.l, filler='v_mov_b32 v29, v29')
    print('S table ops', len(B.l), 'scheduled', len(seq), 'nops', seq.count('s_nop 0'), 'fillers', seq.count('v_mov_b32 v29, v29'))
    def keepvcc(f):
        def g():
            A("s_mov_b64 s[28:29], vcc"); f(); A("s_mov_b64 vcc, s[28:29]")
        return g
    firstput = next(i for i, x in enumerate(seq) if 'v_cvt_pk_bf16_f32 v152' in x)
    hk = {firstput: t_hook, int(len(seq) * opt.get('pub_at', 0.2)): publish_u, len(seq) // 2: lambda: ST.mark(A),
          int(len(seq) * opt.get('poll_at', 0.6)): pollissue, int(len(seq) * opt.get('udma_at', 0.75)): keepvcc(udma)}
    nt = opt.get('wd_n', 13); t0_, t1_ = opt.get('wd_span', (0.22, 0.74))
    tpos = {int(len(seq) * (t0_ + (t1_ - t0_) * q / max(1, nt - 1))) + 1: q for q in range(nt)} if opt.get('wdpf', 1) else {}
    for i, x in enumerate(seq):
        if i in hk: hk[i]()
        if i in tpos:
            A(f"s_cmp_ge_u32 s86, {opt.get('wd_wgs', 4)}\ns_cbranch_scc1 S_wt{tpos[i]}\nbuffer_load_dword v250, v248, s[48:51], s85 offen\ns_add_u32 s85, s85, {opt.get('wd_wgs', 4) * 4 * 8192}\nS_wt{tpos[i]}:")
        A(x)
    ST.mark(A)
    A(f"""
    v_and_b32 v6, 15, v12                 ; rho / n
    v_lshrrev_b32 v7, 4, v12              ; kg
    s_lshr_b32 s32, s24, 1                ; ch
    s_and_b32 s27, s24, 1                 ; par
    v_not_b32 v8, v6
    v_and_b32 v8, 3, v8
    v_mul_u32_u24 v8, {CP}, v8
    v_and_b32 v9, 12, v6
    v_lshlrev_b32 v9, 1, v9
    v_sub_u32 v8, v8, v9
    v_lshl_add_u32 v8, v7, 4, v8
    s_mul_i32 s38, s32, {CH}
    s_lshl_b32 s39, s27, 6
    s_sub_u32 s38, s38, s39
    s_add_u32 s38, s38, {2*2044 - 32*127 + 64}
    v_add_u32 v1, s38, v8                 ; vA
    """)
    kput()
    A(f"""
    v_lshlrev_b32 v8, 5, v6
    v_lshl_add_u32 v9, v7, 4, v8
    s_mul_i32 s38, s32, {UB[1]-UB[0]}
    s_add_u32 s38, s38, {UB[0] + 512}
    s_sub_u32 s39, s38, s39
    s_sub_u32 s39, s39, {32*13}
    v_add_u32 v2, s39, v9                 ; vB
    v_lshl_add_u32 v3, v7, 3, v8
    v_add_u32 v4, s38, v3
    v_and_b32 v3, 2, v7
    v_lshl_add_u32 v3, v3, 3, v8
    v_and_b32 v5, 1, v7
    v_lshl_add_u32 v3, v5, 10, v3
    v_lshlrev_b32 v5, 4, v12
    s_lshl_b32 s38, s24, 12
    s_add_u32 s38, s38, {RED}
    v_add_u32 v14, s38, v5
    s_xor_b32 s38, s24, 1
    s_lshl_b32 s38, s38, 12
    s_add_u32 s38, s38, {RED}
    v_add_u32 v15, s38, v5
    s_lshl_b32 s35, s37, 16
    s_and_b32 s38, s37, 0xffff0000
    s_cmp_eq_u32 s32, 1
    s_cselect_b32 s35, s38, s35           ; Dskip (f32)
    s_lshl_b32 s33, s25, 1
    s_add_u32 s33, s33, s32
    s_lshl_b32 s33, s33, 12               ; d*4096
    v_lshlrev_b32 v6, 4, v0
    v_add_u32 v7, {2*CP - 4}, v6
    v_add_u32 v8, {3*CP - 4}, v6
    v_add_u32 v9, {CH + 2*CP - 4}, v6
    v_add_u32 v10, {CH + 3*CP - 4}, v6
    s_waitcnt lgkmcnt(0)
    s_barrier
    """)
    ST.mark(A)
    E = [64, 80]
    for c in range(2):
        for e in range(9):
            A(f"ds_read_b32 v{100 + 20*c + e}, v{GA+e} offset:{2*c*CMPSZ}\nds_read_b32 v{110 + 20*c + e}, v{GA+e} offset:{(2*c+1)*CMPSZ}")
    def copies(c, e, o):
        A(f"""ds_write_b128 v6, {v(e,4)} offset:{c*CH}
        ds_write_b128 v6, {v(o,4)} offset:{c*CH + CP}
        ds_write2_b32 v{7+2*c}, v{e}, v{e+1} offset0:0 offset1:1
        ds_write2_b32 v{7+2*c}, v{e+2}, v{e+3} offset0:2 offset1:3
        ds_write2_b32 v{8+2*c}, v{o}, v{o+1} offset0:0 offset1:1
        ds_write2_b32 v{8+2*c}, v{o+2}, v{o+3} offset0:2 offset1:3""")
    for c in range(2):
        A(f"s_waitcnt lgkmcnt({15 if c == 0 else 6})")
        b = 100 + 20*c
        for e in range(9): A(f"v_add_f32 v{b+e}, v{b+e}, v{b+10+e}")
        for j in range(4): A(f"v_cvt_pk_bf16_f32 v{E[c]+j}, v{b+2*j}, v{b+2*j+1}\nv_cvt_pk_bf16_f32 v{E[c]+8+j}, v{b+2*j+1}, v{b+2*j+2}")
        copies(c, E[c], E[c] + 8)
    A(f"s_cmp_lg_u32 s24, 0\ns_cbranch_scc1 S_nozero\ns_mov_b64 exec, 3")
    for k in range(4): A(f"v_mov_b32 v{96+k}, 0")
    for k in range(6, 11): A(f"v_add_u32 v{k}, 4096, v{k}")
    for c in range(2): copies(c, 96, 96)
    A("s_mov_b64 exec, -1\nS_nozero:\ns_waitcnt vmcnt(0) lgkmcnt(0)\ns_barrier")
    ST.mark(A)
    ACC, BR, AR = 16, [64, 96], 48
    L = Lds(A)
    def rdB(e, j): L.issue(f"ds_read_b128 {v(BR[e&1] + 4*j, 4)}, v2 offset:{512*j + 32*(13 - (1 + 4*e))}", ('B', e, j))
    def rdA(n):
        e, q = divmod(n, 8)
        o = 32 * (127 - 16*q - (1 + 4*e)) - 64; r = AR + 4 * (n % 4)
        L.issue(f"ds_read_b64 {v(r,2)}, v1 offset:{o}", ('A0', n)); L.issue(f"ds_read_b64 {v(r+2,2)}, v1 offset:{o+8}", ('A', n))
    rdA(0)
    for j in range(8): rdB(0, j)
    rdA(1); rdA(2)
    for n in range(32):
        e, q = divmod(n, 8)
        for j in range(q, 8):
            L.need(('A', n), ('B', e, j - q))
            first = (e == 0 and q == 0)
            A(f"v_mfma_f32_16x16x32_bf16 {v(ACC+4*j,4)}, {v(AR+4*(n%4),4)}, {v(BR[e&1]+4*(j-q),4)}, {'0' if first else v(ACC+4*j,4)}")
            if j == q:
                if n + 3 < 32: rdA(n + 3)
                if e < 3 and q < 4: rdB(e + 1, 2*q); rdB(e + 1, 2*q + 1)
    ST.mark(A)
    A("s_cmp_eq_u32 s27, 1\ns_cbranch_scc1 S_epi1")
    for par in range(2):
        if par: A("S_epi1:")
        keep = [j for j in range(8) if (j & 1) == par]; send = [j for j in range(8) if (j & 1) != par]
        for k, j in enumerate(keep): A(f"ds_read_b64 {v(64+2*k,2)}, v4 offset:{512*j}")
        A("s_nop 3")
        for k, j in enumerate(send): A(f"ds_write_b128 v14, {v(ACC+4*j,4)} offset:{k*1024}")
        A("s_waitcnt lgkmcnt(0)\ns_barrier")
        for k, j in enumerate(keep): A(f"ds_read_b128 {v(80+4*k,4)}, v15 offset:{k*1024}")
        for k, j in enumerate(keep):
            for r in range(4):
                src = 64 + 2*k + r // 2
                A(f"v_and_b32 v{96+4*k+r}, 0xffff0000, v{src}" if r & 1 else f"v_lshlrev_b32 v{96+4*k+r}, 16, v{src}")
            for r in range(4): A(f"v_fmac_f32 v{ACC+4*j+r}, s35, v{96+4*k+r}")
        for k, j in enumerate(keep):
            A(f"s_waitcnt lgkmcnt({3-k})")
            for r in range(4): A(f"v_add_f32 v{ACC+4*j+r}, v{ACC+4*j+r}, v{80+4*k+r}")
            A(f"v_cvt_pk_bf16_f32 v{112+2*k}, v{ACC+4*j}, v{ACC+4*j+1}\nv_cvt_pk_bf16_f32 v{113+2*k}, v{ACC+4*j+2}, v{ACC+4*j+3}")
            if k & 1:
                b = 112 + 2*(k-1)
                A(f"s_nop 1\nv_permlane16_swap_b32 v{b}, v{b+2}\nv_permlane16_swap_b32 v{b+1}, v{b+3}")
                A(f"buffer_store_dwordx4 {v(b,4)}, v3, s[16:19], s33 offen offset:{512*keep[k-1]} sc1")
        if par == 0: A("s_branch S_done")
    A(f"""
S_done:
    s_lshl_b32 s38, s25, 2
    s_add_u32 s38, s38, s24
    s_lshl_b32 s38, s38, 3
    s_add_u32 s38, s38, {FL_A}
    v_mov_b32 v10, s38
    v_mov_b32 v8, s96
    v_mov_b32 v9, s97
    s_mov_b64 exec, 1
    s_waitcnt vmcnt(0)
    buffer_store_dwordx2 v[8:9], v10, s[56:59], 0 offen sc1
    s_mov_b64 exec, -1
S_end:
    """)
    ST.finish(A, tsbase)
    A("s_endpgm")
    return nxt[0]
```

```python
NAME = 'gated_mix__ssm_conv_s4__glu_gated_geglu__prompt'
KA = dict(u=0, Are=8, Aim=16, Bre=24, Bim=32, Cre=40, Cim=48, ldt=56, Dsk=64, Bx=72, Wg=80, Wu=88, Wd=96, gw=104, out=112, dbg=120, ws=128)
WS_H, WS_H_SZ = 0x0, 64 * 112 * 1024
WS_U2, WS_U2_SZ = 0x800000, 112 * 16384
WS_AT, WS_AT_SZ = 0xA00000, 448 * 4096
WS_G, WS_G_SZ = 0xC00000, 8192
WS_TS = 0xD00000
SZ_U = 2048 * 448 * 2
SZ_W = 448 * 1792 * 2
SZ_P = 448 * 256 * 2

import os
WSOFF = int(os.environ.get('WSOFF', '0'), 0)
class Asm:
    def __init__(self):
        self.l = []
    def __call__(self, s=''):
        for x in s.split('\n'):
            x = x.strip()
            if not x: continue
            if x.endswith(':') or x.startswith('.'): self.l.append(x)
            else: self.l.append('    ' + x)
    def text(self): return '\n'.join(self.l) + '\n'

def v(a, n=1): return f"v{a}" if n == 1 else f"v[{a}:{a+n-1}]"
def s(a, n=1): return f"s{a}" if n == 1 else f"s[{a}:{a+n-1}]"

def srd(A, d, ptr, size, off=0):
    if ptr == 6: off += WSOFF
    if off:
        A(f"s_add_u32 s{d}, s{ptr}, {off}\ns_addc_u32 s{d+1}, s{ptr+1}, 0")
    else:
        A(f"s_mov_b32 s{d}, s{ptr}\ns_mov_b32 s{d+1}, s{ptr+1}")
    A(f"s_mov_b32 s{d+2}, {size}\ns_mov_b32 s{d+3}, 0x00020000")

def kernel_head(name):
    return f""".globl {name}
.p2align 8
.type {name},@function
{name}:
"""
def kernel_desc(name, nv, ns=96):
    return f""".p2align 6
.amdhsa_kernel {name}
  .amdhsa_next_free_vgpr {nv}
  .amdhsa_next_free_sgpr {ns}
  .amdhsa_accum_offset {(nv + 3) // 4 * 4}
  .amdhsa_group_segment_fixed_size 0
  .amdhsa_kernarg_size 136
  .amdhsa_user_sgpr_count 2
  .amdhsa_user_sgpr_kernarg_segment_ptr 1
  .amdhsa_system_sgpr_workgroup_id_x 1
.end_amdhsa_kernel
"""
def f2u(x):
    import struct
    return '0x%08x' % struct.unpack('<I', struct.pack('<f', x))[0]

def interleave(main, fill, per=None):
    out = []
    n = len(main); k = 0
    for i, m in enumerate(main):
        out.append(m)
        c = per[i] if per else (len(fill) - k + (n - i) - 1) // (n - i)
        for _ in range(c):
            if k < len(fill): out.append(fill[k]); k += 1
    out += fill[k:]
    return out

class Stamps:
    def __init__(self, on): self.on = on; self.n = 0; self.clk = 's_memrealtime' if on == 'rt' else 's_memtime'
    def start(self, A):
        if not self.on: return
        self.n = 1
        A(f"s_mov_b32 s90, s2\n{self.clk} s[88:89]\ns_memrealtime s[92:93]\ns_getreg_b32 s91, hwreg(HW_REG_HW_ID)\ns_waitcnt lgkmcnt(0)\ns_getreg_b32 s89, hwreg(HW_REG_XCC_ID)")
    def mark(self, A):
        if not self.on or self.on == 'span': return
        A(f"{self.clk} s[94:95]\ns_waitcnt lgkmcnt(0)\ns_sub_u32 s94, s94, s88\nv_writelane_b32 v255, s94, {3 + self.n}"); self.n += 1
    def finish(self, A, base=0):
        if not self.on: return
        A("s_waitcnt vmcnt(0)")
        self.mark(A)
        A(f"""s_memrealtime s[94:95]
        s_load_dwordx2 s[60:61], s[0:1], {KA['ws']}
        s_waitcnt lgkmcnt(0)
        v_writelane_b32 v255, s92, 0
        v_writelane_b32 v255, s94, 1
        v_writelane_b32 v255, s91, 2
        v_writelane_b32 v255, s89, 3
        s_add_u32 s60, s60, {WS_TS}
        s_addc_u32 s61, s61, 0
        s_mov_b32 s62, 0x100000
        s_mov_b32 s63, 0x00020000
        s_add_u32 s90, s90, {base}
        s_lshl_b32 s90, s90, 2
        s_add_u32 s90, s90, s24
        s_lshl_b32 s90, s90, 6
        v_mbcnt_lo_u32_b32 v1, -1, 0
        v_lshlrev_b32 v1, 2, v1
        s_mov_b64 exec, 0xffff
        buffer_store_dword v255, v1, s[60:63], s90 offen
        s_waitcnt vmcnt(0)""")
```

```python
from common import *
WS_GP, WS_GP_SZ = 0xC00000, 2048 * 32
WS_FL, WS_FL_SZ = 0xC80000, 0x7800
FL_H, FL_U, FL_A = 0, 0x4000, 0x5c00
SPIN_MAX = 1 << 16

class Vm:
    def __init__(self, A): self.A = A; self.q = []
    def issue(self, ins, tag): self.A(ins); self.q.append(tag)
    def count(self, *tags):
        idx = max((i for i, t in enumerate(self.q) if t in tags), default=-1)
        if idx < 0: return None
        n = len(self.q) - 1 - idx
        self.q = self.q[idx + 1:]
        assert n <= 63
        return n
    def drain(self): self.q = []

def get_nonce(A, lab, vtmp, srd_dbg, sn):
    A(f"""
    s_mov_b32 s{sn+2}, {SPIN_MAX}
    v_mov_b32 v{vtmp+2}, 0
{lab}_nl:
    buffer_load_dwordx2 {v(vtmp,2)}, v{vtmp+2}, s[{srd_dbg}:{srd_dbg+3}], 0 offen sc1
    s_waitcnt vmcnt(0)
    v_readfirstlane_b32 s{sn}, v{vtmp}
    v_readfirstlane_b32 s{sn+1}, v{vtmp+1}
    s_sub_u32 s{sn+2}, s{sn+2}, 1
    s_cbranch_scc1 {lab}_nd
    s_cmp_eq_u32 s{sn}, 0
    s_cbranch_scc0 {lab}_nd
    s_sleep 2
    s_branch {lab}_nl
{lab}_nd:
    """)

def poll_flags(A, lab, vaddr, vtmp, srd_fl, sn, stmp, first_issued=False, sleep=1):
    A(f"s_mov_b32 s{stmp}, {SPIN_MAX}")
    if first_issued: A(f"s_branch {lab}_pc")
    A(f"""
{lab}_pl:
    buffer_load_dwordx2 {v(vtmp,2)}, v{vaddr}, s[{srd_fl}:{srd_fl+3}], 0 offen sc1
    s_waitcnt vmcnt(0)
{lab}_pc:
    v_cmp_ne_u64 vcc, s[{sn}:{sn+1}], {v(vtmp,2)}
    s_sub_u32 s{stmp}, s{stmp}, 1
    s_cbranch_scc1 {lab}_pd
    s_cmp_eq_u64 vcc, 0
    s_cbranch_scc1 {lab}_pd
    s_sleep {sleep}
    s_branch {lab}_pl
{lab}_pd:
    """)

def poll_flags4(A, lab, vaddr, vtmp, srd_fl, sn, stmp, first_issued=False, sleep=1):
    A(f"s_mov_b32 s{stmp}, {SPIN_MAX}")
    if first_issued: A(f"s_branch {lab}_pc")
    A(f"""
{lab}_pl:
    buffer_load_dwordx4 {v(vtmp,4)}, v{vaddr}, s[{srd_fl}:{srd_fl+3}], 0 offen sc1
    s_waitcnt vmcnt(0)
{lab}_pc:
    v_cmp_ne_u64 vcc, s[{sn}:{sn+1}], {v(vtmp,2)}
    v_cmp_ne_u64 s[100:101], s[{sn}:{sn+1}], {v(vtmp+2,2)}
    s_sub_u32 s{stmp}, s{stmp}, 1
    s_cbranch_scc1 {lab}_pd
    s_or_b64 vcc, vcc, s[100:101]
    s_cbranch_scc0 {lab}_pd
    s_sleep {sleep}
    s_branch {lab}_pl
{lab}_pd:
    """)

def spoll_issue(A, off): A(f"s_load_dwordx16 s[64:79], s[80:81], {off} glc")
def spoll(A, lab, off, n, sn, stmp, first_issued=False, sleep=1):
    A(f"s_mov_b32 s{stmp}, {SPIN_MAX}")
    if first_issued: A(f"s_branch {lab}_pc")
    A(f"{lab}_pl:\ns_load_dwordx16 s[64:79], s[80:81], {off} glc\n{lab}_pc:\ns_waitcnt lgkmcnt(0)\ns_sub_u32 s{stmp}, s{stmp}, 1\ns_cbranch_scc1 {lab}_pd")
    for k in range(n):
        A(f"s_cmp_lg_u64 s[{64+2*k}:{65+2*k}], s[{sn}:{sn+1}]\ns_cbranch_scc1 {lab}_pl")
    A(f"{lab}_pd:")
```

```python
from common2 import *
import math
XBUF = [49152, 65536]; WBUF = [0, 16384, 32768]
ACC = 64
FR = [16, 40]
V_XD, V_WGD, V_WUD = 1, 2, 3
V_XR = 4; V_WR = 8; V_ST = 12
NS = 9
SLOT = [32768, 40960, 65536, 73728, 0, 8192, 16384, 24576, 49152]
GACC = 16; HR = 80; ATILE = 57344
V_WD = [1, 252, 253, 254]
NE = 7
def role_fg(A, ST, opt, tsbase=0):
    usepk = opt.get('usepk', True)
    HRS = [104, 160, 168, 112, 120]
    HN = len(HRS)
    GB = [16, 32, 48, 176]
    held = [192 + 8 * i_ for i_ in range(7)] + [64, 72, 128, 136, 80, 88, 144, 152, 96]
    NW = len(held)
    slots = {}
    freeslots = list(range(NS))
    def slot_of(n):
        if n not in slots: slots[n] = freeslots.pop(0)
        return slots[n]
    def release(n): freeslots.append(slots[n])
    A(f"""
    s_load_dwordx2 s[4:5], s[0:1], {KA['u']}
    s_load_dwordx4 s[28:31], s[0:1], {KA['Wg']}
    s_load_dwordx2 s[6:7], s[0:1], {KA['ws']}
    s_load_dwordx2 s[48:49], s[0:1], {KA['Wd']}
    s_load_dwordx4 s[52:55], s[0:1], {KA['out']}
    s_setprio {opt.get('prio_fg', 2)}
    v_lshrrev_b32 v13, 6, v0
    v_and_b32 v0, 63, v0
    v_readfirstlane_b32 s24, v13
    v_lshrrev_b32 v14, 3, v0              ; lane>>3
    v_lshrrev_b32 v15, 4, v0              ; lane>>4
    s_and_b32 s27, s24, 1                 ; wr
    s_lshr_b32 s32, s24, 1                ; wc
    s_lshl_b32 s33, s27, 2
    v_add_u32 v16, s33, v15
    v_and_b32 v17, 7, v0
    v_xor_b32 v17, v17, v16
    v_lshlrev_b32 v17, 4, v17
    v_mov_b32 v18, 896
    v_mad_u32_u24 v{V_XD}, v14, v18, v17
    v_lshlrev_b32 v16, 1, v15
    v_and_b32 v17, 15, v0
    v_xor_b32 v17, v17, v16
    v_lshlrev_b32 v17, 4, v17
    v_mov_b32 v18, 3584
    v_mad_u32_u24 v{V_WGD}, v15, v18, v17
    v_xor_b32 v{V_WUD}, 128, v{V_WGD}
    s_lshl_b32 s34, s25, 4
    s_add_u32 s34, s34, s24
    s_mul_i32 s34, s34, {8*896}
    s_mul_i32 s35, s24, {4*3584}
    s_lshl_b32 s37, s26, 8
    s_add_u32 s35, s35, s37
    s_lshl_b32 s36, s24, 10
    s_and_b32 s85, s25, 3                 ; rbl
    v_bfe_u32 v19, v0, 1, 3
    v_lshl_add_u32 v19, v15, 5, v19
    s_lshl_b32 s38, s85, 3
    v_add_u32 v19, s38, v19
    v_mul_u32_u24 v19, 3584, v19
    v_and_b32 v20, 1, v0
    v_lshl_add_u32 v19, v20, 7, v19
    v_add_u32 v22, s37, v19
    v_and_b32 v19, 31, v0
    v_min_u32 v19, 18, v19
    s_cmp_ge_u32 s26, 7
    s_cselect_b32 s38, 7, 0
    s_sub_u32 s38, s26, s38
    s_lshl_b32 s85, s85, 1
    s_add_u32 s85, s85, s38
    s_cmp_ge_u32 s85, 7
    s_cselect_b32 s86, 7, 0
    s_sub_u32 s85, s85, s86
    s_mov_b32 s60, {'s85' if opt.get('rot', 0) else 0}
    s_mov_b32 s62, s60
    s_mul_i32 s38, s38, 19
    v_add_u32 v19, s38, v19
    v_min_u32 v19, 127, v19
    s_lshl_b32 s38, s25, 7
    v_add_u32 v19, s38, v19
    v_mul_u32_u24 v19, 896, v19
    v_lshrrev_b32 v20, 5, v0
    v_lshl_add_u32 v23, v20, 7, v19
    s_waitcnt lgkmcnt(0)
    """)
    ST.mark(A)
    srd(A, 8, 4, SZ_U); srd(A, 12, 28, SZ_W); srd(A, 16, 30, SZ_W)
    def dmaX(b, i):
        pre = "s_lshl_b32 s61, s60, 7\ns_add_u32 s61, s61, s34\ns_add_u32 s60, s60, 1\ns_cmp_eq_u32 s60, 7\ns_cselect_b32 s60, 0, s60\n" if i == 0 else ''
        return (pre + f"s_add_u32 m0, s36, {XBUF[b & 1] + i * 4096}\n"
                f"s_add_u32 s38, s61, {i * 32 * 896}\n"
                f"buffer_load_dwordx4 v{V_XD}, s[8:11], s38 offen lds")
    def dmaW(st, m, i):
        pre = f"s_mul_i32 s63, s62, {64*3584}\ns_add_u32 s63, s63, s35\ns_add_u32 s62, s62, 1\ns_cmp_eq_u32 s62, 7\ns_cselect_b32 s62, 0, s62\n" if (st & 1) == 0 and m == 0 and i == 0 else ''
        return (pre + f"s_add_u32 m0, s36, {WBUF[st % 3] + m * 8192 + i * 4096}\n"
                f"s_add_u32 s38, s63, {(32 * (st & 1) + 16 * i) * 3584}\n"
                f"buffer_load_dwordx4 v{V_WUD if m else V_WGD}, s[{16 if m else 12}:{19 if m else 15}], s38 offen lds")
    def stW(st): return [dmaW(st, m, i) for i in range(2) for m in range(2)]
    def stX(b): return [dmaX(b, i) for i in range(4)]
    srd(A, 44, 54, 256)
    A(f"""
    s_xor_b32 s33, s24, 3
    s_or_b32 s33, s2, s33
    s_cmp_lg_u32 s33, 0
    s_cbranch_scc1 FG_notag
    s_memrealtime s[40:41]
    v_mov_b32 v28, 0
    s_waitcnt lgkmcnt(0)
    s_or_b32 s40, s40, 1
    v_mov_b32 v26, s40
    v_mov_b32 v27, s41
    s_mov_b64 exec, 1
    buffer_store_dwordx2 v[26:27], v28, s[44:47], 0 offen sc1
    s_mov_b64 exec, -1
FG_notag:
    """)
    if opt.get('pf', 0):
        A(f"""
        s_cmp_eq_u32 s24, 3
        s_cbranch_scc1 FG_pf3
        s_cmp_eq_u32 s24, 2
        s_cbranch_scc1 FG_pf2
        s_cmp_eq_u32 s24, 1
        s_cbranch_scc1 FG_pf1
        buffer_load_dword v24, v22, s[12:15], 0 offen
        s_branch FG_pf3
FG_pf1:
        buffer_load_dword v24, v22, s[16:19], 0 offen
        s_branch FG_pf3
FG_pf2:
        buffer_load_dword v24, v23, s[8:11], 0 offen
FG_pf3:
        """)
    burst12 = opt.get('burst', 20) == 12
    for x in stX(0) + stW(0) + stW(1) + ([] if burst12 else stX(1) + stW(2)): A(x)
    srd(A, 20, 6, WS_H_SZ, WS_H); srd(A, 56, 6, WS_FL_SZ, WS_FL)
    A(f"""
    {'s_waitcnt vmcnt(0)' + chr(10) + 's_endpgm' if opt.get('skip_fg') else ''}
    v_and_b32 v16, 31, v0                 ; t
    v_lshrrev_b32 v17, 5, v0              ; h
    v_bfe_u32 v18, v0, 1, 3               ; (t>>1)&7
    s_lshl_b32 s33, s27, 13
    s_add_u32 s33, s33, {XBUF[0]}
    v_lshlrev_b32 v16, 7, v16
    v_add_u32 v16, s33, v16
    """)
    for k in range(4):
        A(f"v_or_b32 v19, {2*k}, v17\nv_xor_b32 v19, v19, v18\nv_lshl_add_u32 v{V_XR+k}, v19, 4, v16")
    A(f"""
    v_bfe_u32 v16, v0, 4, 1               ; m
    v_bfe_u32 v18, v0, 2, 2               ; r
    v_and_b32 v19, 3, v0                  ; c
    v_lshlrev_b32 v20, 13, v16
    v_lshl_add_u32 v20, v17, 11, v20
    v_lshl_add_u32 v20, v18, 8, v20
    v_lshl_add_u32 v20, v19, 3, v20
    v_lshl_or_b32 v21, v16, 2, v18
    s_lshl_b32 s33, s32, 2
    v_xor_b32 v21, s33, v21
    """)
    for j in range(4):
        A(f"v_xor_b32 v19, {j}, v21\nv_lshl_add_u32 v{V_WR+j}, v19, 5, v20")
    A(f"""
    s_lshl_b32 s33, s25, 1
    s_add_u32 s33, s33, s27
    s_mul_i32 s33, s33, 224
    s_lshl_b32 s37, s26, 3
    s_add_u32 s33, s33, s37
    s_lshl_b32 s37, s32, 2
    s_add_u32 s33, s33, s37
    s_lshl_b32 s39, s33, 10
    v_lshlrev_b32 v{V_ST}, 4, v0
    """)
    def reads(n):
        st, ks = n >> 1, n & 1
        b, ks4 = n >> 2, n & 3
        f = FR[n & 1]
        xr = [f"ds_read_b128 {v(f + 4*tt, 4)}, v{V_XR+ks4} offset:{XBUF[b & 1] - XBUF[0] + tt * 4096}" for tt in range(2)]
        wr = [[f"ds_read_b64_tr_b16 {v(f + 8 + 4*j + 2*p, 2)}, v{V_WR+j} offset:{WBUF[st % 3] + ks * 4096 + p * 1024}" for p in range(2)] for j in range(4)]
        return [xr[0]] + wr[0] + [xr[1]] + wr[1] + wr[2] + wr[3]
    def mfmas(n):
        f = FR[n & 1]
        out = []
        for j in range(4):
            for tt in range(2):
                a = ACC + (tt * 4 + j) * 16
                out.append(f"v_mfma_f32_32x32x16_bf16 {v(a,16)}, {v(f+8+4*j,4)}, {v(f+4*tt,4)}, {'0' if n == 0 else v(a, 16)}")
        return out
    A(f"s_waitcnt vmcnt({4 if burst12 else 12})\ns_barrier")
    ST.mark(A)
    for x in reads(0): A(x)
    gsetup = f"""
    s_cmp_ge_u32 s26, 7
    s_cselect_b32 s42, 1, 0               ; half
    s_mul_i32 s43, s42, 7
    s_sub_u32 s43, s26, s43               ; ct
    s_lshl_b32 s50, s25, 1
    s_add_u32 s50, s50, s42               ; rt
    s_mov_b32 s8, s48
    s_mov_b32 s9, s49
    s_mov_b32 s10, {SZ_W if not opt.get('fakeW') else 0}
    s_lshl_b32 s36, s24, 11
    v_lshrrev_b32 v14, 3, v0
    v_bfe_u32 v15, v0, 4, 1
    v_lshlrev_b32 v15, 2, v15
    v_and_b32 v13, 7, v0
    v_xor_b32 v13, v13, v15
    v_lshlrev_b32 v13, 4, v13
    v_mov_b32 v15, 896
    v_mad_u32_u24 v1, v14, v15, v13
    v_lshl_add_u32 v2, v14, 12, v13
    s_lshl_b32 s51, s43, 7
    s_mul_i32 s83, s24, {64*896}
    s_add_u32 s83, s83, s51
    s_add_u32 s82, s83, {28*64*896}
    s_mul_i32 s34, s85, {4*64*896}
    s_add_u32 s34, s34, s83
    v_add_u32 v{V_WD[1]}, {8*896 - 1024}, v1
    v_add_u32 v{V_WD[2]}, {16*896}, v1
    v_add_u32 v{V_WD[3]}, {24*896 - 1024}, v1
    """
    gsetup2 = f"""
    v_bfe_u32 v248, v0, 4, 1              ; c16
    v_lshrrev_b32 v249, 5, v0             ; h
    v_bfe_u32 v250, v0, 2, 2              ; r
    v_and_b32 v251, 3, v0
    v_lshl_add_u32 v15, v249, 2, v250
    v_lshlrev_b32 v15, 7, v15
    v_lshl_add_u32 v15, v251, 3, v15
    v_and_b32 v249, 2, v250
    v_xor_b32 v249, v249, v248
    v_lshl_add_u32 v15, v249, 5, v15      ; tile-0 address inside a 2 KB stage
    s_lshl_b32 s33, s32, 6
    v_xor_b32 v13, s33, v15
    v_add_u32 v13, s36, v13
    v_xor_b32 v14, 64, v13
    v_add_u32 v3, 65536, v13
    v_min_u32 v248, 13, v0
    v_and_b32 v249, 1, v248
    v_lshrrev_b32 v248, 1, v248
    v_lshlrev_b32 v248, 10, v248
    v_lshl_add_u32 v248, v249, 4, v248
    s_lshl_b32 s33, s50, 5
    s_add_u32 s33, s33, {FL_U}
    v_add_u32 v248, s33, v248
    v_mov_b32 v249, 0
    """
    gsetup3 = f"""
    s_mul_i32 s40, s50, {2*112*1024}
    s_lshl_b32 s33, s24, 12
    s_add_u32 s40, s40, s33
    s_add_u32 s84, s40, {28*4096}
    s_lshl_b32 s35, s85, 14
    s_add_u32 s35, s35, s40
    s_mul_i32 s41, s27, {112*1024}
    v_add_u32 v5, s41, v{V_ST}
    s_xor_b32 s41, s41, {112*1024}
    v_add_u32 v11, s41, v{V_ST}
    v_xor_b32 v8, 64, v3
    s_lshl_b32 s33, s27, 6
    v_xor_b32 v9, s33, v15
    s_lshl_b32 s33, s32, 12
    s_add_u32 s33, s33, {ATILE}
    v_add_u32 v9, s33, v9
    s_lshl_b32 s33, s25, 1
    s_add_u32 s33, s33, s27
    s_lshl_b32 s33, s33, 9
    s_lshl_b32 s38, s26, 1
    s_add_u32 s38, s38, s32
    s_and_b32 s37, s38, 3
    s_lshl_b32 s37, s37, 7
    s_add_u32 s33, s33, s37
    s_lshr_b32 s38, s38, 2
    s_lshl_b32 s38, s38, 3
    s_add_u32 s33, s33, s38
    v_mov_b32 v10, s33
    s_lshl_b32 s33, s50, 2
    s_add_u32 s33, s33, s24
    s_lshl_b32 s33, s33, 7
    s_add_u32 s80, s56, s33
    s_addc_u32 s81, s57, 0
    v_lshlrev_b32 v7, 4, v0
    s_lshl_b32 s33, s43, 10
    s_add_u32 s33, s33, {FL_A}
    v_add_u32 v7, s33, v7
    v_and_b32 v4, 31, v0
    """
    VM = Vm(A)
    def jof(n): return (n & 1) + (2 if n >= 14 else 0)
    def ldW(n):
        pre = ''
        if (n & 1) == 0 and n > 0:
            pre = f"s_add_u32 s34, s34, {4*64*896}\ns_cmp_ge_u32 s34, s82\ns_cselect_b32 s34, s83, s34\n"
            if n == 14: pre += f"s_add_u32 s34, s34, {32*896}\ns_add_u32 s82, s82, {32*896}\ns_add_u32 s83, s83, {32*896}\n"
        a, b = (V_WD[0], V_WD[1]) if (n & 1) == 0 else (V_WD[2], V_WD[3])
        return [(pre + f"s_add_u32 m0, s36, {SLOT[slot_of(n)]}\ns_nop 0\nbuffer_load_dwordx4 v{a}, s[8:11], s34 offen lds", ('W', n)),
                (f"buffer_load_dwordx4 v{b}, s[8:11], s34 offen offset:1024 lds", ('W', n))]
    def ldH(n):
        pre = ''
        if (n & 1) == 0 and n > 0:
            pre = f"s_add_u32 s35, s35, {4*4096}\ns_cmp_ge_u32 s35, s84\ns_cselect_b32 s35, s40, s35\n"
        return [(pre + f"buffer_load_dwordx4 {v(HRS[n % HN], 4)}, v5, s[20:23], s35 offen offset:{jof(n) * 1024}", ('H', n)),
                (f"buffer_load_dwordx4 {v(HRS[n % HN] + 4, 4)}, v11, s[20:23], s35 offen offset:{jof(n) * 1024}", ('H', n))]
    def wreg(n): return held[n % NW]
    def greads(n):
        f = wreg(n); o = SLOT[slot_of(n)]
        regs = (3, 8) if o >= 65536 else (13, 14)
        return [f"ds_read_b64_tr_b16 {v(f + 4*bd + 2*p, 2)}, v{regs[bd]} offset:{o % 65536 + p * 1024}" for bd in range(2) for p in range(2)]
    def vwait(*tags, extra=''):
        c = VM.count(*tags)
        if c is not None or extra: A("s_waitcnt " + (f"vmcnt({c}) " if c is not None else '') + extra)
    for n in range(28):
        dm = []
        if n & 1:
            sp = (n + 1) >> 1
            if sp <= 13:
                young = 0
                if sp == 1: young = 8
                else:
                    if sp + 1 <= 13: young += 4
                    if (sp + 1) % 2 == 0 and (sp + 1) // 2 <= 6: young += 4
                    if sp == 13: young += len(VM.q)
                A(f"s_waitcnt vmcnt({young}) lgkmcnt(0)\ns_barrier")
                if opt.get('stage_stamps') and sp % 2 == 0: ST.mark(A)
                if sp + 2 <= 13: dm += stW(sp + 2)
                if sp % 2 == 0 and sp // 2 + 1 <= 6: dm += stX(sp // 2 + 1)
            else:
                A("s_waitcnt lgkmcnt(0)\ns_barrier")
            pend = dm[len(dm)//2:]; dm = dm[:len(dm)//2]
        else:
            A("s_waitcnt lgkmcnt(0)")
            if n > 0: dm = pend
            elif burst12: dm = stX(1) + stW(2)
        rd = reads(n + 1) if n < 27 else []
        ex = [x for m_ in {23: [0, 1], 24: [2, 3], 26: [4, 5], 27: [6, 7, 8]}.get(n, []) for x in ldW(m_)]
        if n == 25: ex = [("buffer_load_dwordx2 v[250:251], v249, s[44:47], 0 offen sc1", 'tag')]
        if n == 27: ex.append(("buffer_load_dwordx4 v[56:59], v248, s[56:59], 0 offen sc1", 'fu'))
        di = 0
        for i, m in enumerate(mfmas(n)):
            A(m)
            for x in rd[2*i:2*i+2]: A(x)
            if i == 1 and n in (23, 25, 27): A({23: gsetup, 25: gsetup2, 27: gsetup3}[n])
            if i >= 3 and di < len(dm): A(dm[di]); di += 1
            if ex and i >= (4 if n < 27 else 1): VM.issue(*ex.pop(0))
        for x in dm[di:]: A(x)
        for x in ex: VM.issue(*x)
    ST.mark(A)
    k2 = -2.0 * math.sqrt(2.0 / math.pi) * math.log2(math.e)
    C1, C2, ONE = 28, 30, 44
    if 'prio_epi' in opt: A(f"s_setprio {opt['prio_epi']}")
    A(f"""
    v_mov_b32 v{C1}, {f2u(k2)}
    v_mov_b32 v{C1+1}, {f2u(k2)}
    v_mov_b32 v{C2}, {f2u(k2*0.044715)}
    v_mov_b32 v{C2+1}, {f2u(k2*0.044715)}
    v_mov_b32 v{ONE}, 1.0
    v_mov_b32 v{ONE+1}, 1.0
    """)
    def flag(off):
        VM.issue(f"s_mov_b64 exec, 1\nbuffer_store_dwordx2 v[50:51], v10, s[56:59], 0 offen offset:{off} sc1\ns_mov_b64 exec, -1", ('flag', off))
    E1, E2, PER = opt.get('e1', 1), opt.get('e2', 7), opt.get('e_per', 5)
    order = [(tt, j) for j in range(4) for tt in range(2)]
    wq = []
    for idx, (tt, j) in enumerate(order):
        a = ACC + (tt * 4 + j) * 16
        T = 16 + 16 * (idx & 1)
        O = T + 8
        if idx == E1:
            if opt.get('estamp'): ST.mark(A)
            vwait(('W', 8), 'tag', 'fu')
            if opt.get('estamp'): ST.mark(A)
            for n_ in range(NS):
                for x in greads(n_): A(x)
            A(f"v_readfirstlane_b32 s96, v250\nv_readfirstlane_b32 s97, v251\ns_nop 3\ns_cmp_lg_u32 s96, 0\ns_cbranch_scc1 FG_havetag")
            get_nonce(A, 'FG', 60, 44, 96)
            A("FG_havetag:\nv_mov_b32 v50, s96\nv_mov_b32 v51, s97")
            if not opt.get('skip_s'): poll_flags4(A, 'FGU', 248, 56, 56, 96, 99, first_issued=True, sleep=8)
            A(f"v_lshlrev_b32 v249, 5, v4\ns_lshl_b32 s33, s50, 1\ns_add_u32 s33, s33, s27\ns_lshl_b32 s33, s33, 10")
            srd(A, 16, 6, WS_GP_SZ, WS_GP)
            VM.issue("buffer_load_dwordx4 v[56:59], v249, s[16:19], s33 offen", 'gp')
            VM.issue("buffer_load_dwordx3 v[60:62], v249, s[16:19], s33 offen offset:16", 'gp')
        if idx == E1 + 1:
            A("s_waitcnt lgkmcnt(0)")
            for n_ in range(NS): release(n_)
            wq = [x for n_ in range(NS, 2 * NS) for x in ldW(n_)]
        if idx == E2:
            assert not wq
            if opt.get('estamp'): ST.mark(A)
            vwait(('st', 3), ('W', NW - 1))
            if opt.get('estamp'): ST.mark(A)
            flag(0)
            for n_ in range(NS, NW):
                for x in greads(n_): A(x)
        for _ in range(PER):
            if wq: VM.issue(*wq.pop(0))
        if usepk:
            for p in range(4): A(f"v_pk_mul_f32 {v(T+2*p,2)}, {v(a+2*p,2)}, {v(a+2*p,2)}")
            for p in range(4): A(f"v_pk_fma_f32 {v(T+2*p,2)}, {v(T+2*p,2)}, {v(C2,2)}, {v(C1,2)}")
            for p in range(4): A(f"v_pk_mul_f32 {v(T+2*p,2)}, {v(T+2*p,2)}, {v(a+2*p,2)}")
            for p in range(8): A(f"v_exp_f32 v{T+p}, v{T+p}")
            for p in range(4): A(f"v_pk_mul_f32 {v(a+2*p,2)}, {v(a+2*p,2)}, {v(a+8+2*p,2)}")
            for p in range(4): A(f"v_pk_add_f32 {v(T+2*p,2)}, {v(T+2*p,2)}, {v(ONE,2)}")
            for p in range(8): A(f"v_rcp_f32 v{T+p}, v{T+p}")
            A("s_nop 0")
            for p in range(4): A(f"v_pk_mul_f32 {v(a+2*p,2)}, {v(a+2*p,2)}, {v(T+2*p,2)}")
        else:
            for p in range(8): A(f"v_mul_f32 v{T+p}, v{a+p}, v{a+p}")
            for p in range(8): A(f"v_fma_f32 v{T+p}, v{T+p}, v{C2}, v{C1}")
            for p in range(8): A(f"v_mul_f32 v{T+p}, v{T+p}, v{a+p}")
            for p in range(8): A(f"v_exp_f32 v{T+p}, v{T+p}")
            for p in range(8): A(f"v_mul_f32 v{a+p}, v{a+p}, v{a+8+p}")
            for p in range(8): A(f"v_add_f32 v{T+p}, 1.0, v{T+p}")
            for p in range(8): A(f"v_rcp_f32 v{T+p}, v{T+p}")
            A("s_nop 0")
            for p in range(8): A(f"v_mul_f32 v{a+p}, v{a+p}, v{T+p}")
        for p in range(4): A(f"v_cvt_pk_bf16_f32 v{O+p}, v{a+2*p}, v{a+2*p+1}")
        VM.issue(f"s_add_u32 s38, s39, {(tt * 112 + j) * 1024}\nbuffer_store_dwordx4 {v(O,4)}, v{V_ST}, s[20:23], s38 offen {opt.get('hsc', 'sc1')}", ('st', idx))
    ST.mark(A)
    if opt.get('f_only'):
        ST.finish(A, tsbase); A("s_endpgm"); return
    A(f"""
    s_setprio {opt.get('prio_g', 0)}
    v_add_f32 v56, v56, v57
    v_add_f32 v58, v58, v59
    v_add_f32 v60, v60, v61
    v_add_f32 v56, v56, v58
    v_add_f32 v60, v60, v62
    v_add_f32 v56, v56, v60
    v_cvt_pk_bf16_f32 v56, v56, v56
    v_lshlrev_b32 v56, 16, v56
    v_mul_f32 v56, {f2u(-math.log2(math.e))}, v56
    v_exp_f32 v6, v56
    s_waitcnt lgkmcnt(0)
    s_load_dwordx16 s[64:79], s[80:81], 0 glc
    v_add_f32 v6, 1.0, v6
    v_rcp_f32 v6, v6
    """)
    for n_ in range(NS, NW): release(n_)
    srd(A, 12, 6, WS_AT_SZ, WS_AT)
    A("v_cvt_pk_bf16_f32 v6, v6, v6\nv_lshlrev_b32 v6, 16, v6")
    ST.mark(A)
    spoll(A, 'FGH', 0, 7, 96, 99, first_issued=True)
    ST.mark(A)
    for n in range(HN - 1):
        for x in ldH(n): VM.issue(*x)
    atdma = f"""s_lshl_b32 s33, s43, 3
            s_add_u32 s33, s33, s24
            s_lshl_b32 s33, s33, 15
            s_lshl_b32 s38, s50, 7
            s_add_u32 s33, s33, s38
            s_lshl_b32 s39, s24, 10
            s_add_u32 m0, s39, {ATILE}
            s_add_u32 s38, s33, {32*4096}
            buffer_load_dwordx4 v2, s[12:15], s33 offen lds
            s_add_u32 m0, s39, {ATILE + 4096}
            s_nop 0
            buffer_load_dwordx4 v2, s[12:15], s38 offen lds"""
    RD = 2
    PB_ISSUE = opt.get('pb_issue', 7); PB_CHECK = 14 - (HN - 1)
    LP = 28 - HN
    for n in range(28):
        vwait(('H', n), ('W', n + RD), extra="lgkmcnt(4)" if NW <= n < 27 else "lgkmcnt(0)" if n == 27 else '')
        if n == 0: VM.count(('st', 7)); flag(64)
        if n == PB_CHECK:
            if opt.get('bstamp'): ST.mark(A)
            spoll(A, 'FGB', 64, 7, 96, 99, first_issued=True)
            if opt.get('bstamp'): ST.mark(A)
        if n == 27:
            vwait('poll')
            A(f"""
            v_cmp_ne_u64 vcc, s[96:97], v[248:249]
            v_cmp_ne_u64 s[100:101], s[96:97], v[250:251]
            s_nop 1
            s_or_b64 vcc, vcc, s[100:101]
            s_cselect_b32 s98, {0 if opt.get('skip_s') else 1}, 0
            s_cmp_lg_u32 s98, 0
            s_cbranch_scc1 FG_atlater
            """)
            A(atdma)
            A("FG_atlater:")
        rd = greads(n + RD) if NW <= n + RD < 28 else []
        ld = ldH(n + HN - 1) if n + HN - 1 < 28 else []
        if n >= NW: release(n)
        lw = []
        m_ = max(slots) + 1
        if m_ < 28 and freeslots and n >= opt.get('w_from', 0): lw = ldW(m_)
        f = wreg(n)
        ldq = ld + lw
        bi = 0
        for bd in range(2):
            for bt in range(2):
                a = GB[bd * 2 + bt]
                A(f"v_mfma_f32_32x32x16_bf16 {v(a,16)}, {v(f+4*bd,4)}, {v(HRS[n%HN]+4*bt,4)}, {'0' if n == 0 else v(a,16)}")
                if bi < 2:
                    for x in rd[2*bi:2*bi+2]: A(x)
                if bi < len(ldq): VM.issue(*ldq[bi])
                bi += 1
        if n == PB_ISSUE: spoll_issue(A, 64)
        if n == LP: VM.issue("buffer_load_dwordx4 v[248:251], v7, s[56:59], 0 offen sc1", 'poll')
    ST.mark(A)
    RS = [4, 5, 6, 7, 0, 1]
    A(f"""
    v_add_u32 v13, s36, v{V_ST}
    v_mov_b32 v11, 896
    v_lshrrev_b32 v5, 5, v0
    v_lshlrev_b32 v5, 4, v5
    v_mad_u32_u24 v11, v4, v11, v5
    v_xor_b32 v14, 2048, v13
    v_xor_b32 v15, 4096, v13
    v_xor_b32 v10, 6144, v13
    s_nop 3
    """)
    for b in range(1, 4):
        for k in range(4):
            A(f"ds_write_b128 v13, {v(GB[b] + 4*k, 4)} offset:{SLOT[RS[2*(b-1) + (k >> 1)]] + (k & 1)*1024}")
    A("s_cmp_eq_u32 s98, 0\ns_cbranch_scc1 FG_atdone")
    poll_flags4(A, 'FGA', 7, 248, 56, 96, 99, sleep=opt.get('sleep_a', 4))
    A(atdma)
    A(f"""
FG_atdone:
    s_lshl_b32 s33, s50, 1
    s_add_u32 s33, s33, s27
    s_mul_i32 s33, s33, {32*896}
    s_lshl_b32 s38, s43, 7
    s_add_u32 s33, s33, s38
    s_lshl_b32 s38, s32, 6
    s_add_u32 s33, s33, s38
    s_mov_b32 s39, 0xffff0000
    """)
    srd(A, 20, 52, SZ_U)
    AT_, RB, TM, PK = 80, 96, 144, 160
    G0 = GB[0]
    A("s_waitcnt vmcnt(0) lgkmcnt(0)\ns_barrier")
    for j in range(4):
        A(f"ds_read_b64_tr_b16 {v(AT_ + 2*j, 2)}, v9 offset:{j*1024}")
    for b in range(3):
        for k in range(4):
            A(f"ds_read_b128 {v(RB + 16*b + 4*k, 4)}, v{[14, 15, 10][b]} offset:{SLOT[RS[2*b + (k >> 1)]] + (k & 1)*1024}")
    A("s_waitcnt lgkmcnt(12)")
    for k in range(16):
        src = AT_ + k // 2
        if k & 1: A(f"v_and_b32 v{TM+k}, s39, v{src}")
        else: A(f"v_lshlrev_b32 v{TM+k}, 16, v{src}")
    if opt.get('endpk', 1):
        A("v_mov_b32 v7, v6")
        for b in range(3):
            A(f"s_waitcnt lgkmcnt({4*(2-b)})")
            for k in range(0, 16, 2): A(f"v_pk_add_f32 {v(G0+k,2)}, {v(G0+k,2)}, {v(RB+16*b+k,2)}")
        for k in range(0, 16, 2): A(f"v_pk_add_f32 {v(TM+k,2)}, {v(TM+k,2)}, {v(G0+k,2)} neg_lo:[0,1] neg_hi:[0,1]")
        for k in range(0, 16, 2): A(f"v_pk_fma_f32 {v(G0+k,2)}, v[6:7], {v(TM+k,2)}, {v(G0+k,2)}")
    else:
        for b in range(3):
            A(f"s_waitcnt lgkmcnt({4*(2-b)})")
            for k in range(16): A(f"v_add_f32 v{G0+k}, v{G0+k}, v{RB+16*b+k}")
        for k in range(16): A(f"v_sub_f32 v{TM+k}, v{TM+k}, v{G0+k}")
        for k in range(16): A(f"v_fmac_f32 v{G0+k}, v6, v{TM+k}")
    for k in range(8): A(f"v_cvt_pk_bf16_f32 v{PK+k}, v{G0+2*k}, v{G0+1+2*k}")
    A("s_nop 1")
    for jj in range(2):
        A(f"v_permlane32_swap_b32 v{PK+4*jj}, v{PK+2+4*jj}\nv_permlane32_swap_b32 v{PK+1+4*jj}, v{PK+3+4*jj}")
    for jj in range(2):
        A(f"buffer_store_dwordx4 {v(PK+4*jj,4)}, v11, s[20:23], s33 offen offset:{32*jj} {opt.get('outsc', '')}")
    ST.finish(A, tsbase)
    A("s_endpgm")
```

```python
from common2 import *
from sched import schedule
import math
CP = 4160; CH = 4 * CP
RED = 2 * CH
CMP = RED + 16384; CMPSZ = 41 * 80
UB = [CMP + 4 * CMPSZ, CMP + 4 * CMPSZ + 4608]
L2E = math.log2(math.e)
assert UB[1] + 4608 <= 81920

class Lds:
    def __init__(self, A): self.A = A; self.q = []
    def issue(self, ins, tag): self.A(ins); self.q.append(tag)
    def need(self, *tags):
        idx = max((i for i, t in enumerate(self.q) if t in tags), default=-1)
        if idx < 0: return
        n = len(self.q) - 1 - idx
        self.A(f"s_waitcnt lgkmcnt({min(n, 15)})")
        self.q = self.q[idx + 1:] if n <= 15 else self.q[len(self.q) - 15:]

def role_s(A, ST, opt, tsbase=0):
    if opt.get('skip_s'): A('s_endpgm')
    P, GA, DA, GW, XG, TR = 32, 16, 28, 48, 16, 244
    A(f"""
    s_load_dwordx8 s[40:47], s[0:1], {KA['Are']}
    s_load_dwordx8 s[48:55], s[0:1], {KA['Cre']}
    s_load_dwordx2 s[4:5], s[0:1], {KA['u']}
    s_load_dwordx4 s[16:19], s[0:1], {KA['Wd']}
    s_load_dwordx4 s[56:59], s[0:1], {KA['dbg']}
    s_setprio {opt.get('prio_s0', 3)}
    v_lshrrev_b32 v13, 6, v0
    v_lshlrev_b32 v1, 2, v0
    v_readfirstlane_b32 s24, v13
    s_lshl_b32 s33, s25, 10
    s_lshl_b32 s34, s25, 2
    v_and_b32 v12, 63, v0                 ; lane
    v_lshrrev_b32 v14, 3, v12
    v_bfe_u32 v15, v12, 4, 1
    v_lshlrev_b32 v15, 1, v15
    v_and_b32 v3, 7, v12
    v_xor_b32 v3, v3, v15
    v_lshlrev_b32 v3, 4, v3
    v_mov_b32 v15, 896
    v_mad_u32_u24 v3, v14, v15, v3
    v_xor_b32 v4, 64, v3                  ; rows 8-15
    s_lshl_b32 s38, s26, 2
    s_add_u32 s38, s38, s24
    s_mul_i32 s38, s38, {16*896}
    s_lshl_b32 s39, s27, 7
    s_add_u32 s31, s38, s39               ; X soffset
    s_lshr_b32 s35, s24, 1
    s_mul_i32 s35, s35, {UB[1]-UB[0]}
    s_and_b32 s38, s24, 1
    s_lshl_b32 s38, s38, 11
    s_add_u32 s35, s35, s38
    s_add_u32 s35, s35, {UB[0]+512}
    v_and_b32 v7, 3, v12
    v_lshlrev_b32 v6, 5, v7
    v_mov_b32 v29, 0
    s_mov_b32 s10, {SZ_P}
    s_mov_b32 s11, 0x00020000
    s_mov_b32 s14, 896
    s_mov_b32 s15, 0x00020000
    s_waitcnt lgkmcnt(0)
    """)
    ST.mark(A)
    A(f"s_mov_b32 s12, s52\ns_mov_b32 s13, s53\nbuffer_load_dword v26, v29, s[12:15], s34 offen")
    for k in range(6):
        A(f"s_mov_b32 s8, s{40+2*k}\ns_mov_b32 s9, s{41+2*k}\nbuffer_load_dword v{P+6+k}, v1, s[8:11], s33 offen")
    A(f"s_setprio {opt.get('prio_s1', opt.get('prio_s', 1))}")
    srd(A, 8, 4, SZ_U); srd(A, 60, 56, 256)
    A("s_mov_b32 s52, s54\ns_mov_b32 s53, s55\ns_mov_b32 s54, s18\ns_mov_b32 s55, s19\ns_mov_b32 s42, 896\ns_mov_b32 s43, 0x00020000\ns_mov_b32 s45, s31\ns_mov_b32 s46, s39\nv_mov_b32 v25, v6")
    late = f"""
    s_mov_b32 s40, s52
    s_mov_b32 s41, s53
    buffer_load_dword v27, v29, s[40:43], s34 offen
    s_mov_b32 m0, s35
    s_add_u32 s44, s45, {8*896}
    buffer_load_dwordx4 v3, s[8:11], s45 offen lds
    s_add_u32 m0, s35, 1024
    s_mov_b32 s40, s54
    buffer_load_dwordx4 v4, s[8:11], s44 offen lds
    s_mov_b32 s41, s55
    buffer_load_dwordx2 v[30:31], v29, s[60:63], 0 offen sc1
    buffer_load_dwordx4 {v(GW,4)}, v25, s[40:43], s46 offen
    buffer_load_dwordx4 {v(GW+4,4)}, v25, s[40:43], s46 offen offset:16
    """
    LATE = opt.get('late_at', 0.07)
    if not LATE: A(late)
    A(f"""
    s_setprio {opt.get('prio_s', 1)}
    s_mov_b32 s6, s58
    s_mov_b32 s7, s59
    """)
    srd(A, 48, 16, SZ_W)
    srd(A, 12, 6, WS_U2_SZ, WS_U2); srd(A, 16, 6, WS_AT_SZ, WS_AT); srd(A, 20, 6, WS_GP_SZ, WS_GP); srd(A, 56, 6, WS_FL_SZ, WS_FL)
    ST.mark(A)
    A(f"""
    s_lshl_b32 s85, s87, 2
    s_add_u32 s85, s85, s24
    s_lshl_b32 s85, s85, 13
    v_lshlrev_b32 v2, 7, v12
    v_mov_b32 v6, {CMP + 64}
    ds_write_b32 v6, v29
    ds_write_b32 v6, v29 offset:{CMPSZ}
    ds_write_b32 v6, v29 offset:{2*CMPSZ}
    ds_write_b32 v6, v29 offset:{3*CMPSZ}
    v_and_b32 v6, 127, v0
    v_lshlrev_b32 v6, 2, v6
    v_lshrrev_b32 v5, 7, v0
    v_mov_b32 v14, {UB[1]-UB[0]}
    v_mad_u32_u24 v6, v5, v14, v6
    v_add_u32 v6, {UB[0]}, v6
    ds_write_b32 v6, v29
    v_and_b32 v6, 15, v12
    v_lshrrev_b32 v5, 4, v12              ; g
    v_mul_u32_u24 v8, 320, v5
    v_lshl_add_u32 v8, v6, 2, v8
    s_mul_i32 s39, s24, {CMPSZ}
    s_add_u32 s39, s39, {CMP}
    v_add_u32 v{DA}, s39, v8
    v_bfe_u32 v6, v12, 2, 2
    v_and_b32 v8, 1, v5                   ; tb
    v_lshl_add_u32 v9, v8, 3, v6
    v_lshlrev_b32 v9, 7, v9
    v_lshl_add_u32 v9, v7, 3, v9
    v_add_u32 v9, s35, v9
    v_lshrrev_b32 v10, 1, v6
    v_lshl_or_b32 v10, v8, 1, v10
    v_lshrrev_b32 v11, 1, v5
    v_xor_b32 v10, v10, v11
    v_lshl_add_u32 v13, v10, 5, v9
    v_xor_b32 v10, 2, v10
    v_lshl_add_u32 v14, v10, 5, v9
    v_lshl_add_u32 v10, v11, 2, v6
    v_lshlrev_b32 v10, 14, v10
    v_lshl_add_u32 v10, v8, 6, v10
    v_lshl_add_u32 v15, v7, 4, v10
    v_lshrrev_b32 v5, 2, v12
    v_bfe_u32 v6, v5, 1, 1
    v_bfe_u32 v8, v5, 3, 1
    v_lshl_or_b32 v6, v8, 1, v6
    v_xor_b32 v6, v6, v7
    v_lshlrev_b32 v6, 5, v6
    v_lshl_add_u32 v6, v5, 7, v6
    v_add_u32 v6, s35, v6
    v_lshlrev_b32 v5, 5, v5
    s_lshl_b32 s38, s27, 18
    s_lshl_b32 s39, s26, 2
    s_add_u32 s39, s39, s24
    s_lshl_b32 s32, s39, 7
    s_add_u32 s30, s38, s32               ; U2 soffset
    s_lshl_b32 s39, s39, 9
    s_lshl_b32 s32, s27, 2
    s_add_u32 s31, s39, s32
    s_add_u32 s32, s30, {8*16384}
    """)
    def tpart():
        A(f"""
        s_waitcnt vmcnt(0)
        ds_read_b64_tr_b16 {v(TR,2)}, v13
        ds_read_b64_tr_b16 {v(TR+2,2)}, v13 offset:512
        ds_read_b64_tr_b16 {v(TR+4,2)}, v14
        ds_read_b64_tr_b16 {v(TR+6,2)}, v14 offset:512
        ds_read_b128 {v(XG,4)}, v6
        ds_read_b128 {v(XG+4,4)}, v6 offset:16
        v_readfirstlane_b32 s96, v30
        v_readfirstlane_b32 s97, v31
        v_readfirstlane_b32 s37, v27
        v_mov_b32 v8, 0
        s_waitcnt lgkmcnt(2)
        buffer_store_dwordx4 {v(TR,4)}, v15, s[12:15], s30 offen sc1
        buffer_store_dwordx4 {v(TR+4,4)}, v15, s[12:15], s32 offen sc1
        s_waitcnt lgkmcnt(0)
        """)
        for i in range(8): A(f"v_dot2_f32_bf16 v8, v{XG+i}, v{GW+i}, v8")
        A(f"""
        s_nop 2
        v_add_f32_dpp v8, v8, v8 quad_perm:[1,0,3,2] row_mask:0xf bank_mask:0xf
        s_nop 1
        v_add_f32_dpp v8, v8, v8 quad_perm:[2,3,0,1] row_mask:0xf bank_mask:0xf
        s_mov_b32 exec_lo, 0x11111111
        s_mov_b32 exec_hi, 0x11111111
        buffer_store_dword v8, v5, s[20:23], s31 offen sc1
        s_mov_b64 exec, -1
        """)
    B = Asm()
    tmp = [60, 61, 62, 63]
    cnt = [0]; neg = {}
    def cmul(z, x, y):
        cnt[0] += 1
        if y in neg:
            B(f"v_mul_f32 v{z}, v{x}, v{y}\nv_mul_f32 v{z+1}, v{x}, v{y+1}\nv_fmac_f32 v{z}, v{x+1}, v{neg[y]}\nv_fmac_f32 v{z+1}, v{x+1}, v{y}")
        elif x == y:
            t = tmp[cnt[0] & 3]
            B(f"v_mul_f32 v{z}, v{x}, v{x}\nv_add_f32 v{t}, v{x}, v{x}\nv_fma_f32 v{z}, -v{x+1}, v{x+1}, v{z}\nv_mul_f32 v{z+1}, v{t}, v{x+1}")
        else:
            B(f"v_mul_f32 v{z}, v{x}, v{y}\nv_mul_f32 v{z+1}, v{x}, v{y+1}\nv_fma_f32 v{z}, -v{x+1}, v{y+1}, v{z}\nv_fmac_f32 v{z+1}, v{x+1}, v{y}")
    PBK, PB, OUT, BF, KD = [152, 168], 184, 200, 216, 232
    bank = [0]
    def put(row, z, ng=False):
        B(f"v_cvt_pk_bf16_f32 v{PBK[bank[0]] + row}, v{z}, {'-' if ng else ''}v{z+1}")
    def transpose(dst, nrows=16):
        PA = PBK[bank[0]]; bank[0] ^= 1
        cur = [PA + i for i in range(16)]
        for d, mask in ((8, 0x00ff00ff), (4, 0x0f0f0f0f), (2, 0x33333333), (1, 0x55555555)):
            if d == 1: new = [dst + i for i in range(16)]
            else: new = [r for r in list(range(PA, PA + 16)) + list(range(PB, PB + 16)) if r not in cur][:16]
            cx = {8: 'row_ror:8', 4: 'row_ror:4', 2: 'quad_perm:[2,3,0,1]', 1: 'quad_perm:[1,0,3,2]'}[d]
            cy = {8: 'row_ror:8', 4: 'row_ror:12', 2: 'quad_perm:[2,3,0,1]', 1: 'quad_perm:[1,0,3,2]'}[d]
            B(f"s_mov_b32 vcc_lo, {mask:#x}\ns_mov_b32 vcc_hi, {mask:#x}")
            lo = [i for i in range(16) if not i & d]
            for i in lo:
                if d == 8 and i + 8 >= nrows: new[i] = cur[i]
                else: B(f"v_cndmask_b32_dpp v{new[i]}, v{cur[i+d]}, v{cur[i]}, vcc {cx} row_mask:0xf bank_mask:0xf")
            B("s_not_b64 vcc, vcc")
            for i in lo:
                if d == 8 and i + 8 >= nrows: B(f"v_mov_b32_dpp v{new[i+d]}, v{cur[i]} {cy} row_mask:0xf bank_mask:0xf")
                else: B(f"v_cndmask_b32_dpp v{new[i+d]}, v{cur[i]}, v{cur[i+d]}, vcc {cy} row_mask:0xf bank_mask:0xf")
            cur = new
    def kmfma(t, c):
        for ks in range(4):
            B(f"v_mfma_f32_16x16x32_bf16 {v(KD+4*t,4)}, {v(OUT+4*ks,4)}, {v(BF+4*ks,4)}, {'0' if ks == 0 and c == 0 else v(KD+4*t,4)}")
    def direct(z, l, ra, rc, t):
        if l == 1: B(f"v_exp_f32 v{t}, v{ra}\nv_rndne_f32 v{t+1}, v{rc}\nv_sub_f32 v{t+1}, v{rc}, v{t+1}")
        else: B(f"v_mul_f32 v{t}, {f2u(float(l))}, v{ra}\nv_mul_f32 v{z}, {f2u(float(l))}, v{rc}\nv_exp_f32 v{t}, v{t}\nv_rndne_f32 v{t+1}, v{z}\nv_sub_f32 v{t+1}, v{z}, v{t+1}")
        B(f"v_cos_f32 v{z}, v{t+1}\nv_sin_f32 v{z+1}, v{t+1}\nv_mul_f32 v{z}, v{z}, v{t}\nv_mul_f32 v{z+1}, v{z+1}, v{t}\nv_sub_f32 v{neg[z]}, 0, v{z+1}")
    rowof = {}
    for r in range(8): rowof[r] = r; rowof[128 + r] = 8 + r
    for r in range(4): rowof[256 + 2*r] = r; rowof[384 + 2*r] = 4 + r
    for k, l in enumerate([512, 516, 640, 644, 768, 772, 896, 900]): rowof[l] = 8 + k
    for r in range(9): rowof[1024 + 128*r] = r
    reg = {}; nxt = [70]
    def R(l):
        if l not in reg: reg[l] = nxt[0]; nxt[0] += 2
        return reg[l]
    for l, n in ((8, 47), (1, 58), (128, 59)): neg[R(l)] = n
    dt, ra, rc = 44, 45, 46
    def tables(c):
        p = P
        for k in range(6): B(f"v_and_b32 v{p+k}, 0xffff0000, v{p+6+k}" if c else f"v_lshlrev_b32 v{p+k}, 16, v{p+6+k}")
        for k in range(4): B(f"v_mul_f32 v{p+k}, v{dt}, v{p+k}")
        B(f"v_mul_f32 v{ra}, {f2u(L2E)}, v{p}\nv_mul_f32 v{rc}, {f2u(1/(2*math.pi))}, v{p+1}")
        W = 68
        cmul(W, p + 4, p + 2)
        direct(R(8), 8, ra, rc, 60); direct(R(1), 1, ra, rc, 62); direct(R(128), 128, ra, rc, 64)
        F = [W, 56]
        put(0, W, True)
        e0 = [(l, l - 1, 1) for l in range(2, 8)] + [(128 + l, l, 128) for l in range(1, 8)]
        for fi in range(1, 16):
            cmul(F[fi & 1], F[(fi - 1) & 1], R(8)); put(fi, F[fi & 1], True)
        transpose(BF)
        for z, x, y in e0: cmul(R(z), R(x), R(y))
        B(f"v_mov_b32 v{PBK[bank[0]]}, 0x3f80")
        for l in list(range(1, 8)) + list(range(128, 136)): put(rowof[l], R(l))
        transpose(OUT)
        kmfma(0, c)
        s1 = [(256 + 2*l, 128 + l, 128 + l) for l in range(4)] + [(384 + l, 256 + l, 128) for l in (0, 2, 4, 6)]
        s1 += [(512, 256, 256), (516, 258, 258), (768, 384, 384), (772, 386, 386), (640, 512, 128), (644, 516, 128), (896, 768, 128), (900, 772, 128)]
        for z, x, y in s1: cmul(R(z), R(x), R(y)); put(rowof[z], R(z))
        transpose(OUT)
        kmfma(1, c)
        s2 = [(1024, 512, 512), (1280, 640, 640), (1536, 768, 768), (1792, 896, 896), (1152, 1024, 128), (1408, 1280, 128), (1664, 1536, 128), (1920, 1792, 128), (2048, 1024, 1024)]
        for z, x, y in s2: cmul(R(z), R(x), R(y)); put(rowof[z], R(z))
        transpose(OUT, 9)
        kmfma(2, c)
    def gather_addresses():
        T0, E_, V_, K_ = 76, 85, 93 + 1, 64
        Vr = [94 + e for e in range(8)] + [25]
        B(f"v_lshlrev_b32 v{GA}, 3, v0\nv_sub_u32 v{GA}, 2047, v{GA}\nv_cvt_f32_u32 v{GA}, v{GA}")
        for e in range(9): B(f"v_add_f32 v{T0+e}, {f2u(-1.0*e)}, v{GA}")
        for e in range(0, 9, 2): B(f"v_cvt_pk_bf16_f32 v{E_+e//2}, v{T0+e}, v{T0+min(e+1,8)}")
        for e in range(9): B(f"v_and_b32 v{T0+e}, 0xffff0000, v{E_+e//2}" if e & 1 else f"v_lshlrev_b32 v{T0+e}, 16, v{E_+e//2}")
        for e in range(9): B(f"v_frexp_exp_i32_f32 v{E_+e}, v{T0+e}\nv_cvt_u32_f32 v{Vr[e]}, v{T0+e}")
        for e in range(9): B(f"v_subrev_u32 v{E_+e}, 8, v{E_+e}\nv_lshrrev_b32 v{T0+e}, 7, v{Vr[e]}\nv_and_b32 v{GA+e}, 7, v{Vr[e]}")
        for e in range(9): B(f"v_max_i32 v{E_+e}, 0, v{E_+e}\nv_lshl_or_b32 v{T0+e}, v{T0+e}, 3, v{GA+e}\nv_bfe_u32 v{Vr[e]}, v{Vr[e]}, 3, 4")
        for e in range(9): B(f"v_lshrrev_b32 v{T0+e}, v{E_+e}, v{T0+e}\nv_lshlrev_b32 v{Vr[e]}, 2, v{Vr[e]}")
        for e in range(9): B(f"v_lshl_add_u32 v{T0+e}, v{E_+e}, 3, v{T0+e}\nv_add_u32 v{Vr[e]}, {CMP}, v{Vr[e]}")
        B(f"v_mov_b32 v{K_}, 80")
        for e in range(9): B(f"v_mad_u32_u24 v{GA+e}, v{T0+e}, v{K_}, v{Vr[e]}")
    def publish_u():
        A(f"s_waitcnt vmcnt(0)\ns_cmp_lg_u32 s96, 0\ns_cbranch_scc1 S_havetag")
        get_nonce(A, 'SA', 8, 60, 96)
        A(f"""
S_havetag:
        s_lshl_b32 s38, s27, 5
        s_add_u32 s38, s38, s26
        s_lshl_b32 s38, s38, 2
        s_add_u32 s38, s38, s24
        s_lshl_b32 s38, s38, 3
        s_add_u32 s38, s38, {FL_U}
        v_mov_b32 v10, s38
        v_mov_b32 v8, s96
        v_mov_b32 v9, s97
        s_mov_b64 exec, 1
        buffer_store_dwordx2 v[8:9], v10, s[56:59], 0 offen sc1
        s_mov_b64 exec, -1
        """)
    def pollissue():
        A(f"""
        v_lshlrev_b32 v6, 4, v12
        s_lshr_b32 s38, s25, 5
        s_lshl_b32 s38, s38, 10
        s_add_u32 s38, s38, {FL_U}
        v_add_u32 v6, s38, v6
        buffer_load_dwordx4 v[8:11], v6, s[56:59], 0 offen sc1
        """)
    def udma():
        A("s_mov_b64 s[28:29], vcc\ns_waitcnt vmcnt(0)")
        poll_flags4(A, 'SU', 6, 8, 56, 96, 99, first_issued=True, sleep=4)
        A(f"""
        s_barrier
        v_lshlrev_b32 v6, 6, v12
        s_lshr_b32 s38, s25, 1
        s_lshl_b32 s38, s38, 14
        s_and_b32 s39, s25, 1
        s_lshl_b32 s39, s39, 5
        s_add_u32 s38, s38, s39
        s_lshl_b32 s39, s24, 12
        s_add_u32 s38, s38, s39
        s_lshl_b32 s39, s24, 10
        s_add_u32 m0, s39, {UB[0] + 512}
        s_mov_b64 vcc, s[28:29]
        buffer_load_dwordx4 v6, s[12:15], s38 offen lds
        s_add_u32 m0, s39, {UB[1] + 512}
        s_add_u32 s38, s38, 16
        buffer_load_dwordx4 v6, s[12:15], s38 offen lds
        """)
    ST.mark(A)
    A(f"""
    s_waitcnt vmcnt({0 if LATE else 6})
    v_lshlrev_b32 v{dt}, 16, v26
    v_and_b32 v26, 0xffff0000, v26
    s_cmp_ge_u32 s24, 2
    s_cselect_b64 vcc, -1, 0
    v_cndmask_b32 v{dt}, v{dt}, v26, vcc
    v_mul_f32 v{dt}, {f2u(L2E)}, v{dt}
    v_exp_f32 v{dt}, v{dt}
    s_nop 0
    v_cvt_pk_bf16_f32 v{dt}, v{dt}, v{dt}
    v_lshlrev_b32 v{dt}, 16, v{dt}
    """)
    ST.mark(A)
    tables(0); tables(1)
    ng = len(B.l)
    gather_addresses()
    seq = schedule(B.l, filler='v_mov_b32 v29, v29', window=700)
    N = len(seq)
    firstga = next(i for i, x in enumerate(seq) if x.startswith(f"v_lshlrev_b32 v{GA}, 3, v0"))
    print('S table ops', len(B.l), 'scheduled', N, 'nops', seq.count('s_nop 0'), 'fillers', seq.count('v_mov_b32 v29, v29'), 'first gather op at', firstga)
    tp = int(N * opt.get('t_at', 0.2))
    assert tp < firstga
    hk = {int(N * LATE) if LATE else -1: lambda: A(late), tp: tpart, int(N * opt.get('pub_at', 0.35)): publish_u, N // 2: lambda: ST.mark(A),
          int(N * opt.get('poll_at', 0.85)): pollissue, int(N * opt.get('udma_at', 0.97)): udma}
    nt = opt.get('wd_n', 13); t0_, t1_ = opt.get('wd_span', (0.36, 0.95))
    tpos = {int(N * (t0_ + (t1_ - t0_) * q / max(1, nt - 1))) + 1: q for q in range(nt)} if opt.get('wdpf', 1) else {}
    for i, x in enumerate(seq):
        if i in hk: hk[i]()
        if i in tpos:
            A(f"s_cmp_ge_u32 s87, 4\ns_cbranch_scc1 S_wt{tpos[i]}\nbuffer_load_dword v3, v2, s[48:51], s85 offen\ns_add_u32 s85, s85, {16 * 8192}\nS_wt{tpos[i]}:")
        A(x)
    ST.mark(A)
    A(f"""
    v_mov_b32 v7, {CMP + 64}
    v_cmp_eq_u32 vcc, 255, v0
    v_and_b32 v6, 15, v12                 ; rho / n
    s_lshr_b32 s32, s24, 1                ; ch
    v_cndmask_b32 v{GA+8}, v{GA+8}, v7, vcc
    v_lshrrev_b32 v7, 4, v12              ; kg
    s_and_b32 s27, s24, 1                 ; par
    v_not_b32 v8, v6
    v_and_b32 v8, 3, v8
    """)
    for t in range(3):
        for r in range(4):
            if t == 2 and r == 0: A("s_mov_b32 exec_hi, 0xffff")
            if t == 2 and r == 1: A("s_mov_b32 exec_hi, 0")
            A(f"ds_write_b32 v{DA}, v{KD+4*t+r} offset:{t*1280 + r*80}")
    A(f"""
    s_mov_b64 exec, -1
    v_mul_u32_u24 v8, {CP}, v8
    v_and_b32 v9, 12, v6
    v_lshlrev_b32 v9, 1, v9
    v_sub_u32 v8, v8, v9
    v_lshl_add_u32 v8, v7, 4, v8
    s_mul_i32 s38, s32, {CH}
    s_lshl_b32 s39, s27, 6
    s_sub_u32 s38, s38, s39
    s_add_u32 s38, s38, {2*2044 - 32*127 + 64}
    v_add_u32 v1, s38, v8                 ; vA
    v_lshlrev_b32 v8, 5, v6
    v_lshl_add_u32 v9, v7, 4, v8
    s_mul_i32 s38, s32, {UB[1]-UB[0]}
    s_add_u32 s38, s38, {UB[0] + 512}
    s_sub_u32 s39, s38, s39
    s_sub_u32 s39, s39, {32*13}
    v_add_u32 v2, s39, v9                 ; vB
    v_lshl_add_u32 v3, v7, 3, v8
    v_add_u32 v4, s38, v3
    v_and_b32 v3, 2, v7
    v_lshl_add_u32 v3, v3, 3, v8
    v_and_b32 v5, 1, v7
    v_lshl_add_u32 v3, v5, 10, v3
    s_waitcnt lgkmcnt(0)
    s_barrier
    """)
    ST.mark(A)
    E = [64, 80]
    for c in range(2):
        for e in range(9):
            A(f"ds_read_b32 v{100 + 20*c + e}, v{GA+e} offset:{2*c*CMPSZ}\nds_read_b32 v{110 + 20*c + e}, v{GA+e} offset:{(2*c+1)*CMPSZ}")
    A(f"""
    v_lshlrev_b32 v5, 4, v12
    s_lshl_b32 s38, s24, 12
    s_add_u32 s38, s38, {RED}
    v_add_u32 v14, s38, v5
    s_xor_b32 s38, s24, 1
    s_lshl_b32 s38, s38, 12
    s_add_u32 s38, s38, {RED}
    v_add_u32 v15, s38, v5
    s_lshl_b32 s35, s37, 16
    s_and_b32 s38, s37, 0xffff0000
    s_cmp_eq_u32 s32, 1
    s_cselect_b32 s35, s38, s35           ; Dskip (f32)
    s_lshl_b32 s33, s25, 1
    s_add_u32 s33, s33, s32
    s_lshl_b32 s33, s33, 12               ; d*4096
    v_lshlrev_b32 v6, 4, v0
    v_add_u32 v7, {2*CP - 4}, v6
    v_add_u32 v8, {3*CP - 4}, v6
    v_add_u32 v9, {CH + 2*CP - 4}, v6
    v_add_u32 v10, {CH + 3*CP - 4}, v6
    """)
    def copies(c, e, o):
        A(f"""ds_write_b128 v6, {v(e,4)} offset:{c*CH}
        ds_write_b128 v6, {v(o,4)} offset:{c*CH + CP}
        ds_write2_b32 v{7+2*c}, v{e}, v{e+1} offset0:0 offset1:1
        ds_write2_b32 v{7+2*c}, v{e+2}, v{e+3} offset0:2 offset1:3
        ds_write2_b32 v{8+2*c}, v{o}, v{o+1} offset0:0 offset1:1
        ds_write2_b32 v{8+2*c}, v{o+2}, v{o+3} offset0:2 offset1:3""")
    for c in range(2):
        A(f"s_waitcnt lgkmcnt({15 if c == 0 else 6})")
        b = 100 + 20*c
        for e in range(9): A(f"v_add_f32 v{b+e}, v{b+e}, v{b+10+e}")
        for j in range(4): A(f"v_cvt_pk_bf16_f32 v{E[c]+j}, v{b+2*j}, v{b+2*j+1}\nv_cvt_pk_bf16_f32 v{E[c]+8+j}, v{b+2*j+1}, v{b+2*j+2}")
        copies(c, E[c], E[c] + 8)
    A(f"s_cmp_lg_u32 s24, 0\ns_cbranch_scc1 S_nozero\ns_mov_b64 exec, 3")
    for k in range(4): A(f"v_mov_b32 v{96+k}, 0")
    for k in range(6, 11): A(f"v_add_u32 v{k}, 4096, v{k}")
    for c in range(2): copies(c, 96, 96)
    A("s_mov_b64 exec, -1\nS_nozero:\ns_waitcnt vmcnt(0) lgkmcnt(0)\ns_barrier")
    ST.mark(A)
    if 'prio_conv' in opt: A(f"s_setprio {opt['prio_conv']}")
    ACC, BR, AR = 16, [64, 96], 48
    L = Lds(A)
    def rdB(e, j): L.issue(f"ds_read_b128 {v(BR[e&1] + 4*j, 4)}, v2 offset:{512*j + 32*(13 - (1 + 4*e))}", ('B', e, j))
    def rdA(n):
        e, q = divmod(n, 8)
        o = 32 * (127 - 16*q - (1 + 4*e)) - 64; r = AR + 4 * (n % 4)
        L.issue(f"ds_read_b64 {v(r,2)}, v1 offset:{o}", ('A0', n)); L.issue(f"ds_read_b64 {v(r+2,2)}, v1 offset:{o+8}", ('A', n))
    rdA(0)
    for j in range(8): rdB(0, j)
    rdA(1); rdA(2)
    for n in range(32):
        e, q = divmod(n, 8)
        for j in range(q, 8):
            L.need(('A', n), ('B', e, j - q))
            first = (e == 0 and q == 0)
            A(f"v_mfma_f32_16x16x32_bf16 {v(ACC+4*j,4)}, {v(AR+4*(n%4),4)}, {v(BR[e&1]+4*(j-q),4)}, {'0' if first else v(ACC+4*j,4)}")
            if j == q:
                if n + 3 < 32: rdA(n + 3)
                if e < 3 and q < 4: rdB(e + 1, 2*q); rdB(e + 1, 2*q + 1)
    ST.mark(A)
    A("s_cmp_eq_u32 s27, 1\ns_cbranch_scc1 S_epi1")
    for par in range(2):
        if par: A("S_epi1:")
        keep = [j for j in range(8) if (j & 1) == par]; send = [j for j in range(8) if (j & 1) != par]
        for k, j in enumerate(keep): A(f"ds_read_b64 {v(64+2*k,2)}, v4 offset:{512*j}")
        A("s_nop 3")
        for k, j in enumerate(send): A(f"ds_write_b128 v14, {v(ACC+4*j,4)} offset:{k*1024}")
        A("s_waitcnt lgkmcnt(4)")
        for k, j in enumerate(keep):
            for r in range(4):
                src = 64 + 2*k + r // 2
                A(f"v_and_b32 v{96+4*k+r}, 0xffff0000, v{src}" if r & 1 else f"v_lshlrev_b32 v{96+4*k+r}, 16, v{src}")
            for r in range(4): A(f"v_fmac_f32 v{ACC+4*j+r}, s35, v{96+4*k+r}")
        A("s_waitcnt lgkmcnt(0)\ns_barrier")
        for k, j in enumerate(keep): A(f"ds_read_b128 {v(80+4*k,4)}, v15 offset:{k*1024}")
        for k, j in enumerate(keep):
            A(f"s_waitcnt lgkmcnt({3-k})")
            for r in range(4): A(f"v_add_f32 v{ACC+4*j+r}, v{ACC+4*j+r}, v{80+4*k+r}")
            A(f"v_cvt_pk_bf16_f32 v{112+2*k}, v{ACC+4*j}, v{ACC+4*j+1}\nv_cvt_pk_bf16_f32 v{113+2*k}, v{ACC+4*j+2}, v{ACC+4*j+3}")
            if k & 1:
                b = 112 + 2*(k-1)
                A(f"s_nop 1\nv_permlane16_swap_b32 v{b}, v{b+2}\nv_permlane16_swap_b32 v{b+1}, v{b+3}")
                A(f"buffer_store_dwordx4 {v(b,4)}, v3, s[16:19], s33 offen offset:{512*keep[k-1]} sc1")
        if par == 0: A("s_branch S_done")
    A(f"""
S_done:
    s_lshl_b32 s38, s25, 2
    s_add_u32 s38, s38, s24
    s_lshl_b32 s38, s38, 3
    s_add_u32 s38, s38, {FL_A}
    v_mov_b32 v10, s38
    v_mov_b32 v8, s96
    v_mov_b32 v9, s97
    s_mov_b64 exec, 1
    s_waitcnt vmcnt(0)
    buffer_store_dwordx2 v[8:9], v10, s[56:59], 0 offen sc1
    s_mov_b64 exec, -1
    """)
    ST.finish(A, tsbase)
    A("s_endpgm")
```

```python
import sys
from common2 import *
from role_fg import role_fg
from role_s4 import role_s
DEFAULTS = {'e1':1,'e_per':4,'e2':5,'e3n':4,'ea':6,'NS':10,'prio_s':1,'prio_fg':1,'late_at':0.12,'t_at':0.25,'pub_at':0.4,'wd_span':(0.41,0.95),'prio_epi':3,'usepk':0,'w_from':3,'f16':0,'rot':3,'dm_first':0,'dm_mode':8}
def build(out, diag=False, opt={}):
    hdr = open('cdna_kernels/' + NAME + '.s.ref').read().split('; Override launch')[0]
    K = NAME + '_kernel'
    src = hdr + """; @launch grid=(448,1,1) block=(256,1,1) lds=81920
.amdgcn_target "amdgcn-amd-amdhsa--gfx950"
.text
"""
    A = Asm(); ST = Stamps(diag)
    A("""
    s_cmp_ge_u32 s2, 448
    s_cbranch_scc1 K_exit
    """)
    ST.start(A)
    A("""
    s_and_b32 s3, s2, 7
    s_lshr_b32 s33, s2, 3                 ; j
    """)
    if opt.get('pfcode', 1):
        A("""
    s_getpc_b64 s[4:5]
K_pc:
    s_mul_i32 s6, s33, 5
    v_add_u32 v1, s6, v0
    v_lshlrev_b32 v1, 7, v1
    v_min_u32 v1, K_exit - K_pc, v1
    v_cmp_gt_u32 vcc, 5, v0
    s_and_saveexec_b64 s[6:7], vcc
    s_cbranch_execz K_nopf
    global_load_dword v63, v1, s[4:5]
K_nopf:
    s_mov_b64 exec, s[6:7]
    """)
    A("""
    s_cmp_ge_u32 s33, 28
    s_cbranch_scc1 K_s
    s_lshr_b32 s25, s3, 1
    s_lshl_b32 s25, s25, 2
    s_and_b32 s26, s33, 3
    s_add_u32 s25, s25, s26               ; rb
    s_and_b32 s26, s3, 1
    s_mul_i32 s26, s26, 7
    s_lshr_b32 s33, s33, 2
    s_add_u32 s26, s26, s33               ; cb
    """)
    role_fg(A, ST, opt)
    A("""
K_s:
    s_sub_u32 s33, s33, 28
    s_mov_b32 s87, s33
    s_mul_i32 s25, s3, 28
    s_add_u32 s25, s25, s33
    s_lshl_b32 s26, s3, 2
    s_and_b32 s27, s33, 3
    s_add_u32 s26, s26, s27               ; rt_s
    s_lshr_b32 s27, s33, 2                ; ct_s
    """)
    ST = Stamps(diag); ST.n = 1 if diag else 0
    role_s(A, ST, opt)
    A("K_exit:\ns_endpgm")
    src += kernel_head(K) + A.text() + '.section .rodata,"a"\n' + kernel_desc(K, 256, 102)
    open(out, 'w').write(src)
if __name__ == '__main__':
    opt = dict(DEFAULTS); opt.update(eval(sys.argv[3]) if len(sys.argv) > 3 else {})
    build(sys.argv[1], {'diag': True, 'rt': 'rt', 'span': 'span'}.get(sys.argv[2], False) if len(sys.argv) > 2 else False, opt)
```

```python
from common import *
WS_GP, WS_GP_SZ = 0xC00000, 2048 * 32
WS_FL, WS_FL_SZ = 0xC80000, 0x4000 + 32 * 28 * 256
FL_H, FL_U, FL_A = 0x4000, 0, 0x1c00
SPIN_MAX = 1 << 16

class Vm:
    def __init__(self, A): self.A = A; self.q = []
    def issue(self, ins, tag): self.A(ins); self.q.append(tag)
    def count(self, *tags):
        idx = max((i for i, t in enumerate(self.q) if t in tags), default=-1)
        if idx < 0: return None
        n = len(self.q) - 1 - idx
        self.q = self.q[idx + 1:]
        assert n <= 63
        return n
    def drain(self): self.q = []

def get_nonce(A, lab, vtmp, srd_dbg, sn):
    A(f"""
    s_mov_b32 s{sn+2}, {SPIN_MAX}
    v_mov_b32 v{vtmp+2}, 0
{lab}_nl:
    buffer_load_dwordx2 {v(vtmp,2)}, v{vtmp+2}, s[{srd_dbg}:{srd_dbg+3}], 0 offen sc1
    s_waitcnt vmcnt(0)
    v_readfirstlane_b32 s{sn}, v{vtmp}
    v_readfirstlane_b32 s{sn+1}, v{vtmp+1}
    s_sub_u32 s{sn+2}, s{sn+2}, 1
    s_cbranch_scc1 {lab}_nd
    s_cmp_eq_u32 s{sn}, 0
    s_cbranch_scc0 {lab}_nd
    s_sleep 2
    s_branch {lab}_nl
{lab}_nd:
    """)

def poll_flags(A, lab, vaddr, vtmp, srd_fl, sn, stmp, first_issued=False, sleep=1):
    A(f"s_mov_b32 s{stmp}, {SPIN_MAX}")
    if first_issued: A(f"s_branch {lab}_pc")
    A(f"""
{lab}_pl:
    buffer_load_dwordx2 {v(vtmp,2)}, v{vaddr}, s[{srd_fl}:{srd_fl+3}], 0 offen sc1
    s_waitcnt vmcnt(0)
{lab}_pc:
    v_cmp_ne_u64 vcc, s[{sn}:{sn+1}], {v(vtmp,2)}
    s_sub_u32 s{stmp}, s{stmp}, 1
    s_cbranch_scc1 {lab}_pd
    s_cmp_eq_u64 vcc, 0
    s_cbranch_scc1 {lab}_pd
    s_sleep {sleep}
    s_branch {lab}_pl
{lab}_pd:
    """)

def poll_flags4(A, lab, vaddr, vtmp, srd_fl, sn, stmp, first_issued=False, sleep=1, soff='0'):
    A(f"s_mov_b32 s{stmp}, {SPIN_MAX}")
    if first_issued: A(f"s_branch {lab}_pc")
    A(f"""
{lab}_pl:
    buffer_load_dwordx4 {v(vtmp,4)}, v{vaddr}, s[{srd_fl}:{srd_fl+3}], {soff} offen sc1
    s_waitcnt vmcnt(0)
{lab}_pc:
    v_cmp_ne_u64 vcc, s[{sn}:{sn+1}], {v(vtmp,2)}
    v_cmp_ne_u64 s[100:101], s[{sn}:{sn+1}], {v(vtmp+2,2)}
    s_sub_u32 s{stmp}, s{stmp}, 1
    s_cbranch_scc1 {lab}_pd
    s_or_b64 vcc, vcc, s[100:101]
    s_cbranch_scc0 {lab}_pd
    s_sleep {sleep}
    s_branch {lab}_pl
{lab}_pd:
    """)

def spoll_issue(A, off, n=7):
    for k in range(n): A(f"s_load_dwordx2 s[{64+2*k}:{65+2*k}], s[80:81], {off + 1024*k} glc")
def spoll(A, lab, off, n, sn, stmp, first_issued=False, sleep=0):
    A(f"s_mov_b32 s{stmp}, {SPIN_MAX}")
    if first_issued: A(f"s_branch {lab}_pc")
    A(f"{lab}_pl:")
    if sleep: A(f"s_sleep {sleep}")
    spoll_issue(A, off, n)
    A(f"{lab}_pc:\ns_waitcnt lgkmcnt(0)\ns_sub_u32 s{stmp}, s{stmp}, 1\ns_cbranch_scc1 {lab}_pd")
    for k in range(n):
        A(f"s_cmp_lg_u64 s[{64+2*k}:{65+2*k}], s[{sn}:{sn+1}]\ns_cbranch_scc1 {lab}_pl")
    A(f"{lab}_pd:")
```

```python
from common2 import *
import math
XBUF = [49152, 65536]; WBUF = [0, 16384, 32768]
ACC = 64
FR = [16, 40]
V_XD, V_WGD, V_WUD = 1, 2, 3
V_XR = 4; V_WR = 8; V_ST = 12
NS = 9
SLOT = [32768, 40960, 65536, 73728, 0, 8192, 16384, 24576, 49152, 57344]
GACC = 16; HR = 80; ATILE = 57344
V_WD = [251, 252, 253, 254]; V_AT = 250; V_Z = 249; V_TR = [13, 14, 15, 248]
NE = 7
def role_fg(A, ST, opt, tsbase=0):
    if opt.get('gstamp'):
        _m = ST.mark; cnt_ = [0]
        def mark(A_):
            cnt_[0] += 1
            if cnt_[0] not in (1, 2, 5): _m(A_)
        ST.mark = mark
    usepk = opt.get('usepk', True)
    HRS = [104, 160, 168, 112, 120]
    HN = len(HRS)
    GB = [16, 32, 48, 176]
    held = [192 + 8 * i_ for i_ in range(7)] + [64, 72, 128, 136, 80, 88, 144, 152, 96]
    for _ in range(opt.get('hn_extra', 0)): HRS.append(held.pop())
    HN = len(HRS)
    NW = len(held)
    slots = {}
    NS = opt.get('NS', 10)
    if opt.get('hn4'): held.append(HRS.pop()); HN = len(HRS); NW = len(held)
    freeslots = list(range(NS))
    def slot_of(n):
        if n not in slots: slots[n] = freeslots.pop(0)
        return slots[n]
    def release(n): freeslots.append(slots[n])
    A(f"""
    s_load_dwordx2 s[4:5], s[0:1], {KA['u']}
    s_load_dwordx4 s[28:31], s[0:1], {KA['Wg']}
    s_load_dwordx2 s[6:7], s[0:1], {KA['ws']}
    s_load_dwordx2 s[48:49], s[0:1], {KA['Wd']}
    s_load_dwordx4 s[52:55], s[0:1], {KA['out']}
    s_setprio {opt.get('prio_fg', 2)}
    v_lshrrev_b32 v13, 6, v0
    v_and_b32 v0, 63, v0
    v_readfirstlane_b32 s24, v13
    v_lshrrev_b32 v14, 3, v0              ; lane>>3
    v_lshrrev_b32 v15, 4, v0              ; lane>>4
    s_and_b32 s27, s24, 1                 ; wr
    s_lshr_b32 s32, s24, 1                ; wc
    s_lshl_b32 s33, s27, 2
    v_add_u32 v16, s33, v15
    v_and_b32 v17, 7, v0
    v_xor_b32 v17, v17, v16
    v_lshlrev_b32 v17, 4, v17
    v_mov_b32 v18, 896
    v_mad_u32_u24 v{V_XD}, v14, v18, v17
    v_lshlrev_b32 v16, 1, v15
    v_and_b32 v17, 15, v0
    v_xor_b32 v17, v17, v16
    v_lshlrev_b32 v17, 4, v17
    v_mov_b32 v18, 3584
    v_mad_u32_u24 v{V_WGD}, v15, v18, v17
    v_xor_b32 v{V_WUD}, 128, v{V_WGD}
    s_lshl_b32 s34, s25, 4
    s_add_u32 s34, s34, s24
    s_mul_i32 s34, s34, {8*896}
    s_mul_i32 s35, s24, {4*3584}
    s_lshl_b32 s37, s26, 8
    s_add_u32 s35, s35, s37
    s_lshl_b32 s36, s24, 10
    s_and_b32 s86, s25, 3                 ; rbl
    s_cmp_ge_u32 s26, 7
    s_cselect_b32 s38, 7, 0
    s_sub_u32 s38, s26, s38               ; cbl
    s_lshl_b32 s85, s86, 1
    s_add_u32 s85, s85, s38
    s_cmp_ge_u32 s85, 7
    s_cselect_b32 s33, 7, 0
    s_sub_u32 s85, s85, s33
    """)
    rot = opt.get('rot', 0)
    if rot == 0: A("s_mov_b32 s60, 0x6543210")
    elif rot == 1: A("s_lshl_b32 s33, s85, 2\ns_lshr_b32 s60, 0x6543210, s33\ns_sub_u32 s33, 28, s33\ns_lshl_b32 s33, 0x6543210, s33\ns_or_b32 s60, s60, s33")
    elif rot == 2: A("s_add_u32 s33, s86, s38\ns_and_b32 s33, s33, 1\ns_mul_i32 s33, s33, 0x111111\ns_xor_b32 s60, 0x6543210, s33")
    elif rot == 3: A("s_add_u32 s33, s86, s38\ns_and_b32 s33, s33, 1\ns_mul_i32 s33, s33, 0x1133110\ns_xor_b32 s60, 0x5643210, s33\ns_mov_b32 s60, 0x6543210\ns_cmp_eq_u32 s33, 0\ns_cselect_b32 s60, s60, 0x5634120")
    elif rot == 4: A("s_add_u32 s33, s86, s38\ns_and_b32 s33, s33, 3\ns_mov_b32 s60, 0x6543210\ns_cmp_ge_u32 s33, 2\ns_cselect_b32 s60, 0x5463210, s60\ns_cmp_eq_u32 s33, 1\ns_cselect_b32 s60, 0x4653210, s60\ns_mul_i32 s33, s33, 0x1111\ns_xor_b32 s60, s60, s33")
    elif rot == 5: A("s_add_u32 s33, s86, s38\ns_and_b32 s33, s33, 3\ns_mul_i32 s60, s33, 0x11110\ns_and_b32 s33, s33, 1\ns_mul_i32 s33, s33, 0x1100000\ns_or_b32 s33, s33, s60\ns_xor_b32 s60, 0x5432106 , s33\ns_xor_b32 s60, s60, 0")
    A(f"""
    s_waitcnt lgkmcnt(0)
    """)
    ST.mark(A)
    srd(A, 8, 4, SZ_U); srd(A, 12, 28, SZ_W); srd(A, 16, 30, SZ_W)
    def dmaX(b, i):
        pre = f"s_bfe_u32 s61, s60, {0x40000 + 4*b:#x}\ns_lshl_b32 s61, s61, 7\ns_add_u32 s61, s61, s34\n" if i == 0 else ''
        return (pre + f"s_add_u32 m0, s36, {XBUF[b & 1] + i * 4096}\n"
                f"s_add_u32 s38, s61, {i * 32 * 896}\n"
                f"buffer_load_dwordx4 v{V_XD}, s[8:11], s38 offen lds")
    def dmaW(st, m, i):
        pre = f"s_bfe_u32 s63, s60, {0x40000 + 4*(st >> 1):#x}\ns_mul_i32 s63, s63, {64*3584}\ns_add_u32 s63, s63, s35\n" if (st & 1) == 0 and m == 0 and i == 0 else ''
        return (pre + f"s_add_u32 m0, s36, {WBUF[st % 3] + m * 8192 + i * 4096}\n"
                f"s_add_u32 s38, s63, {(32 * (st & 1) + 16 * i) * 3584}\n"
                f"buffer_load_dwordx4 v{V_WUD if m else V_WGD}, s[{16 if m else 12}:{19 if m else 15}], s38 offen lds")
    fr = opt.get('fine_ring', 0)
    def subW(n):
        r = []
        for m in range(2):
            pre = f"s_bfe_u32 s63, s60, {0x40000 + 4*(n >> 2):#x}\ns_mul_i32 s63, s63, {64*3584}\ns_add_u32 s63, s63, s35\n" if (n & 3) == 0 and m == 0 else ''
            so = f"s_add_u32 s38, s63, {16 * (n & 3) * 3584}\n" if m == 0 else ''
            r.append(pre + f"s_add_u32 m0, s36, {(n % 6) * 8192 + m * 4096}\n" + (so or "s_nop 0\n") +
                     f"buffer_load_dwordx4 v{V_WUD if m else V_WGD}, s[{16 if m else 12}:{19 if m else 15}], s38 offen lds")
        return r
    def stW(st): return [dmaW(st, m, i) for i in range(2) for m in range(2)]
    def stX(b): return [dmaX(b, i) for i in range(4)]
    srd(A, 44, 54, 256)
    A(f"""
    s_xor_b32 s33, s24, 3
    s_or_b32 s33, s2, s33
    s_cmp_lg_u32 s33, 0
    s_cbranch_scc1 FG_notag
    s_memrealtime s[40:41]
    v_mov_b32 v28, 0
    s_waitcnt lgkmcnt(0)
    s_or_b32 s40, s40, 1
    v_mov_b32 v26, s40
    v_mov_b32 v27, s41
    s_mov_b64 exec, 1
    buffer_store_dwordx2 v[26:27], v28, s[44:47], 0 offen sc1
    s_mov_b64 exec, -1
FG_notag:
    """)
    burst12 = opt.get('burst', 20) == 12
    FV = Vm(A)
    if fr:
        for tag, lst in [(('X', 0), stX(0))] + [(('W', n_), subW(n_)) for n_ in range(4)] + [(('X', 1), stX(1))] + [(('W', n_), subW(n_)) for n_ in (4, 5)]:
            for x in lst: FV.issue(x, tag)
    else:
        for x in stX(0) + stW(0) + stW(1) + ([] if burst12 else stX(1) + stW(2)): A(x)
    srd(A, 20, 6, WS_H_SZ, WS_H); srd(A, 56, 6, WS_FL_SZ, WS_FL)
    A(f"""
    {'s_waitcnt vmcnt(0)' + chr(10) + 's_endpgm' if opt.get('skip_fg') else ''}
    v_and_b32 v16, 31, v0                 ; t
    v_lshrrev_b32 v17, 5, v0              ; h
    v_bfe_u32 v18, v0, 1, 3               ; (t>>1)&7
    s_lshl_b32 s33, s27, 13
    s_add_u32 s33, s33, {XBUF[0]}
    v_lshlrev_b32 v16, 7, v16
    v_add_u32 v16, s33, v16
    """)
    for k in range(4):
        A(f"v_or_b32 v19, {2*k}, v17\nv_xor_b32 v19, v19, v18\nv_lshl_add_u32 v{V_XR+k}, v19, 4, v16")
    A(f"""
    v_bfe_u32 v16, v0, 4, 1               ; m
    v_bfe_u32 v18, v0, 2, 2               ; r
    v_and_b32 v19, 3, v0                  ; c
    v_lshlrev_b32 v20, {12 if fr else 13}, v16
    v_lshl_add_u32 v20, v17, 11, v20
    v_lshl_add_u32 v20, v18, 8, v20
    v_lshl_add_u32 v20, v19, 3, v20
    v_lshl_or_b32 v21, v16, 2, v18
    s_lshl_b32 s33, s32, 2
    v_xor_b32 v21, s33, v21
    """)
    for j in range(4):
        A(f"v_xor_b32 v19, {j}, v21\nv_lshl_add_u32 v{V_WR+j}, v19, 5, v20")
    A(f"""
    s_lshl_b32 s33, s25, 1
    s_add_u32 s33, s33, s27
    s_mul_i32 s33, s33, 224
    s_lshl_b32 s37, s26, 3
    s_add_u32 s33, s33, s37
    s_lshl_b32 s37, s32, 2
    s_add_u32 s33, s33, s37
    s_lshl_b32 s39, s33, 10
    v_lshlrev_b32 v{V_ST}, 4, v0
    """)
    def reads(n):
        st, ks = n >> 1, n & 1
        b, ks4 = n >> 2, n & 3
        f = FR[n & 1]
        xr = [f"ds_read_b128 {v(f + 4*tt, 4)}, v{V_XR+ks4} offset:{XBUF[b & 1] - XBUF[0] + tt * 4096}" for tt in range(2)]
        wr = [[f"ds_read_b64_tr_b16 {v(f + 8 + 4*j + 2*p, 2)}, v{V_WR+j} offset:{((n % 6) * 8192 if fr else WBUF[st % 3] + ks * 4096) + p * 1024}" for p in range(2)] for j in range(4)]
        return [xr[0]] + wr[0] + [xr[1]] + wr[1] + wr[2] + wr[3]
    def mfmas(n):
        f = FR[n & 1]
        out = []
        for j in range(4):
            for tt in range(2):
                a = ACC + (tt * 4 + j) * 16
                out.append(f"v_mfma_f32_32x32x16_bf16 {v(a,16)}, {v(f+8+4*j,4)}, {v(f+4*tt,4)}, {'0' if n == 0 else v(a, 16)}")
        return out
    FO = [3, 4, 5, 28, 29, 30, 31]
    A(f"""
    s_cmp_ge_u32 s26, 7
    s_cselect_b32 s42, 1, 0               ; half
    s_mul_i32 s43, s42, 7
    s_sub_u32 s43, s26, s43               ; ct
    s_lshl_b32 s78, s25, 1
    s_add_u32 s78, s78, s42               ; rt
    s_mov_b32 s50, {SZ_W if not opt.get('fakeW') else 0}
    s_mov_b32 s51, 0x00020000
    s_lshl_b32 s87, s24, 11
    v_lshrrev_b32 v16, 3, v0
    v_bfe_u32 v17, v0, 4, 1               ; c16
    v_lshlrev_b32 v18, 2, v17
    v_and_b32 v19, 7, v0
    v_xor_b32 v19, v19, v18
    v_lshlrev_b32 v19, 4, v19
    v_mov_b32 v18, 896
    v_mad_u32_u24 v{V_WD[0]}, v16, v18, v19
    v_lshl_add_u32 v{V_AT}, v16, 12, v19
    v_add_u32 v{V_WD[1]}, {8*896 - 1024}, v{V_WD[0]}
    v_add_u32 v{V_WD[2]}, {16*896}, v{V_WD[0]}
    v_add_u32 v{V_WD[3]}, {24*896 - 1024}, v{V_WD[0]}
    v_mov_b32 v{V_Z}, 0
    s_lshl_b32 s33, s43, 7
    s_mul_i32 s83, s24, {64*896}
    s_add_u32 s83, s83, s33
    s_add_u32 s82, s83, {28*64*896}
    s_mul_i32 s79, s85, {4*64*896}
    s_add_u32 s79, s79, s83
    v_lshrrev_b32 v18, 5, v0              ; h
    v_bfe_u32 v19, v0, 2, 2               ; r
    v_and_b32 v20, 3, v0
    v_lshl_add_u32 v21, v18, 2, v19
    v_lshlrev_b32 v21, 7, v21
    v_lshl_add_u32 v21, v20, 3, v21
    v_and_b32 v18, 2, v19
    v_xor_b32 v18, v18, v17
    v_lshl_add_u32 v21, v18, 5, v21       ; tile-0 address inside a 2 KB stage
    s_lshl_b32 s33, s32, 6
    v_xor_b32 v21, s33, v21
    v_add_u32 v{V_TR[0]}, s87, v21
    v_xor_b32 v{V_TR[1]}, 64, v{V_TR[0]}
    v_add_u32 v{V_TR[2]}, 65536, v{V_TR[0]}
    v_add_u32 v{V_TR[3]}, 65536, v{V_TR[1]}
    v_min_u32 v240, 13, v0
    v_and_b32 v241, 1, v240
    v_lshrrev_b32 v240, 1, v240
    v_lshlrev_b32 v240, 10, v240
    v_lshl_add_u32 v240, v241, 4, v240
    s_lshl_b32 s33, s78, 5
    s_add_u32 s33, s33, {FL_U}
    v_add_u32 v240, s33, v240
    s_lshl_b32 s40, s78, 1
    s_add_u32 s40, s40, s27
    s_mul_i32 s40, s40, {112*1024}
    s_lshl_b32 s33, s24, 12
    s_add_u32 s40, s40, s33
    s_add_u32 s84, s40, {28*4096}
    s_lshl_b32 s86, s85, 14
    s_add_u32 s86, s86, s40
    s_lshl_b32 s41, s27, 1
    s_sub_u32 s41, 1, s41
    s_mul_i32 s41, s41, {112*1024}
    s_add_u32 s37, s86, s41
    s_lshl_b32 s33, s25, 1
    s_add_u32 s33, s33, s27
    s_mul_i32 s33, s33, 28
    s_lshl_b32 s38, s26, 1
    s_add_u32 s33, s33, s38
    s_add_u32 s33, s33, s32
    s_lshl_b32 s33, s33, 8
    s_add_u32 s62, s33, {FL_H}
    s_mul_i32 s33, s78, 28
    s_add_u32 s33, s33, s24
    s_lshl_b32 s33, s33, 8
    s_add_u32 s33, s33, {FL_H}
    s_add_u32 s80, s56, s33
    s_addc_u32 s81, s57, 0
    s_lshl_b32 s{FO[0]}, s85, 10
    """)
    for i_ in range(1, 7): A(f"s_add_u32 s{FO[i_]}, s{FO[i_-1]}, 1024\ns_cmp_eq_u32 s{FO[i_]}, 7168\ns_cselect_b32 s{FO[i_]}, 0, s{FO[i_]}")
    A(f"s_lshl_b32 s42, s43, 10\ns_add_u32 s42, s42, {FL_A}")
    A(f"s_waitcnt vmcnt({FV.count(('W', 0)) if fr else 4 if burst12 else 12})\ns_barrier")
    ST.mark(A)
    for x in reads(0): A(x)
    VM = Vm(A)
    def snap(first, ph):
        for i_ in range(first, 7): A(f"s_load_dwordx2 s[{64+2*i_}:{65+2*i_}], s[80:81], s{FO[i_]} offset:{128*ph} glc")
    def gate(i_, ph):
        lab = f"FGg{ph}{i_}"
        A(f"s_cmp_eq_u64 s[{64+2*i_}:{65+2*i_}], s[96:97]\ns_cbranch_scc1 {lab}_d\ns_mov_b32 s99, {SPIN_MAX}\n{lab}_l:")
        snap(i_, ph)
        A(f"s_waitcnt lgkmcnt(0)\ns_sub_u32 s99, s99, 1\ns_cbranch_scc1 {lab}_d\ns_cmp_lg_u64 s[{64+2*i_}:{65+2*i_}], s[96:97]\ns_cbranch_scc1 {lab}_l\n{lab}_d:")
    def jof(n): return (n & 1) + (2 if n >= 14 else 0)
    def ldW(n):
        pre = ''
        if (n & 1) == 0 and n > 0:
            pre = f"s_add_u32 s79, s79, {4*64*896}\ns_cmp_ge_u32 s79, s82\ns_cselect_b32 s79, s83, s79\n"
            if n == 14: pre += f"s_add_u32 s79, s79, {32*896}\ns_add_u32 s82, s82, {32*896}\ns_add_u32 s83, s83, {32*896}\n"
        a, b = (V_WD[0], V_WD[1]) if (n & 1) == 0 else (V_WD[2], V_WD[3])
        return [(pre + f"s_add_u32 m0, s87, {SLOT[slot_of(n)]}\ns_nop 0\nbuffer_load_dwordx4 v{a}, s[48:51], s79 offen lds", ('W', n)),
                (f"buffer_load_dwordx4 v{b}, s[48:51], s79 offen offset:1024 lds", ('W', n))]
    def ldH(n):
        pre = ''
        if (n & 1) == 0 and n > 0:
            pre = f"s_add_u32 s86, s86, {4*4096}\ns_cmp_ge_u32 s86, s84\ns_cselect_b32 s86, s40, s86\ns_add_u32 s37, s86, s41\n"
        return [(pre + f"buffer_load_dwordx4 {v(HRS[n % HN], 4)}, v{V_ST}, s[20:23], s86 offen offset:{jof(n) * 1024}", ('H', n)),
                (f"buffer_load_dwordx4 {v(HRS[n % HN] + 4, 4)}, v{V_ST}, s[20:23], s37 offen offset:{jof(n) * 1024}", ('H', n))]
    def wreg(n): return held[n % NW]
    def greads(n):
        f = wreg(n); o = SLOT[slot_of(n)]
        regs = V_TR[2:] if o >= 65536 else V_TR[:2]
        return [f"ds_read_b64_tr_b16 {v(f + 4*bd + 2*p, 2)}, v{regs[bd]} offset:{o % 65536 + p * 1024}" for bd in range(2) for p in range(2)]
    def vwait(*tags, extra=''):
        c = VM.count(*tags)
        if c is not None or extra: A("s_waitcnt " + (f"vmcnt({c}) " if c is not None else '') + extra)
    for n in range(28):
        dm = []
        if fr:
            c = FV.count(('W', n + 1), ('X', (n + 1) >> 2)) if n < 27 else None
            A("s_waitcnt " + (f"vmcnt({c + len(VM.q)}) " if c is not None else '') + "lgkmcnt(0)\ns_barrier")
            if opt.get('stage_stamps') and n % 4 == 3 and n < 27: ST.mark(A)
            dmq = []
            if n + 6 < 28: dmq += [(x, ('W', n + 6)) for x in subW(n + 6)]
            if n & 3 == 3 and (n >> 2) + 2 <= 6: dmq += [(x, ('X', (n >> 2) + 2)) for x in stX((n >> 2) + 2)]
            FV.q += [x[1] for x in dmq]
            dm = [x[0] for x in dmq]
        elif n & 1:
            sp = (n + 1) >> 1
            if sp <= 13:
                young = 0
                if sp == 1: young = 8
                else:
                    if sp + 1 <= 13: young += 4
                    if (sp + 1) % 2 == 0 and (sp + 1) // 2 <= 6: young += 4
                    if sp == 13: young += len(VM.q)
                A(f"s_waitcnt vmcnt({young}) lgkmcnt(0)\ns_barrier")
                if opt.get('stage_stamps') and sp % 2 == 0: ST.mark(A)
                if sp + 2 <= 13: dm += stW(sp + 2)
                if sp % 2 == 0 and sp // 2 + 1 <= 6: dm += stX(sp // 2 + 1)
            else:
                A("s_waitcnt lgkmcnt(0)\ns_barrier")
            cut = len(dm)//2 if opt.get('dm_mode', 0) == 0 else min(len(dm), opt.get('dm_mode'))
            pend = dm[cut:]; dm = dm[:cut]
        else:
            A("s_waitcnt lgkmcnt(0)")
            if n > 0: dm = pend
            elif burst12: dm = stX(1) + stW(2)
        rd = reads(n + 1) if n < 27 else []
        ex = [x for m_ in {23: [0, 1], 24: [2, 3], 26: [4, 5], 27: list(range(6, NS))}.get(n, []) for x in ldW(m_)]
        if n == 23: ex.append((f"buffer_load_dwordx2 v[242:243], v{V_Z}, s[44:47], 0 offen sc1", 'tag'))
        if n == 25: ex = [("buffer_load_dwordx4 v[244:247], v240, s[56:59], 0 offen sc1", 'fu')]
        di = 0
        for i, m in enumerate(mfmas(n)):
            A(m)
            for x in rd[2*i:2*i+2]: A(x)
            if i == 2 and n == 27:
                vwait(('W', 3), 'tag', 'fu')
                A(f"v_readfirstlane_b32 s96, v242\nv_readfirstlane_b32 s97, v243\ns_nop 3\ns_cmp_lg_u32 s96, 0\ns_cbranch_scc1 FG_havetag")
                get_nonce(A, 'FG', 236, 44, 96)
                A("FG_havetag:")
                if not opt.get('skip_s'): poll_flags4(A, 'FGU', 240, 244, 56, 96, 99, first_issued=True, sleep=8)
                rd = [None] * 6 + [x for n_ in range(4) for x in greads(n_)]
                for x in rd[16:]: A(x)
            if i >= opt.get('dm_first', 3) and di < len(dm): A(dm[di]); di += 1
            if ex and i >= (4 if n < 27 else 2): VM.issue(*ex.pop(0))
        for x in dm[di:]: A(x)
        for x in ex: VM.issue(*x)
    A(f"v_and_b32 v4, 31, v0\nv_lshlrev_b32 v5, 5, v4\ns_lshl_b32 s33, s78, 1\ns_add_u32 s33, s33, s27\ns_lshl_b32 s33, s33, 10\nv_mov_b32 v50, s96\nv_mov_b32 v51, s97")
    srd(A, 16, 6, WS_GP_SZ, WS_GP)
    VM.issue("buffer_load_dwordx4 v[56:59], v5, s[16:19], s33 offen", 'gp')
    VM.issue("buffer_load_dwordx3 v[60:62], v5, s[16:19], s33 offen offset:16", 'gp')
    ST.mark(A)
    k2 = -2.0 * math.sqrt(2.0 / math.pi) * math.log2(math.e)
    C1, C2, ONE = 28, 30, 44
    if 'prio_epi' in opt: A(f"s_setprio {opt['prio_epi']}")
    A(f"""
    v_mov_b32 v{C1}, {f2u(k2)}
    v_mov_b32 v{C1+1}, {f2u(k2)}
    v_mov_b32 v{C2}, {f2u(k2*0.044715)}
    v_mov_b32 v{C2+1}, {f2u(k2*0.044715)}
    v_mov_b32 v{ONE}, 1.0
    v_mov_b32 v{ONE+1}, 1.0
    """)
    def flag(off):
        VM.issue(f"s_mov_b64 exec, 1\nbuffer_store_dwordx2 v[50:51], v{V_Z}, s[56:59], s62 offen offset:{off} sc1\ns_mov_b64 exec, -1", ('flag', off))
    E1, E2, EA, PER = opt.get('e1', 1), opt.get('e2', 7), opt.get('ea', 7), opt.get('e_per', 5)
    order = [(tt, j) for j in range(4) for tt in range(2)]
    wq = []; heldst = []
    NW2 = min(NW, 16)
    for idx, (tt, j) in enumerate(order):
        a = ACC + (tt * 4 + j) * 16
        T = 16 + 16 * (idx & 1)
        O = T + 8
        hold = opt.get('hold_st', 1) and 4 <= idx < EA
        if hold: O = {4: 104, 5: 172, 6: 124}[idx]
        if opt.get('tstamp') and idx % 2 == 0 and idx: ST.mark(A)
        side = []
        if idx == 0:
            A("s_waitcnt lgkmcnt(0)")
            for n_ in range(4): release(n_)
            wq = [x for n_ in range(NS, NS + 4) for x in ldW(n_)]
        if idx == E1:
            vwait(('W', 8))
            side += [(x, None) for n_ in range(4, 9) for x in greads(n_)]
        if idx == E1 + 1:
            A("s_waitcnt lgkmcnt(0)")
            for n_ in range(4, 9): release(n_)
            wq += [x for n_ in range(NS + 4, NS + 9) for x in ldW(n_)]
        if idx == E2:
            assert not wq
            vwait(('W', NW2 - 1))
            side += [(x, None) for n_ in range(9, NW2) for x in greads(n_)]
        if idx == E2 + 1:
            A("s_waitcnt lgkmcnt(0)")
            for n_ in range(9, NW2): release(n_)
            wq = [x for n_ in range(NS + 9, NS + 9 + opt.get('e3n', 3)) for x in ldW(n_)]
            PER = max(PER, (len(wq) + 6 - E2) // (7 - E2))
        if idx == EA:
            vwait(('st', 3))
            flag(0)
            side += heldst
        vm_side = [wq.pop(0) for _ in range(min(PER, len(wq)))]
        M = []
        if usepk or idx < opt.get('pk_n', 0):
            for p in range(4): M.append(f"v_pk_mul_f32 {v(T+2*p,2)}, {v(a+2*p,2)}, {v(a+2*p,2)}")
            for p in range(4): M.append(f"v_pk_fma_f32 {v(T+2*p,2)}, {v(T+2*p,2)}, {v(C2,2)}, {v(C1,2)}")
            for p in range(4): M.append(f"v_pk_mul_f32 {v(T+2*p,2)}, {v(T+2*p,2)}, {v(a+2*p,2)}")
            for p in range(8): M.append(f"v_exp_f32 v{T+p}, v{T+p}")
            for p in range(4): M.append(f"v_pk_add_f32 {v(T+2*p,2)}, {v(T+2*p,2)}, {v(ONE,2)}")
            for p in range(8): M.append(f"v_rcp_f32 v{T+p}, v{T+p}")
            for p in range(4): M.append(f"v_pk_mul_f32 {v(a+2*p,2)}, {v(a+2*p,2)}, {v(a+8+2*p,2)}")
            for p in range(4): M.append(f"v_pk_mul_f32 {v(a+2*p,2)}, {v(a+2*p,2)}, {v(T+2*p,2)}")
        else:
            for p in range(8): M.append(f"v_mul_f32 v{T+p}, v{a+p}, v{a+p}")
            for p in range(8): M.append(f"v_fmaak_f32 v{T+p}, v{C2}, v{T+p}, {f2u(k2)}")
            for p in range(8): M.append(f"v_mul_f32 v{T+p}, v{T+p}, v{a+p}")
            for p in range(8): M.append(f"v_exp_f32 v{T+p}, v{T+p}")
            for p in range(8): M.append(f"v_add_f32 v{T+p}, 1.0, v{T+p}")
            for p in range(8): M.append(f"v_rcp_f32 v{T+p}, v{T+p}")
            for p in range(8): M.append(f"v_mul_f32 v{a+p}, v{a+p}, v{a+8+p}")
            for p in range(8): M.append(f"v_mul_f32 v{a+p}, v{a+p}, v{T+p}")
        for p in range(4): M.append(f"v_cvt_pk_bf16_f32 v{O+p}, v{a+2*p}, v{a+2*p+1}")
        pos = {}
        for lst in (side, vm_side):
            for q_, x in enumerate(lst):
                pos.setdefault(((2 * q_ + 1) * len(M)) // (2 * len(lst)) if opt.get('spread', 1) else 0, []).append(x)
        for q_, m_ in enumerate(M):
            for x in pos.get(q_, []):
                if x[1] is None: A(x[0])
                else: VM.issue(*x)
            A(m_)
        st = (f"s_add_u32 s38, s39, {(tt * 112 + j) * 1024}\nbuffer_store_dwordx4 {v(O,4)}, v{V_ST}, s[20:23], s38 offen {opt.get('hsc', 'sc1')}", ('st', idx))
        if opt.get('no_hst'): st = ("s_nop 0", ('st', idx)); VM.q.append(('st', idx)); VM.q.pop(); continue
        if hold: heldst.append(st)
        else: VM.issue(*st)
    ST.mark(A)
    if opt.get('f_only'):
        ST.finish(A, tsbase); A("s_endpgm"); return
    A(f"""
    s_setprio {opt.get('prio_g', 0)}
    v_add_f32 v56, v56, v57
    v_add_f32 v58, v58, v59
    v_add_f32 v60, v60, v61
    v_add_f32 v56, v56, v58
    v_add_f32 v60, v60, v62
    v_add_f32 v56, v56, v60
    v_cvt_pk_bf16_f32 v56, v56, v56
    v_lshlrev_b32 v56, 16, v56
    v_mul_f32 v56, {f2u(-math.log2(math.e))}, v56
    v_exp_f32 v6, v56
    s_waitcnt lgkmcnt(0)
    """)
    fine = opt.get('finegate', 1)
    if fine: snap(0, 0)
    else: spoll_issue(A, 0)
    A(f"""
    v_add_f32 v6, 1.0, v6
    v_rcp_f32 v6, v6
    """)
    assert E2 < 7 and not wq
    for n_ in range(NW2, NW):
        vwait(('W', n_))
        for x in greads(n_): A(x)
        A("s_waitcnt lgkmcnt(0)")
        release(n_)
    srd(A, 12, 6, WS_AT_SZ, WS_AT)
    A("v_cvt_pk_bf16_f32 v6, v6, v6\nv_lshlrev_b32 v6, 16, v6")
    ST.mark(A)
    if fine:
        A("s_waitcnt lgkmcnt(0)"); gate(0, 0)
    else: spoll(A, 'FGH', 0, 7, 96, 99, first_issued=True, sleep=opt.get('sleep_h', 0))
    ST.mark(A)
    for n in range(HN - 1):
        if fine and n and n % 2 == 0: gate(n // 2, 0)
        for x in ldH(n): VM.issue(*x)
    atdma = f"""s_lshl_b32 s33, s43, 3
            s_add_u32 s33, s33, s24
            s_lshl_b32 s33, s33, 15
            s_lshl_b32 s38, s78, 7
            s_add_u32 s33, s33, s38
            s_add_u32 m0, s87, {ATILE}
            s_add_u32 s38, s33, {32*4096}
            buffer_load_dwordx4 v{V_AT}, s[12:15], s33 offen lds
            s_add_u32 m0, s87, {ATILE + 1024}
            s_nop 0
            buffer_load_dwordx4 v{V_AT}, s[12:15], s38 offen lds"""
    RD = 2
    PB_ISSUE = opt.get('pb_issue', 7); PB_CHECK = 14 - (HN - 1)
    LP = 28 - HN
    for n in range(28):
        vwait(('H', n), ('W', n + RD), extra="lgkmcnt(4)" if NW <= n < 27 else "lgkmcnt(0)" if n == 27 else '')
        if opt.get('gstamp') and n % 4 == 0: ST.mark(A)
        if n == 0: VM.count(('st', 7)); flag(128)
        m2 = n + HN - 1
        if fine and m2 < 28 and m2 % 2 == 0:
            if m2 == 14: A("s_waitcnt lgkmcnt(0)")
            gate((m2 % 14) // 2, m2 // 14)
        if n == PB_CHECK and not fine:
            if opt.get('bstamp'): ST.mark(A)
            spoll(A, 'FGB', 128, 7, 96, 99, first_issued=True, sleep=opt.get('sleep_h', 0))
            if opt.get('bstamp'): ST.mark(A)
        if n == 27:
            vwait('poll')
            A(f"""
            v_cmp_ne_u64 vcc, s[96:97], v[8:9]
            v_cmp_ne_u64 s[100:101], s[96:97], v[10:11]
            s_nop 1
            s_or_b64 vcc, vcc, s[100:101]
            s_cselect_b32 s98, {0 if opt.get('skip_s') else 1}, 0
            s_cmp_lg_u32 s98, 0
            s_cbranch_scc1 FG_atlater
            """)
            A(atdma)
            A("FG_atlater:")
        rd = greads(n + RD) if NW <= n + RD < 28 else []
        ld = ldH(n + HN - 1) if n + HN - 1 < 28 else []
        if n >= NW: release(n)
        lw = []
        m_ = max(slots) + 1
        if m_ < 28 and freeslots and n >= opt.get('w_from', 0): lw = ldW(m_)
        f = wreg(n)
        ldq = ld + lw
        bi = 0
        for bd in range(2):
            for bt in range(2):
                a = GB[bd * 2 + bt]
                A(f"v_mfma_f32_32x32x16_bf16 {v(a,16)}, {v(f+4*bd,4)}, {v(HRS[n%HN]+4*bt,4)}, {'0' if n == 0 else v(a,16)}")
                if bi < 2:
                    for x in rd[2*bi:2*bi+2]: A(x)
                if bi < len(ldq): VM.issue(*ldq[bi])
                bi += 1
        if n == PB_ISSUE and not fine: spoll_issue(A, 128)
        if fine and n + HN - 1 == 12: snap(0, 1)
        if n == LP: VM.issue(f"buffer_load_dwordx4 v[8:11], v{V_ST}, s[56:59], s42 offen sc1", 'poll')
    ST.mark(A)
    RS = [4, 5, 6, 7, 0, 1]
    A(f"""
    v_subrev_u32 v1, s87, v13
    s_xor_b32 s33, s27, s32
    s_lshl_b32 s33, s33, 6
    v_xor_b32 v1, s33, v1
    s_lshl_b32 s33, s32, 10
    s_add_u32 s33, s33, {ATILE}
    v_add_u32 v1, s33, v1
    v_add_u32 v13, s87, v{V_ST}
    v_mov_b32 v2, 896
    v_lshrrev_b32 v5, 5, v0
    v_lshlrev_b32 v5, 4, v5
    v_mad_u32_u24 v2, v4, v2, v5
    v_xor_b32 v14, 2048, v13
    v_xor_b32 v15, 4096, v13
    v_xor_b32 v3, 6144, v13
    """)
    for b in range(1, 4):
        for k in range(4):
            A(f"ds_write_b128 v13, {v(GB[b] + 4*k, 4)} offset:{SLOT[RS[2*(b-1) + (k >> 1)]] + (k & 1)*1024}")
    A("s_cmp_eq_u32 s98, 0\ns_cbranch_scc1 FG_atdone")
    poll_flags4(A, 'FGA', V_ST, 8, 56, 96, 99, sleep=opt.get('sleep_a', 4), soff='s42')
    A(atdma)
    A(f"""
FG_atdone:
    s_lshl_b32 s33, s78, 1
    s_add_u32 s33, s33, s27
    s_mul_i32 s33, s33, {32*896}
    s_lshl_b32 s38, s43, 7
    s_add_u32 s33, s33, s38
    s_lshl_b32 s38, s32, 6
    s_add_u32 s33, s33, s38
    s_mov_b32 s39, 0xffff0000
    """)
    srd(A, 20, 52, SZ_U)
    AT_, RB, TM, PK = 80, 96, 144, 160
    G0 = GB[0]
    A("s_waitcnt vmcnt(0) lgkmcnt(0)\ns_barrier")
    for j in range(4):
        A(f"ds_read_b64_tr_b16 {v(AT_ + 2*j, 2)}, v1 offset:{j*2048}")
    for b in range(3):
        for k in range(4):
            A(f"ds_read_b128 {v(RB + 16*b + 4*k, 4)}, v{[14, 15, 3][b]} offset:{SLOT[RS[2*b + (k >> 1)]] + (k & 1)*1024}")
    A("s_waitcnt lgkmcnt(12)")
    for k in range(16):
        src = AT_ + k // 2
        if k & 1: A(f"v_and_b32 v{TM+k}, s39, v{src}")
        else: A(f"v_lshlrev_b32 v{TM+k}, 16, v{src}")
    if opt.get('endpk', 1):
        A("v_mov_b32 v7, v6")
        for b in range(3):
            A(f"s_waitcnt lgkmcnt({4*(2-b)})")
            for k in range(0, 16, 2): A(f"v_pk_add_f32 {v(G0+k,2)}, {v(G0+k,2)}, {v(RB+16*b+k,2)}")
        for k in range(0, 16, 2): A(f"v_pk_add_f32 {v(TM+k,2)}, {v(TM+k,2)}, {v(G0+k,2)} neg_lo:[0,1] neg_hi:[0,1]")
        for k in range(0, 16, 2): A(f"v_pk_fma_f32 {v(G0+k,2)}, v[6:7], {v(TM+k,2)}, {v(G0+k,2)}")
    else:
        for b in range(3):
            A(f"s_waitcnt lgkmcnt({4*(2-b)})")
            for k in range(16): A(f"v_add_f32 v{G0+k}, v{G0+k}, v{RB+16*b+k}")
        for k in range(16): A(f"v_sub_f32 v{TM+k}, v{TM+k}, v{G0+k}")
        for k in range(16): A(f"v_fmac_f32 v{G0+k}, v6, v{TM+k}")
    for k in range(8): A(f"v_cvt_pk_bf16_f32 v{PK+k}, v{G0+2*k}, v{G0+1+2*k}")
    A("s_nop 1")
    for jj in range(2):
        A(f"v_permlane32_swap_b32 v{PK+4*jj}, v{PK+2+4*jj}\nv_permlane32_swap_b32 v{PK+1+4*jj}, v{PK+3+4*jj}")
    for jj in range(2):
        A(f"buffer_store_dwordx4 {v(PK+4*jj,4)}, v2, s[20:23], s33 offen offset:{32*jj} {opt.get('outsc', '')}")
    ST.finish(A, tsbase)
    A("s_endpgm")
```

```python
from common2 import *
from sched import schedule
import math
CP = 4160; CH = 4 * CP
RED = 2 * CH
CMP = RED + 16384; CMPSZ = 41 * 80
UB = [CMP + 4 * CMPSZ, CMP + 4 * CMPSZ + 4608]
L2E = math.log2(math.e)
assert UB[1] + 4608 <= 81920

class Lds:
    def __init__(self, A): self.A = A; self.q = []
    def issue(self, ins, tag): self.A(ins); self.q.append(tag)
    def need(self, *tags):
        idx = max((i for i, t in enumerate(self.q) if t in tags), default=-1)
        if idx < 0: return
        n = len(self.q) - 1 - idx
        self.A(f"s_waitcnt lgkmcnt({min(n, 15)})")
        self.q = self.q[idx + 1:] if n <= 15 else self.q[len(self.q) - 15:]

def role_s(A, ST, opt, tsbase=0):
    if opt.get('skip_s') and not opt.get('s_touchonly'): A('s_endpgm')
    P, GA, DA, GW, XG, TR = 32, 16, 28, 48, 16, 244
    A(f"""
    s_load_dwordx8 s[40:47], s[0:1], {KA['Are']}
    s_load_dwordx8 s[48:55], s[0:1], {KA['Cre']}
    s_load_dwordx2 s[4:5], s[0:1], {KA['u']}
    s_load_dwordx4 s[16:19], s[0:1], {KA['Wd']}
    s_load_dwordx4 s[56:59], s[0:1], {KA['dbg']}
    s_setprio {opt.get('prio_s0', 3)}
    v_lshrrev_b32 v13, 6, v0
    v_lshlrev_b32 v1, 2, v0
    v_readfirstlane_b32 s24, v13
    s_lshl_b32 s33, s25, 10
    s_lshl_b32 s34, s25, 2
    v_and_b32 v12, 63, v0                 ; lane
    v_lshrrev_b32 v14, 3, v12
    v_bfe_u32 v15, v12, 4, 1
    v_lshlrev_b32 v15, 1, v15
    v_and_b32 v3, 7, v12
    v_xor_b32 v3, v3, v15
    v_lshlrev_b32 v3, 4, v3
    v_mov_b32 v15, 896
    v_mad_u32_u24 v3, v14, v15, v3
    v_xor_b32 v4, 64, v3                  ; rows 8-15
    s_lshl_b32 s38, s26, 2
    s_add_u32 s38, s38, s24
    s_mul_i32 s38, s38, {16*896}
    s_lshl_b32 s39, s27, 7
    s_add_u32 s31, s38, s39               ; X soffset
    s_lshr_b32 s35, s24, 1
    s_mul_i32 s35, s35, {UB[1]-UB[0]}
    s_and_b32 s38, s24, 1
    s_lshl_b32 s38, s38, 11
    s_add_u32 s35, s35, s38
    s_add_u32 s35, s35, {UB[0]+512}
    v_and_b32 v7, 3, v12
    v_lshlrev_b32 v6, 5, v7
    v_mov_b32 v29, 0
    s_mov_b32 s10, {SZ_P}
    s_mov_b32 s11, 0x00020000
    s_mov_b32 s14, 896
    s_mov_b32 s15, 0x00020000
    s_waitcnt lgkmcnt(0)
    """)
    ST.mark(A)
    A(f"s_mov_b32 s12, s52\ns_mov_b32 s13, s53\nbuffer_load_dword v26, v29, s[12:15], s34 offen")
    for k in range(6):
        A(f"s_mov_b32 s8, s{40+2*k}\ns_mov_b32 s9, s{41+2*k}\nbuffer_load_dword v{P+6+k}, v1, s[8:11], s33 offen")
    A(f"s_setprio {opt.get('prio_s1', opt.get('prio_s', 1))}")
    srd(A, 8, 4, SZ_U); srd(A, 60, 56, 256)
    A("s_mov_b32 s52, s54\ns_mov_b32 s53, s55\ns_mov_b32 s54, s18\ns_mov_b32 s55, s19\ns_mov_b32 s42, 896\ns_mov_b32 s43, 0x00020000\ns_mov_b32 s45, s31\ns_mov_b32 s46, s39\nv_mov_b32 v25, v6")
    late = f"""
    s_mov_b32 s40, s52
    s_mov_b32 s41, s53
    buffer_load_dword v27, v29, s[40:43], s34 offen
    s_mov_b32 m0, s35
    s_add_u32 s44, s45, {8*896}
    buffer_load_dwordx4 v3, s[8:11], s45 offen lds
    s_add_u32 m0, s35, 1024
    s_mov_b32 s40, s54
    buffer_load_dwordx4 v4, s[8:11], s44 offen lds
    s_mov_b32 s41, s55
    buffer_load_dwordx2 v[30:31], v29, s[60:63], 0 offen sc1
    buffer_load_dwordx4 {v(GW,4)}, v25, s[40:43], s46 offen
    buffer_load_dwordx4 {v(GW+4,4)}, v25, s[40:43], s46 offen offset:16
    """
    LATE = opt.get('late_at', 0.07)
    if not LATE: A(late)
    A(f"""
    s_setprio {opt.get('prio_s', 1)}
    s_mov_b32 s6, s58
    s_mov_b32 s7, s59
    """)
    srd(A, 48, 16, SZ_W)
    srd(A, 12, 6, WS_U2_SZ, WS_U2); srd(A, 16, 6, WS_AT_SZ, WS_AT); srd(A, 20, 6, WS_GP_SZ, WS_GP); srd(A, 56, 6, WS_FL_SZ, WS_FL)
    ST.mark(A)
    A(f"""
    s_lshl_b32 s85, s87, 2
    s_add_u32 s85, s85, s24
    s_lshl_b32 s85, s85, 13
    v_lshlrev_b32 v2, 7, v12
    v_mov_b32 v6, {CMP + 64}
    ds_write_b32 v6, v29
    ds_write_b32 v6, v29 offset:{CMPSZ}
    ds_write_b32 v6, v29 offset:{2*CMPSZ}
    ds_write_b32 v6, v29 offset:{3*CMPSZ}
    v_and_b32 v6, 127, v0
    v_lshlrev_b32 v6, 2, v6
    v_lshrrev_b32 v5, 7, v0
    v_mov_b32 v14, {UB[1]-UB[0]}
    v_mad_u32_u24 v6, v5, v14, v6
    v_add_u32 v6, {UB[0]}, v6
    ds_write_b32 v6, v29
    v_and_b32 v6, 15, v12
    v_lshrrev_b32 v5, 4, v12              ; g
    v_mul_u32_u24 v8, 320, v5
    v_lshl_add_u32 v8, v6, 2, v8
    s_mul_i32 s39, s24, {CMPSZ}
    s_add_u32 s39, s39, {CMP}
    v_add_u32 v{DA}, s39, v8
    v_bfe_u32 v6, v12, 2, 2
    v_and_b32 v8, 1, v5                   ; tb
    v_lshl_add_u32 v9, v8, 3, v6
    v_lshlrev_b32 v9, 7, v9
    v_lshl_add_u32 v9, v7, 3, v9
    v_add_u32 v9, s35, v9
    v_lshrrev_b32 v10, 1, v6
    v_lshl_or_b32 v10, v8, 1, v10
    v_lshrrev_b32 v11, 1, v5
    v_xor_b32 v10, v10, v11
    v_lshl_add_u32 v13, v10, 5, v9
    v_xor_b32 v10, 2, v10
    v_lshl_add_u32 v14, v10, 5, v9
    v_lshl_add_u32 v10, v11, 2, v6
    v_lshlrev_b32 v10, 14, v10
    v_lshl_add_u32 v10, v8, 6, v10
    v_lshl_add_u32 v15, v7, 4, v10
    v_lshrrev_b32 v5, 2, v12
    v_bfe_u32 v6, v5, 1, 1
    v_bfe_u32 v8, v5, 3, 1
    v_lshl_or_b32 v6, v8, 1, v6
    v_xor_b32 v6, v6, v7
    v_lshlrev_b32 v6, 5, v6
    v_lshl_add_u32 v6, v5, 7, v6
    v_add_u32 v6, s35, v6
    v_lshlrev_b32 v5, 5, v5
    s_lshl_b32 s38, s27, 18
    s_lshl_b32 s39, s26, 2
    s_add_u32 s39, s39, s24
    s_lshl_b32 s32, s39, 7
    s_add_u32 s30, s38, s32               ; U2 soffset
    s_lshl_b32 s39, s39, 9
    s_lshl_b32 s32, s27, 2
    s_add_u32 s31, s39, s32
    s_add_u32 s32, s30, {8*16384}
    """)
    def tpart():
        A(f"""
        s_waitcnt vmcnt(0)
        ds_read_b64_tr_b16 {v(TR,2)}, v13
        ds_read_b64_tr_b16 {v(TR+2,2)}, v13 offset:512
        ds_read_b64_tr_b16 {v(TR+4,2)}, v14
        ds_read_b64_tr_b16 {v(TR+6,2)}, v14 offset:512
        ds_read_b128 {v(XG,4)}, v6
        ds_read_b128 {v(XG+4,4)}, v6 offset:16
        v_readfirstlane_b32 s96, v30
        v_readfirstlane_b32 s97, v31
        v_readfirstlane_b32 s37, v27
        v_mov_b32 v8, 0
        s_waitcnt lgkmcnt(2)
        buffer_store_dwordx4 {v(TR,4)}, v15, s[12:15], s30 offen sc1
        buffer_store_dwordx4 {v(TR+4,4)}, v15, s[12:15], s32 offen sc1
        s_waitcnt lgkmcnt(0)
        """)
        for i in range(8): A(f"v_dot2_f32_bf16 v8, v{XG+i}, v{GW+i}, v8")
        A(f"""
        s_nop 2
        v_add_f32_dpp v8, v8, v8 quad_perm:[1,0,3,2] row_mask:0xf bank_mask:0xf
        s_nop 1
        v_add_f32_dpp v8, v8, v8 quad_perm:[2,3,0,1] row_mask:0xf bank_mask:0xf
        s_mov_b32 exec_lo, 0x11111111
        s_mov_b32 exec_hi, 0x11111111
        buffer_store_dword v8, v5, s[20:23], s31 offen sc1
        s_mov_b64 exec, -1
        """)
    B = Asm()
    tmp = [60, 61, 62, 63]
    cnt = [0]; neg = {}
    def cmul(z, x, y):
        cnt[0] += 1
        if y in neg:
            B(f"v_mul_f32 v{z}, v{x}, v{y}\nv_mul_f32 v{z+1}, v{x}, v{y+1}\nv_fmac_f32 v{z}, v{x+1}, v{neg[y]}\nv_fmac_f32 v{z+1}, v{x+1}, v{y}")
        elif x == y:
            t = tmp[cnt[0] & 3]
            B(f"v_mul_f32 v{z}, v{x}, v{x}\nv_add_f32 v{t}, v{x}, v{x}\nv_fma_f32 v{z}, -v{x+1}, v{x+1}, v{z}\nv_mul_f32 v{z+1}, v{t}, v{x+1}")
        else:
            B(f"v_mul_f32 v{z}, v{x}, v{y}\nv_mul_f32 v{z+1}, v{x}, v{y+1}\nv_fma_f32 v{z}, -v{x+1}, v{y+1}, v{z}\nv_fmac_f32 v{z+1}, v{x+1}, v{y}")
    PBK, PB, OUT, BF, KD = [152, 168], 184, 200, 216, 232
    bank = [0]
    use16 = opt.get('f16', 1)
    def put(row, z, ng=False):
        B(f"v_cvt_pk_{'f16' if use16 else 'bf16'}_f32 v{PBK[bank[0]] + row}, v{z}, {'-' if ng else ''}v{z+1}")
    def hmul(row, x, y, conj=False):
        d = PBK[bank[0]] + row
        B(f"v_pk_mul_f16 v{d}, v{x}, v{y} op_sel:[0,0] op_sel_hi:[1,0]")
        B(f"v_pk_fma_f16 v{d}, v{x}, v{y}, v{d} op_sel:[1,1,0] op_sel_hi:[0,1,1] {'neg_hi' if conj else 'neg_lo'}:[1,0,0]")
    def transpose(dst, nrows=16):
        PA = PBK[bank[0]]; bank[0] ^= 1
        cur = [PA + i for i in range(16)]
        for d, mask in ((8, 0x00ff00ff), (4, 0x0f0f0f0f), (2, 0x33333333), (1, 0x55555555)):
            if d == 1: new = [dst + i for i in range(16)]
            else: new = [r for r in list(range(PA, PA + 16)) + list(range(PB, PB + 16)) if r not in cur][:16]
            cx = {8: 'row_ror:8', 4: 'row_ror:4', 2: 'quad_perm:[2,3,0,1]', 1: 'quad_perm:[1,0,3,2]'}[d]
            cy = {8: 'row_ror:8', 4: 'row_ror:12', 2: 'quad_perm:[2,3,0,1]', 1: 'quad_perm:[1,0,3,2]'}[d]
            B(f"s_mov_b32 vcc_lo, {mask:#x}\ns_mov_b32 vcc_hi, {mask:#x}")
            lo = [i for i in range(16) if not i & d]
            for i in lo:
                if d == 8 and i + 8 >= nrows: new[i] = cur[i]
                else: B(f"v_cndmask_b32_dpp v{new[i]}, v{cur[i+d]}, v{cur[i]}, vcc {cx} row_mask:0xf bank_mask:0xf")
            B("s_not_b64 vcc, vcc")
            for i in lo:
                if d == 8 and i + 8 >= nrows: B(f"v_mov_b32_dpp v{new[i+d]}, v{cur[i]} {cy} row_mask:0xf bank_mask:0xf")
                else: B(f"v_cndmask_b32_dpp v{new[i+d]}, v{cur[i]}, v{cur[i+d]}, vcc {cy} row_mask:0xf bank_mask:0xf")
            cur = new
    def kmfma(t, c):
        for ks in range(4):
            B(f"v_mfma_f32_16x16x32_{'f16' if use16 else 'bf16'} {v(KD+4*t,4)}, {v(OUT+4*ks,4)}, {v(BF+4*ks,4)}, {'0' if ks == 0 and c == 0 else v(KD+4*t,4)}")
    def direct(z, l, ra, rc, t, wantneg=True):
        if l == 1: B(f"v_exp_f32 v{t}, v{ra}\nv_rndne_f32 v{t+1}, v{rc}\nv_sub_f32 v{t+1}, v{rc}, v{t+1}")
        else: B(f"v_mul_f32 v{t}, {f2u(float(l))}, v{ra}\nv_mul_f32 v{z}, {f2u(float(l))}, v{rc}\nv_exp_f32 v{t}, v{t}\nv_rndne_f32 v{t+1}, v{z}\nv_sub_f32 v{t+1}, v{z}, v{t+1}")
        B(f"v_cos_f32 v{z}, v{t+1}\nv_sin_f32 v{z+1}, v{t+1}\nv_mul_f32 v{z}, v{z}, v{t}\nv_mul_f32 v{z+1}, v{z+1}, v{t}")
        if wantneg: B(f"v_sub_f32 v{neg[z]}, 0, v{z+1}")
    rowof = {}
    for r in range(8): rowof[r] = r; rowof[128 + r] = 8 + r
    for r in range(4): rowof[256 + 2*r] = r; rowof[384 + 2*r] = 4 + r
    for k, l in enumerate([512, 516, 640, 644, 768, 772, 896, 900]): rowof[l] = 8 + k
    for r in range(9): rowof[1024 + 128*r] = r
    reg = {}; nxt = [70]
    def R(l):
        if l not in reg: reg[l] = nxt[0]; nxt[0] += 2
        return reg[l]
    for l, n in (((32, 47), (128, 59)) if use16 else ((8, 47), (1, 58), (128, 59))): neg[R(l)] = n
    dt, ra, rc = 44, 45, 46
    def tables(c):
        p = P
        for k in range(6): B(f"v_and_b32 v{p+k}, 0xffff0000, v{p+6+k}" if c else f"v_lshlrev_b32 v{p+k}, 16, v{p+6+k}")
        for k in range(4): B(f"v_mul_f32 v{p+k}, v{dt}, v{p+k}")
        B(f"v_mul_f32 v{ra}, {f2u(L2E)}, v{p}\nv_mul_f32 v{rc}, {f2u(1/(2*math.pi))}, v{p+1}")
        W = 68
        cmul(W, p + 4, p + 2)
        direct(R(8), 8, ra, rc, 60); direct(R(1), 1, ra, rc, 62); direct(R(128), 128, ra, rc, 64)
        F = [W, 56]
        put(0, W, True)
        e0 = [(l, l - 1, 1) for l in range(2, 8)] + [(128 + l, l, 128) for l in range(1, 8)]
        for fi in range(1, 16):
            cmul(F[fi & 1], F[(fi - 1) & 1], R(8)); put(fi, F[fi & 1], True)
        transpose(BF)
        for z, x, y in e0: cmul(R(z), R(x), R(y))
        B(f"v_mov_b32 v{PBK[bank[0]]}, 0x3f80")
        for l in list(range(1, 8)) + list(range(128, 136)): put(rowof[l], R(l))
        transpose(OUT)
        kmfma(0, c)
        s1 = [(256 + 2*l, 128 + l, 128 + l) for l in range(4)] + [(384 + l, 256 + l, 128) for l in (0, 2, 4, 6)]
        s1 += [(512, 256, 256), (516, 258, 258), (768, 384, 384), (772, 386, 386), (640, 512, 128), (644, 516, 128), (896, 768, 128), (900, 772, 128)]
        for z, x, y in s1: cmul(R(z), R(x), R(y)); put(rowof[z], R(z))
        transpose(OUT)
        kmfma(1, c)
        s2 = [(1024, 512, 512), (1280, 640, 640), (1536, 768, 768), (1792, 896, 896), (1152, 1024, 128), (1408, 1280, 128), (1664, 1536, 128), (1920, 1792, 128), (2048, 1024, 1024)]
        for z, x, y in s2: cmul(R(z), R(x), R(y)); put(rowof[z], R(z))
        transpose(OUT, 9)
        kmfma(2, c)
    HP = {}; hnx = [120]
    def Hreg(l):
        if l not in HP: HP[l] = hnx[0]; hnx[0] += 1
        return HP[l]
    WS_ = [140, 142]
    AC = [(144, 145), (146, 147)]
    def tables16(c):
        ra, rc = AC[c]
        row = lambda r: PBK[bank[0]] + r
        keep = lambda l: B(f"v_cvt_pk_f16_f32 v{Hreg(l)}, v{R(l)}, v{R(l)+1}")
        direct(R(8), 8, ra, rc, 60, False); direct(R(1), 1, ra, rc, 62, False); direct(R(128), 128, ra, rc, 64, True)
        cmul(R(16), R(8), R(8)); cmul(R(32), R(16), R(16)); cmul(R(24), R(16), R(8))
        B(f"v_sub_f32 v{neg[R(32)]}, 0, v{R(32)+1}")
        for l in (8, 16, 24): keep(l)
        F = [WS_[c], 56, 68, 56]
        for a_ in range(4):
            if a_: cmul(F[a_], F[a_-1], R(32))
            put(4 * a_, F[a_], True)
            for b_ in range(1, 4): hmul(4 * a_ + b_, row(4 * a_), Hreg(8 * b_), True)
        transpose(BF)
        cmul(R(2), R(1), R(1)); cmul(R(3), R(2), R(1)); cmul(R(4), R(2), R(2)); cmul(R(6), R(3), R(3)); cmul(R(132), R(128), R(4))
        B(f"v_mov_b32 v{row(0)}, 0x3c00")
        for l in (1, 2, 3, 4, 6, 128, 132): put(rowof[l], R(l))
        for z, x, y in ((5, 4, 1), (7, 4, 3), (129, 128, 1), (130, 128, 2), (131, 128, 3), (133, 132, 1), (134, 132, 2), (135, 132, 3)):
            hmul(rowof[z], row(rowof[x]), row(rowof[y]))
        transpose(OUT)
        kmfma(0, c)
        for l in (2, 4, 6): keep(l)
        for z, x, y in ((256, 128, 128), (384, 256, 128), (512, 256, 256), (640, 512, 128), (768, 384, 384), (896, 768, 128)):
            cmul(R(z), R(x), R(y)); put(rowof[z], R(z))
        for z, x, y in ((258, 256, 2), (260, 256, 4), (262, 256, 6), (386, 384, 2), (388, 384, 4), (390, 384, 6), (516, 512, 4), (644, 640, 4), (772, 768, 4), (900, 896, 4)):
            hmul(rowof[z], row(rowof[x]), Hreg(y))
        transpose(OUT)
        kmfma(1, c)
        cmul(R(1024), R(512), R(512)); put(0, R(1024))
        for r in range(1, 8): keep(128 * r); hmul(r, row(0), Hreg(128 * r))
        cmul(R(2048), R(1024), R(1024)); put(8, R(2048))
        transpose(OUT, 9)
        kmfma(2, c)
    def setup16():
        p = P
        for c in range(2):
            ra, rc = AC[c]
            for k in range(6): A(f"v_and_b32 v{p+k}, 0xffff0000, v{p+6+k}" if c else f"v_lshlrev_b32 v{p+k}, 16, v{p+6+k}")
            for k in range(4): A(f"v_mul_f32 v{p+k}, v{dt}, v{p+k}")
            w = WS_[c]
            A(f"v_mul_f32 v{ra}, {f2u(L2E)}, v{p}\nv_mul_f32 v{rc}, {f2u(1/(2*math.pi))}, v{p+1}")
            A(f"v_mul_f32 v{w}, v{p+4}, v{p+2}\nv_mul_f32 v{w+1}, v{p+4}, v{p+3}\nv_fma_f32 v{w}, -v{p+5}, v{p+3}, v{w}\nv_fmac_f32 v{w+1}, v{p+5}, v{p+2}")
        A(f"v_max3_f32 v61, v{AC[0][0]}, v{AC[1][0]}, 0\nv_max3_f32 v60, |v{WS_[0]}|, |v{WS_[0]+1}|, |v{WS_[1]}|\nv_max_f32 v60, |v{WS_[1]+1}|, v60\ns_nop 0")
        for d in (1, 2, 4, 8):
            A(f"v_max_f32_dpp v61, v61, v61 row_ror:{d} row_mask:0xf bank_mask:0xf\nv_max_f32_dpp v60, v60, v60 row_ror:{d} row_mask:0xf bank_mask:0xf\ns_nop 0")
        for k, l in enumerate((0, 16, 32, 48)): A(f"v_readlane_b32 s{64+k}, v61, {l}\nv_readlane_b32 s{68+k}, v60, {l}")
        A(f"""
        s_max_u32 s64, s64, s65
        s_max_u32 s66, s66, s67
        s_max_u32 s47, s64, s66
        s_max_u32 s68, s68, s69
        s_max_u32 s70, s70, s71
        s_max_u32 s68, s68, s70
        s_lshr_b32 s68, s68, 23
        s_max_u32 s68, s68, 20
        s_min_u32 s68, s68, 240
        s_sub_u32 s69, {254 + 9}, s68
        s_lshl_b32 s72, s69, 23               ; scale = 2^(9 - e)
        s_sub_u32 s68, s68, 9
        s_lshl_b32 s73, s68, 23               ; inverse
        v_subrev_f32 v{AC[0][0]}, s47, v{AC[0][0]}
        v_subrev_f32 v{AC[1][0]}, s47, v{AC[1][0]}
        """)
        for c in range(2): A(f"v_mul_f32 v{WS_[c]}, s72, v{WS_[c]}\nv_mul_f32 v{WS_[c]+1}, s72, v{WS_[c]+1}")
    def unscale16():
        for k in range(12): A(f"v_mul_f32 v{KD+k}, s73, v{KD+k}")
        A(f"""
        s_cmp_eq_u32 s47, 0
        s_cbranch_scc1 S_nogrow
        v_and_b32 v8, 15, v12
        v_lshrrev_b32 v9, 4, v12              ; q
        v_lshlrev_b32 v8, 3, v8               ; 8 i
        v_cmp_lt_u32 vcc, 1, v9
        v_lshlrev_b32 v10, 2, v9
        v_add_u32 v11, 120, v10
        v_cndmask_b32 v60, v10, v11, vcc
        v_lshlrev_b32 v10, 7, v9
        v_add_u32 v10, 256, v10
        v_lshlrev_b32 v11, 8, v9
        v_cndmask_b32 v61, v10, v11, vcc
        v_lshlrev_b32 v62, 9, v9
        v_add_u32 v62, 1024, v62
        """)
        for t_ in range(3):
            for r in range(4):
                if t_ == 1:
                    A(f"v_mov_b32 v10, {2*r}\nv_mov_b32 v11, {128*(r >> 1) + 4*(r & 1)}\nv_cndmask_b32 v10, v10, v11, vcc\nv_add3_u32 v10, v10, v61, v8")
                else:
                    A(f"v_add_u32 v10, {r if t_ == 0 else 128*r}, v{60+t_}\nv_add_u32 v10, v10, v8")
                A(f"v_cvt_f32_u32 v10, v10\nv_mul_f32 v10, s47, v10\nv_exp_f32 v10, v10\ns_nop 0\nv_mul_f32 v{KD+4*t_+r}, v{KD+4*t_+r}, v10")
        A("S_nogrow:")
    def gather_addresses():
        T0, E_, K_ = (32, 48, 66) if use16 else (76, 85, 64)
        Vr = [244 + e for e in range(8)] + [25] if use16 else [94 + e for e in range(8)] + [25]
        B(f"v_lshlrev_b32 v{GA}, 3, v0\nv_sub_u32 v{GA}, 2047, v{GA}\nv_cvt_f32_u32 v{GA}, v{GA}")
        for e in range(9): B(f"v_add_f32 v{T0+e}, {f2u(-1.0*e)}, v{GA}")
        for e in range(0, 9, 2): B(f"v_cvt_pk_bf16_f32 v{E_+e//2}, v{T0+e}, v{T0+min(e+1,8)}")
        for e in range(9): B(f"v_and_b32 v{T0+e}, 0xffff0000, v{E_+e//2}" if e & 1 else f"v_lshlrev_b32 v{T0+e}, 16, v{E_+e//2}")
        for e in range(9): B(f"v_frexp_exp_i32_f32 v{E_+e}, v{T0+e}\nv_cvt_u32_f32 v{Vr[e]}, v{T0+e}")
        for e in range(9): B(f"v_subrev_u32 v{E_+e}, 8, v{E_+e}\nv_lshrrev_b32 v{T0+e}, 7, v{Vr[e]}\nv_and_b32 v{GA+e}, 7, v{Vr[e]}")
        for e in range(9): B(f"v_max_i32 v{E_+e}, 0, v{E_+e}\nv_lshl_or_b32 v{T0+e}, v{T0+e}, 3, v{GA+e}\nv_bfe_u32 v{Vr[e]}, v{Vr[e]}, 3, 4")
        for e in range(9): B(f"v_lshrrev_b32 v{T0+e}, v{E_+e}, v{T0+e}\nv_lshlrev_b32 v{Vr[e]}, 2, v{Vr[e]}")
        for e in range(9): B(f"v_lshl_add_u32 v{T0+e}, v{E_+e}, 3, v{T0+e}\nv_add_u32 v{Vr[e]}, {CMP}, v{Vr[e]}")
        B(f"v_mov_b32 v{K_}, 80")
        for e in range(9): B(f"v_mad_u32_u24 v{GA+e}, v{T0+e}, v{K_}, v{Vr[e]}")
    def publish_u():
        A(f"s_waitcnt vmcnt(0)\ns_cmp_lg_u32 s96, 0\ns_cbranch_scc1 S_havetag")
        get_nonce(A, 'SA', 8, 60, 96)
        A(f"""
S_havetag:
        s_lshl_b32 s38, s27, 5
        s_add_u32 s38, s38, s26
        s_lshl_b32 s38, s38, 2
        s_add_u32 s38, s38, s24
        s_lshl_b32 s38, s38, 3
        s_add_u32 s38, s38, {FL_U}
        v_mov_b32 v10, s38
        v_mov_b32 v8, s96
        v_mov_b32 v9, s97
        s_mov_b64 exec, 1
        buffer_store_dwordx2 v[8:9], v10, s[56:59], 0 offen sc1
        s_mov_b64 exec, -1
        """)
    def pollissue():
        A(f"""
        v_lshlrev_b32 v6, 4, v12
        s_lshr_b32 s38, s25, 5
        s_lshl_b32 s38, s38, 10
        s_add_u32 s38, s38, {FL_U}
        v_add_u32 v6, s38, v6
        buffer_load_dwordx4 v[8:11], v6, s[56:59], 0 offen sc1
        """)
    def udma():
        A("s_mov_b64 s[28:29], vcc\ns_waitcnt vmcnt(0)")
        poll_flags4(A, 'SU', 6, 8, 56, 96, 99, first_issued=True, sleep=4)
        A(f"""
        s_barrier
        v_lshlrev_b32 v6, 6, v12
        s_lshr_b32 s38, s25, 1
        s_lshl_b32 s38, s38, 14
        s_and_b32 s39, s25, 1
        s_lshl_b32 s39, s39, 5
        s_add_u32 s38, s38, s39
        s_lshl_b32 s39, s24, 12
        s_add_u32 s38, s38, s39
        s_lshl_b32 s39, s24, 10
        s_add_u32 m0, s39, {UB[0] + 512}
        s_mov_b64 vcc, s[28:29]
        buffer_load_dwordx4 v6, s[12:15], s38 offen lds
        s_add_u32 m0, s39, {UB[1] + 512}
        s_add_u32 s38, s38, 16
        buffer_load_dwordx4 v6, s[12:15], s38 offen lds
        """)
    ST.mark(A)
    A(f"""
    s_waitcnt vmcnt({0 if LATE else 6})
    v_lshlrev_b32 v{dt}, 16, v26
    v_and_b32 v26, 0xffff0000, v26
    s_cmp_ge_u32 s24, 2
    s_cselect_b64 vcc, -1, 0
    v_cndmask_b32 v{dt}, v{dt}, v26, vcc
    v_mul_f32 v{dt}, {f2u(L2E)}, v{dt}
    v_exp_f32 v{dt}, v{dt}
    s_nop 0
    v_cvt_pk_bf16_f32 v{dt}, v{dt}, v{dt}
    v_lshlrev_b32 v{dt}, 16, v{dt}
    """)
    if opt.get('s_touchonly'):
        A("s_cmp_ge_u32 s87, 4\ns_cbranch_scc1 S_tend\ns_sleep 40")
        for q in range(13): A(f"buffer_load_dword v3, v2, s[48:51], s85 offen\ns_add_u32 s85, s85, {16 * 8192}")
        A("S_tend:\ns_endpgm")
    ST.mark(A)
    if use16:
        setup16(); tables16(0); tables16(1)
        assert nxt[0] <= 120 and hnx[0] <= 140
    else:
        tables(0); tables(1)
    ng = len(B.l)
    gather_addresses()
    seq = schedule(B.l, filler='v_mov_b32 v29, v29' if opt.get('fill', 0 if use16 else 1) else None, window=700)
    N = len(seq)
    firstga = next(i for i, x in enumerate(seq) if x.startswith(f"v_lshlrev_b32 v{GA}, 3, v0"))
    print('S table ops', len(B.l), 'scheduled', N, 'nops', seq.count('s_nop 0'), 'fillers', seq.count('v_mov_b32 v29, v29'), 'first gather op at', firstga)
    tp = int(N * opt.get('t_at', 0.2))
    assert tp < firstga
    hk = {int(N * LATE) if LATE else -1: lambda: A(late), tp: tpart, int(N * opt.get('pub_at', 0.35)): publish_u, N // 2: lambda: ST.mark(A),
          int(N * opt.get('poll_at', 0.85)): pollissue, int(N * opt.get('udma_at', 0.97)): udma}
    nt = opt.get('wd_n', 13); t0_, t1_ = opt.get('wd_span', (0.36, 0.95))
    tpos = {int(N * (t0_ + (t1_ - t0_) * q / max(1, nt - 1))) + 1: q for q in range(nt)} if opt.get('wdpf', 1) else {}
    for i, x in enumerate(seq):
        if i in hk: hk[i]()
        if i in tpos:
            A(f"s_cmp_ge_u32 s87, 4\ns_cbranch_scc1 S_wt{tpos[i]}\nbuffer_load_dword v3, v2, s[48:51], s85 offen\ns_add_u32 s85, s85, {16 * 8192}\nS_wt{tpos[i]}:")
        A(x)
    ST.mark(A)
    A(f"""
    v_mov_b32 v7, {CMP + 64}
    v_cmp_eq_u32 vcc, 255, v0
    v_and_b32 v6, 15, v12                 ; rho / n
    s_lshr_b32 s32, s24, 1                ; ch
    v_cndmask_b32 v{GA+8}, v{GA+8}, v7, vcc
    v_lshrrev_b32 v7, 4, v12              ; kg
    s_and_b32 s27, s24, 1                 ; par
    """)
    if use16:
        A("s_nop 4"); unscale16()
    A("v_not_b32 v8, v6\nv_and_b32 v8, 3, v8")
    for t in range(3):
        for r in range(4):
            if t == 2 and r == 0: A("s_mov_b32 exec_hi, 0xffff")
            if t == 2 and r == 1: A("s_mov_b32 exec_hi, 0")
            A(f"ds_write_b32 v{DA}, v{KD+4*t+r} offset:{t*1280 + r*80}")
    A(f"""
    s_mov_b64 exec, -1
    v_mul_u32_u24 v8, {CP}, v8
    v_and_b32 v9, 12, v6
    v_lshlrev_b32 v9, 1, v9
    v_sub_u32 v8, v8, v9
    v_lshl_add_u32 v8, v7, 4, v8
    s_mul_i32 s38, s32, {CH}
    s_lshl_b32 s39, s27, 6
    s_sub_u32 s38, s38, s39
    s_add_u32 s38, s38, {2*2044 - 32*127 + 64}
    v_add_u32 v1, s38, v8                 ; vA
    v_lshlrev_b32 v8, 5, v6
    v_lshl_add_u32 v9, v7, 4, v8
    s_mul_i32 s38, s32, {UB[1]-UB[0]}
    s_add_u32 s38, s38, {UB[0] + 512}
    s_sub_u32 s39, s38, s39
    s_sub_u32 s39, s39, {32*13}
    v_add_u32 v2, s39, v9                 ; vB
    v_lshl_add_u32 v3, v7, 3, v8
    v_add_u32 v4, s38, v3
    v_and_b32 v3, 2, v7
    v_lshl_add_u32 v3, v3, 3, v8
    v_and_b32 v5, 1, v7
    v_lshl_add_u32 v3, v5, 10, v3
    s_waitcnt lgkmcnt(0)
    s_barrier
    """)
    ST.mark(A)
    E = [64, 80]
    for c in range(2):
        for e in range(9):
            A(f"ds_read_b32 v{100 + 20*c + e}, v{GA+e} offset:{2*c*CMPSZ}\nds_read_b32 v{110 + 20*c + e}, v{GA+e} offset:{(2*c+1)*CMPSZ}")
    A(f"""
    v_lshlrev_b32 v5, 4, v12
    s_lshl_b32 s38, s24, 12
    s_add_u32 s38, s38, {RED}
    v_add_u32 v14, s38, v5
    s_xor_b32 s38, s24, 1
    s_lshl_b32 s38, s38, 12
    s_add_u32 s38, s38, {RED}
    v_add_u32 v15, s38, v5
    s_lshl_b32 s35, s37, 16
    s_and_b32 s38, s37, 0xffff0000
    s_cmp_eq_u32 s32, 1
    s_cselect_b32 s35, s38, s35           ; Dskip (f32)
    s_lshl_b32 s33, s25, 1
    s_add_u32 s33, s33, s32
    s_lshl_b32 s33, s33, 12               ; d*4096
    v_lshlrev_b32 v6, 4, v0
    v_add_u32 v7, {2*CP - 4}, v6
    v_add_u32 v8, {3*CP - 4}, v6
    v_add_u32 v9, {CH + 2*CP - 4}, v6
    v_add_u32 v10, {CH + 3*CP - 4}, v6
    """)
    def copies(c, e, o):
        A(f"""ds_write_b128 v6, {v(e,4)} offset:{c*CH}
        ds_write_b128 v6, {v(o,4)} offset:{c*CH + CP}
        ds_write2_b32 v{7+2*c}, v{e}, v{e+1} offset0:0 offset1:1
        ds_write2_b32 v{7+2*c}, v{e+2}, v{e+3} offset0:2 offset1:3
        ds_write2_b32 v{8+2*c}, v{o}, v{o+1} offset0:0 offset1:1
        ds_write2_b32 v{8+2*c}, v{o+2}, v{o+3} offset0:2 offset1:3""")
    for c in range(2):
        A(f"s_waitcnt lgkmcnt({15 if c == 0 else 6})")
        b = 100 + 20*c
        for e in range(9): A(f"v_add_f32 v{b+e}, v{b+e}, v{b+10+e}")
        for j in range(4): A(f"v_cvt_pk_bf16_f32 v{E[c]+j}, v{b+2*j}, v{b+2*j+1}\nv_cvt_pk_bf16_f32 v{E[c]+8+j}, v{b+2*j+1}, v{b+2*j+2}")
        copies(c, E[c], E[c] + 8)
    A(f"s_cmp_lg_u32 s24, 0\ns_cbranch_scc1 S_nozero\ns_mov_b64 exec, 3")
    for k in range(4): A(f"v_mov_b32 v{96+k}, 0")
    for k in range(6, 11): A(f"v_add_u32 v{k}, 4096, v{k}")
    for c in range(2): copies(c, 96, 96)
    A("s_mov_b64 exec, -1\nS_nozero:\ns_waitcnt vmcnt(0) lgkmcnt(0)\ns_barrier")
    ST.mark(A)
    if 'prio_conv' in opt: A(f"s_setprio {opt['prio_conv']}")
    ACC, BR, AR = 16, [64, 96], 48
    L = Lds(A)
    def rdB(e, j): L.issue(f"ds_read_b128 {v(BR[e&1] + 4*j, 4)}, v2 offset:{512*j + 32*(13 - (1 + 4*e))}", ('B', e, j))
    def rdA(n):
        e, q = divmod(n, 8)
        o = 32 * (127 - 16*q - (1 + 4*e)) - 64; r = AR + 4 * (n % 4)
        L.issue(f"ds_read_b64 {v(r,2)}, v1 offset:{o}", ('A0', n)); L.issue(f"ds_read_b64 {v(r+2,2)}, v1 offset:{o+8}", ('A', n))
    rdA(0)
    for j in range(8): rdB(0, j)
    rdA(1); rdA(2)
    for n in range(32):
        e, q = divmod(n, 8)
        for j in range(q, 8):
            L.need(('A', n), ('B', e, j - q))
            first = (e == 0 and q == 0)
            A(f"v_mfma_f32_16x16x32_bf16 {v(ACC+4*j,4)}, {v(AR+4*(n%4),4)}, {v(BR[e&1]+4*(j-q),4)}, {'0' if first else v(ACC+4*j,4)}")
            if j == q:
                if n + 3 < 32: rdA(n + 3)
                if e < 3 and q < 4: rdB(e + 1, 2*q); rdB(e + 1, 2*q + 1)
    ST.mark(A)
    A("s_cmp_eq_u32 s27, 1\ns_cbranch_scc1 S_epi1")
    for par in range(2):
        if par: A("S_epi1:")
        keep = [j for j in range(8) if (j & 1) == par]; send = [j for j in range(8) if (j & 1) != par]
        for k, j in enumerate(keep): A(f"ds_read_b64 {v(64+2*k,2)}, v4 offset:{512*j}")
        A("s_nop 3")
        for k, j in enumerate(send): A(f"ds_write_b128 v14, {v(ACC+4*j,4)} offset:{k*1024}")
        A("s_waitcnt lgkmcnt(4)")
        for k, j in enumerate(keep):
            for r in range(4):
                src = 64 + 2*k + r // 2
                A(f"v_and_b32 v{96+4*k+r}, 0xffff0000, v{src}" if r & 1 else f"v_lshlrev_b32 v{96+4*k+r}, 16, v{src}")
            for r in range(4): A(f"v_fmac_f32 v{ACC+4*j+r}, s35, v{96+4*k+r}")
        A("s_waitcnt lgkmcnt(0)\ns_barrier")
        for k, j in enumerate(keep): A(f"ds_read_b128 {v(80+4*k,4)}, v15 offset:{k*1024}")
        for k, j in enumerate(keep):
            A(f"s_waitcnt lgkmcnt({3-k})")
            for r in range(4): A(f"v_add_f32 v{ACC+4*j+r}, v{ACC+4*j+r}, v{80+4*k+r}")
            A(f"v_cvt_pk_bf16_f32 v{112+2*k}, v{ACC+4*j}, v{ACC+4*j+1}\nv_cvt_pk_bf16_f32 v{113+2*k}, v{ACC+4*j+2}, v{ACC+4*j+3}")
            if k & 1:
                b = 112 + 2*(k-1)
                A(f"s_nop 1\nv_permlane16_swap_b32 v{b}, v{b+2}\nv_permlane16_swap_b32 v{b+1}, v{b+3}")
                A(f"buffer_store_dwordx4 {v(b,4)}, v3, s[16:19], s33 offen offset:{512*keep[k-1]} sc1")
        if par == 0: A("s_branch S_done")
    A(f"""
S_done:
    s_lshl_b32 s38, s25, 2
    s_add_u32 s38, s38, s24
    s_lshl_b32 s38, s38, 3
    s_add_u32 s38, s38, {FL_A}
    v_mov_b32 v10, s38
    v_mov_b32 v8, s96
    v_mov_b32 v9, s97
    s_mov_b64 exec, 1
    s_waitcnt vmcnt(0)
    buffer_store_dwordx2 v[8:9], v10, s[56:59], 0 offen sc1
    s_mov_b64 exec, -1
    """)
    ST.finish(A, tsbase)
    A("s_endpgm")
```

```python
from common import *
WS_GP, WS_GP_SZ = 0xC00000, 2048 * 32
WS_FL, WS_FL_SZ = 0xC80000, 0x4000 + 32 * 28 * 256
FL_H, FL_U, FL_A = 0x4000, 0, 0x1c00
SPIN_MAX = 1 << 16

class Vm:
    def __init__(self, A): self.A = A; self.q = []
    def issue(self, ins, tag): self.A(ins); self.q.append(tag)
    def count(self, *tags):
        idx = max((i for i, t in enumerate(self.q) if t in tags), default=-1)
        if idx < 0: return None
        n = len(self.q) - 1 - idx
        self.q = self.q[idx + 1:]
        assert n <= 63
        return n
    def drain(self): self.q = []

def get_nonce(A, lab, vtmp, srd_dbg, sn):
    A(f"""
    s_mov_b32 s{sn+2}, {SPIN_MAX}
    v_mov_b32 v{vtmp+2}, 0
{lab}_nl:
    buffer_load_dwordx2 {v(vtmp,2)}, v{vtmp+2}, s[{srd_dbg}:{srd_dbg+3}], 0 offen sc1
    s_waitcnt vmcnt(0)
    v_readfirstlane_b32 s{sn}, v{vtmp}
    v_readfirstlane_b32 s{sn+1}, v{vtmp+1}
    s_sub_u32 s{sn+2}, s{sn+2}, 1
    s_cbranch_scc1 {lab}_nd
    s_cmp_eq_u32 s{sn}, 0
    s_cbranch_scc0 {lab}_nd
    s_sleep 2
    s_branch {lab}_nl
{lab}_nd:
    """)

def poll_flags(A, lab, vaddr, vtmp, srd_fl, sn, stmp, first_issued=False, sleep=1):
    A(f"s_mov_b32 s{stmp}, {SPIN_MAX}")
    if first_issued: A(f"s_branch {lab}_pc")
    A(f"""
{lab}_pl:
    buffer_load_dwordx2 {v(vtmp,2)}, v{vaddr}, s[{srd_fl}:{srd_fl+3}], 0 offen sc1
    s_waitcnt vmcnt(0)
{lab}_pc:
    v_cmp_ne_u64 vcc, s[{sn}:{sn+1}], {v(vtmp,2)}
    s_sub_u32 s{stmp}, s{stmp}, 1
    s_cbranch_scc1 {lab}_pd
    s_cmp_eq_u64 vcc, 0
    s_cbranch_scc1 {lab}_pd
    s_sleep {sleep}
    s_branch {lab}_pl
{lab}_pd:
    """)

def poll_flags4(A, lab, vaddr, vtmp, srd_fl, sn, stmp, first_issued=False, sleep=1, soff='0'):
    A(f"s_mov_b32 s{stmp}, {SPIN_MAX}")
    if first_issued: A(f"s_branch {lab}_pc")
    A(f"""
{lab}_pl:
    buffer_load_dwordx4 {v(vtmp,4)}, v{vaddr}, s[{srd_fl}:{srd_fl+3}], {soff} offen sc1
    s_waitcnt vmcnt(0)
{lab}_pc:
    v_cmp_ne_u64 vcc, s[{sn}:{sn+1}], {v(vtmp,2)}
    v_cmp_ne_u64 s[100:101], s[{sn}:{sn+1}], {v(vtmp+2,2)}
    s_sub_u32 s{stmp}, s{stmp}, 1
    s_cbranch_scc1 {lab}_pd
    s_or_b64 vcc, vcc, s[100:101]
    s_cbranch_scc0 {lab}_pd
    s_sleep {sleep}
    s_branch {lab}_pl
{lab}_pd:
    """)

def spoll_issue(A, off, n=7, kp=1024):
    if kp == 8: A(f"s_load_dwordx8 s[64:71], s[80:81], {off} glc\ns_load_dwordx4 s[72:75], s[80:81], {off+32} glc\ns_load_dwordx2 s[76:77], s[80:81], {off+48} glc"); return
    for k in range(n): A(f"s_load_dwordx2 s[{64+2*k}:{65+2*k}], s[80:81], {off + kp*k} glc")
def spoll(A, lab, off, n, sn, stmp, first_issued=False, sleep=0, kp=1024):
    A(f"s_mov_b32 s{stmp}, {SPIN_MAX}")
    if first_issued: A(f"s_branch {lab}_pc")
    A(f"{lab}_pl:")
    if sleep: A(f"s_sleep {sleep}")
    spoll_issue(A, off, n, kp)
    A(f"{lab}_pc:\ns_waitcnt lgkmcnt(0)\ns_sub_u32 s{stmp}, s{stmp}, 1\ns_cbranch_scc1 {lab}_pd")
    for k in range(n):
        A(f"s_cmp_lg_u64 s[{64+2*k}:{65+2*k}], s[{sn}:{sn+1}]\ns_cbranch_scc1 {lab}_pl")
    A(f"{lab}_pd:")
```

```python
from common import *
WS_GP, WS_GP_SZ = 0xC00000, 2048 * 32
WS_FL, WS_FL_SZ = 0xC80000, 0x7800
FL_H, FL_U, FL_A = 0, 0x4000, 0x5c00
SPIN_MAX = 1 << 16

class Vm:
    def __init__(self, A): self.A = A; self.q = []
    def issue(self, ins, tag): self.A(ins); self.q.append(tag)
    def count(self, *tags):
        idx = max((i for i, t in enumerate(self.q) if t in tags), default=-1)
        if idx < 0: return None
        n = len(self.q) - 1 - idx
        self.q = self.q[idx + 1:]
        assert n <= 63
        return n
    def drain(self): self.q = []

def get_nonce(A, lab, vtmp, srd_dbg, sn):
    A(f"""
    s_mov_b32 s{sn+2}, {SPIN_MAX}
    v_mov_b32 v{vtmp+2}, 0
{lab}_nl:
    buffer_load_dwordx2 {v(vtmp,2)}, v{vtmp+2}, s[{srd_dbg}:{srd_dbg+3}], 0 offen sc1
    s_waitcnt vmcnt(0)
    v_readfirstlane_b32 s{sn}, v{vtmp}
    v_readfirstlane_b32 s{sn+1}, v{vtmp+1}
    s_sub_u32 s{sn+2}, s{sn+2}, 1
    s_cbranch_scc1 {lab}_nd
    s_cmp_eq_u32 s{sn}, 0
    s_cbranch_scc0 {lab}_nd
    s_sleep 2
    s_branch {lab}_nl
{lab}_nd:
    """)

def poll_flags(A, lab, vaddr, vtmp, srd_fl, sn, stmp, first_issued=False, sleep=1):
    A(f"s_mov_b32 s{stmp}, {SPIN_MAX}")
    if first_issued: A(f"s_branch {lab}_pc")
    A(f"""
{lab}_pl:
    buffer_load_dwordx2 {v(vtmp,2)}, v{vaddr}, s[{srd_fl}:{srd_fl+3}], 0 offen sc1
    s_waitcnt vmcnt(0)
{lab}_pc:
    v_cmp_ne_u64 vcc, s[{sn}:{sn+1}], {v(vtmp,2)}
    s_sub_u32 s{stmp}, s{stmp}, 1
    s_cbranch_scc1 {lab}_pd
    s_cmp_eq_u64 vcc, 0
    s_cbranch_scc1 {lab}_pd
    s_sleep {sleep}
    s_branch {lab}_pl
{lab}_pd:
    """)

def poll_flags4(A, lab, vaddr, vtmp, srd_fl, sn, stmp, first_issued=False, sleep=1, soff='0'):
    A(f"s_mov_b32 s{stmp}, {SPIN_MAX}")
    if first_issued: A(f"s_branch {lab}_pc")
    A(f"""
{lab}_pl:
    buffer_load_dwordx4 {v(vtmp,4)}, v{vaddr}, s[{srd_fl}:{srd_fl+3}], {soff} offen sc1
    s_waitcnt vmcnt(0)
{lab}_pc:
    v_cmp_ne_u64 vcc, s[{sn}:{sn+1}], {v(vtmp,2)}
    v_cmp_ne_u64 s[100:101], s[{sn}:{sn+1}], {v(vtmp+2,2)}
    s_sub_u32 s{stmp}, s{stmp}, 1
    s_cbranch_scc1 {lab}_pd
    s_or_b64 vcc, vcc, s[100:101]
    s_cbranch_scc0 {lab}_pd
    s_sleep {sleep}
    s_branch {lab}_pl
{lab}_pd:
    """)

def spoll_issue(A, off): A(f"s_load_dwordx16 s[64:79], s[80:81], {off} glc")
def spoll(A, lab, off, n, sn, stmp, first_issued=False, sleep=0):
    A(f"s_mov_b32 s{stmp}, {SPIN_MAX}")
    if first_issued: A(f"s_branch {lab}_pc")
    A(f"{lab}_pl:")
    if sleep: A(f"s_sleep {sleep}")
    A(f"s_load_dwordx16 s[64:79], s[80:81], {off} glc\n{lab}_pc:\ns_waitcnt lgkmcnt(0)\ns_sub_u32 s{stmp}, s{stmp}, 1\ns_cbranch_scc1 {lab}_pd")
    for k in range(n):
        A(f"s_cmp_lg_u64 s[{64+2*k}:{65+2*k}], s[{sn}:{sn+1}]\ns_cbranch_scc1 {lab}_pl")
    A(f"{lab}_pd:")
```

```python
from common2 import *
import math
XBUF = [49152, 65536]; WBUF = [0, 16384, 32768]
ACC = 64
FR = [16, 40]
V_XD, V_WGD, V_WUD = 1, 2, 3
V_XR = 4; V_WR = 8; V_ST = 12
NS = 9
SLOT = [32768, 40960, 65536, 73728, 0, 8192, 16384, 24576, 49152]
GACC = 16; HR = 80; ATILE = 57344
V_WD = [1, 252, 253, 254]
NE = 7
def role_fg(A, ST, opt, tsbase=0):
    usepk = opt.get('usepk', True)
    HRS = [104, 160, 168, 112, 120]
    HN = len(HRS)
    GB = [16, 32, 48, 176]
    held = [192 + 8 * i_ for i_ in range(7)] + [64, 72, 128, 136, 80, 88, 144, 152, 96]
    NW = len(held)
    slots = {}
    freeslots = list(range(NS))
    def slot_of(n):
        if n not in slots: slots[n] = freeslots.pop(0)
        return slots[n]
    def release(n): freeslots.append(slots[n])
    A(f"""
    s_load_dwordx2 s[4:5], s[0:1], {KA['u']}
    s_load_dwordx4 s[28:31], s[0:1], {KA['Wg']}
    s_load_dwordx2 s[6:7], s[0:1], {KA['ws']}
    s_load_dwordx2 s[48:49], s[0:1], {KA['Wd']}
    s_load_dwordx4 s[52:55], s[0:1], {KA['out']}
    s_setprio {opt.get('prio_fg', 2)}
    v_lshrrev_b32 v13, 6, v0
    v_and_b32 v0, 63, v0
    v_readfirstlane_b32 s24, v13
    v_lshrrev_b32 v14, 3, v0              ; lane>>3
    v_lshrrev_b32 v15, 4, v0              ; lane>>4
    s_and_b32 s27, s24, 1                 ; wr
    s_lshr_b32 s32, s24, 1                ; wc
    s_lshl_b32 s33, s27, 2
    v_add_u32 v16, s33, v15
    v_and_b32 v17, 7, v0
    v_xor_b32 v17, v17, v16
    v_lshlrev_b32 v17, 4, v17
    v_mov_b32 v18, 896
    v_mad_u32_u24 v{V_XD}, v14, v18, v17
    v_lshlrev_b32 v16, 1, v15
    v_and_b32 v17, 15, v0
    v_xor_b32 v17, v17, v16
    v_lshlrev_b32 v17, 4, v17
    v_mov_b32 v18, 3584
    v_mad_u32_u24 v{V_WGD}, v15, v18, v17
    v_xor_b32 v{V_WUD}, 128, v{V_WGD}
    s_lshl_b32 s34, s25, 4
    s_add_u32 s34, s34, s24
    s_mul_i32 s34, s34, {8*896}
    s_mul_i32 s35, s24, {4*3584}
    s_lshl_b32 s37, s26, 8
    s_add_u32 s35, s35, s37
    s_lshl_b32 s36, s24, 10
    s_and_b32 s85, s25, 3                 ; rbl
    v_bfe_u32 v19, v0, 1, 3
    v_lshl_add_u32 v19, v15, 5, v19
    s_lshl_b32 s38, s85, 3
    v_add_u32 v19, s38, v19
    v_mul_u32_u24 v19, 3584, v19
    v_and_b32 v20, 1, v0
    v_lshl_add_u32 v19, v20, 7, v19
    v_add_u32 v22, s37, v19
    v_and_b32 v19, 31, v0
    v_min_u32 v19, 18, v19
    s_cmp_ge_u32 s26, 7
    s_cselect_b32 s38, 7, 0
    s_sub_u32 s38, s26, s38
    s_lshl_b32 s85, s85, 1
    s_add_u32 s85, s85, s38
    s_cmp_ge_u32 s85, 7
    s_cselect_b32 s86, 7, 0
    s_sub_u32 s85, s85, s86
    s_mov_b32 s60, {'s85' if opt.get('rot', 0) else 0}
    s_mov_b32 s62, s60
    s_mul_i32 s38, s38, 19
    v_add_u32 v19, s38, v19
    v_min_u32 v19, 127, v19
    s_lshl_b32 s38, s25, 7
    v_add_u32 v19, s38, v19
    v_mul_u32_u24 v19, 896, v19
    v_lshrrev_b32 v20, 5, v0
    v_lshl_add_u32 v23, v20, 7, v19
    s_waitcnt lgkmcnt(0)
    """)
    ST.mark(A)
    srd(A, 8, 4, SZ_U); srd(A, 12, 28, SZ_W); srd(A, 16, 30, SZ_W)
    def dmaX(b, i):
        pre = "s_lshl_b32 s61, s60, 7\ns_add_u32 s61, s61, s34\ns_add_u32 s60, s60, 1\ns_cmp_eq_u32 s60, 7\ns_cselect_b32 s60, 0, s60\n" if i == 0 else ''
        return (pre + f"s_add_u32 m0, s36, {XBUF[b & 1] + i * 4096}\n"
                f"s_add_u32 s38, s61, {i * 32 * 896}\n"
                f"buffer_load_dwordx4 v{V_XD}, s[8:11], s38 offen lds")
    def dmaW(st, m, i):
        pre = f"s_mul_i32 s63, s62, {64*3584}\ns_add_u32 s63, s63, s35\ns_add_u32 s62, s62, 1\ns_cmp_eq_u32 s62, 7\ns_cselect_b32 s62, 0, s62\n" if (st & 1) == 0 and m == 0 and i == 0 else ''
        return (pre + f"s_add_u32 m0, s36, {WBUF[st % 3] + m * 8192 + i * 4096}\n"
                f"s_add_u32 s38, s63, {(32 * (st & 1) + 16 * i) * 3584}\n"
                f"buffer_load_dwordx4 v{V_WUD if m else V_WGD}, s[{16 if m else 12}:{19 if m else 15}], s38 offen lds")
    def stW(st): return [dmaW(st, m, i) for i in range(2) for m in range(2)]
    def stX(b): return [dmaX(b, i) for i in range(4)]
    srd(A, 44, 54, 256)
    A(f"""
    s_xor_b32 s33, s24, 3
    s_or_b32 s33, s2, s33
    s_cmp_lg_u32 s33, 0
    s_cbranch_scc1 FG_notag
    s_memrealtime s[40:41]
    v_mov_b32 v28, 0
    s_waitcnt lgkmcnt(0)
    s_or_b32 s40, s40, 1
    v_mov_b32 v26, s40
    v_mov_b32 v27, s41
    s_mov_b64 exec, 1
    buffer_store_dwordx2 v[26:27], v28, s[44:47], 0 offen sc1
    s_mov_b64 exec, -1
FG_notag:
    """)
    if opt.get('pf', 0):
        A(f"""
        s_cmp_eq_u32 s24, 3
        s_cbranch_scc1 FG_pf3
        s_cmp_eq_u32 s24, 2
        s_cbranch_scc1 FG_pf2
        s_cmp_eq_u32 s24, 1
        s_cbranch_scc1 FG_pf1
        buffer_load_dword v24, v22, s[12:15], 0 offen
        s_branch FG_pf3
FG_pf1:
        buffer_load_dword v24, v22, s[16:19], 0 offen
        s_branch FG_pf3
FG_pf2:
        buffer_load_dword v24, v23, s[8:11], 0 offen
FG_pf3:
        """)
    burst12 = opt.get('burst', 20) == 12
    for x in stX(0) + stW(0) + stW(1) + ([] if burst12 else stX(1) + stW(2)): A(x)
    srd(A, 20, 6, WS_H_SZ, WS_H); srd(A, 56, 6, WS_FL_SZ, WS_FL)
    A(f"""
    {'s_waitcnt vmcnt(0)' + chr(10) + 's_endpgm' if opt.get('skip_fg') else ''}
    v_and_b32 v16, 31, v0                 ; t
    v_lshrrev_b32 v17, 5, v0              ; h
    v_bfe_u32 v18, v0, 1, 3               ; (t>>1)&7
    s_lshl_b32 s33, s27, 13
    s_add_u32 s33, s33, {XBUF[0]}
    v_lshlrev_b32 v16, 7, v16
    v_add_u32 v16, s33, v16
    """)
    for k in range(4):
        A(f"v_or_b32 v19, {2*k}, v17\nv_xor_b32 v19, v19, v18\nv_lshl_add_u32 v{V_XR+k}, v19, 4, v16")
    A(f"""
    v_bfe_u32 v16, v0, 4, 1               ; m
    v_bfe_u32 v18, v0, 2, 2               ; r
    v_and_b32 v19, 3, v0                  ; c
    v_lshlrev_b32 v20, 13, v16
    v_lshl_add_u32 v20, v17, 11, v20
    v_lshl_add_u32 v20, v18, 8, v20
    v_lshl_add_u32 v20, v19, 3, v20
    v_lshl_or_b32 v21, v16, 2, v18
    s_lshl_b32 s33, s32, 2
    v_xor_b32 v21, s33, v21
    """)
    for j in range(4):
        A(f"v_xor_b32 v19, {j}, v21\nv_lshl_add_u32 v{V_WR+j}, v19, 5, v20")
    A(f"""
    s_lshl_b32 s33, s25, 1
    s_add_u32 s33, s33, s27
    s_mul_i32 s33, s33, 224
    s_lshl_b32 s37, s26, 3
    s_add_u32 s33, s33, s37
    s_lshl_b32 s37, s32, 2
    s_add_u32 s33, s33, s37
    s_lshl_b32 s39, s33, 10
    v_lshlrev_b32 v{V_ST}, 4, v0
    """)
    def reads(n):
        st, ks = n >> 1, n & 1
        b, ks4 = n >> 2, n & 3
        f = FR[n & 1]
        xr = [f"ds_read_b128 {v(f + 4*tt, 4)}, v{V_XR+ks4} offset:{XBUF[b & 1] - XBUF[0] + tt * 4096}" for tt in range(2)]
        wr = [[f"ds_read_b64_tr_b16 {v(f + 8 + 4*j + 2*p, 2)}, v{V_WR+j} offset:{WBUF[st % 3] + ks * 4096 + p * 1024}" for p in range(2)] for j in range(4)]
        return [xr[0]] + wr[0] + [xr[1]] + wr[1] + wr[2] + wr[3]
    def mfmas(n):
        f = FR[n & 1]
        out = []
        for j in range(4):
            for tt in range(2):
                a = ACC + (tt * 4 + j) * 16
                out.append(f"v_mfma_f32_32x32x16_bf16 {v(a,16)}, {v(f+8+4*j,4)}, {v(f+4*tt,4)}, {'0' if n == 0 else v(a, 16)}")
        return out
    A(f"s_waitcnt vmcnt({4 if burst12 else 12})\ns_barrier")
    ST.mark(A)
    for x in reads(0): A(x)
    gsetup = f"""
    s_cmp_ge_u32 s26, 7
    s_cselect_b32 s42, 1, 0               ; half
    s_mul_i32 s43, s42, 7
    s_sub_u32 s43, s26, s43               ; ct
    s_lshl_b32 s50, s25, 1
    s_add_u32 s50, s50, s42               ; rt
    s_mov_b32 s8, s48
    s_mov_b32 s9, s49
    s_mov_b32 s10, {SZ_W if not opt.get('fakeW') else 0}
    s_lshl_b32 s36, s24, 11
    v_lshrrev_b32 v14, 3, v0
    v_bfe_u32 v15, v0, 4, 1
    v_lshlrev_b32 v15, 2, v15
    v_and_b32 v13, 7, v0
    v_xor_b32 v13, v13, v15
    v_lshlrev_b32 v13, 4, v13
    v_mov_b32 v15, 896
    v_mad_u32_u24 v1, v14, v15, v13
    v_lshl_add_u32 v2, v14, 12, v13
    s_lshl_b32 s51, s43, 7
    s_mul_i32 s83, s24, {64*896}
    s_add_u32 s83, s83, s51
    s_add_u32 s82, s83, {28*64*896}
    s_mul_i32 s34, s85, {4*64*896}
    s_add_u32 s34, s34, s83
    v_add_u32 v{V_WD[1]}, {8*896 - 1024}, v1
    v_add_u32 v{V_WD[2]}, {16*896}, v1
    v_add_u32 v{V_WD[3]}, {24*896 - 1024}, v1
    """
    gsetup2 = f"""
    v_bfe_u32 v248, v0, 4, 1              ; c16
    v_lshrrev_b32 v249, 5, v0             ; h
    v_bfe_u32 v250, v0, 2, 2              ; r
    v_and_b32 v251, 3, v0
    v_lshl_add_u32 v15, v249, 2, v250
    v_lshlrev_b32 v15, 7, v15
    v_lshl_add_u32 v15, v251, 3, v15
    v_and_b32 v249, 2, v250
    v_xor_b32 v249, v249, v248
    v_lshl_add_u32 v15, v249, 5, v15      ; tile-0 address inside a 2 KB stage
    s_lshl_b32 s33, s32, 6
    v_xor_b32 v13, s33, v15
    v_add_u32 v13, s36, v13
    v_xor_b32 v14, 64, v13
    v_add_u32 v3, 65536, v13
    v_min_u32 v248, 13, v0
    v_and_b32 v249, 1, v248
    v_lshrrev_b32 v248, 1, v248
    v_lshlrev_b32 v248, 10, v248
    v_lshl_add_u32 v248, v249, 4, v248
    s_lshl_b32 s33, s50, 5
    s_add_u32 s33, s33, {FL_U}
    v_add_u32 v248, s33, v248
    v_mov_b32 v249, 0
    """
    gsetup3 = f"""
    s_mul_i32 s40, s50, {2*112*1024}
    s_lshl_b32 s33, s24, 12
    s_add_u32 s40, s40, s33
    s_add_u32 s84, s40, {28*4096}
    s_lshl_b32 s35, s85, 14
    s_add_u32 s35, s35, s40
    s_mul_i32 s41, s27, {112*1024}
    v_add_u32 v5, s41, v{V_ST}
    s_xor_b32 s41, s41, {112*1024}
    v_add_u32 v11, s41, v{V_ST}
    v_xor_b32 v8, 64, v3
    s_lshl_b32 s33, s27, 6
    v_xor_b32 v9, s33, v15
    s_lshl_b32 s33, s32, 12
    s_add_u32 s33, s33, {ATILE}
    v_add_u32 v9, s33, v9
    s_lshl_b32 s33, s25, 1
    s_add_u32 s33, s33, s27
    s_lshl_b32 s33, s33, 9
    s_lshl_b32 s38, s26, 1
    s_add_u32 s38, s38, s32
    s_and_b32 s37, s38, 3
    s_lshl_b32 s37, s37, 7
    s_add_u32 s33, s33, s37
    s_lshr_b32 s38, s38, 2
    s_lshl_b32 s38, s38, 3
    s_add_u32 s33, s33, s38
    v_mov_b32 v10, s33
    s_lshl_b32 s33, s50, 2
    s_add_u32 s33, s33, s24
    s_lshl_b32 s33, s33, 7
    s_add_u32 s80, s56, s33
    s_addc_u32 s81, s57, 0
    v_lshlrev_b32 v7, 4, v0
    s_lshl_b32 s33, s43, 10
    s_add_u32 s33, s33, {FL_A}
    v_add_u32 v7, s33, v7
    v_and_b32 v4, 31, v0
    """
    VM = Vm(A)
    def jof(n): return (n & 1) + (2 if n >= 14 else 0)
    def ldW(n):
        pre = ''
        if (n & 1) == 0 and n > 0:
            pre = f"s_add_u32 s34, s34, {4*64*896}\ns_cmp_ge_u32 s34, s82\ns_cselect_b32 s34, s83, s34\n"
            if n == 14: pre += f"s_add_u32 s34, s34, {32*896}\ns_add_u32 s82, s82, {32*896}\ns_add_u32 s83, s83, {32*896}\n"
        a, b = (V_WD[0], V_WD[1]) if (n & 1) == 0 else (V_WD[2], V_WD[3])
        return [(pre + f"s_add_u32 m0, s36, {SLOT[slot_of(n)]}\ns_nop 0\nbuffer_load_dwordx4 v{a}, s[8:11], s34 offen lds", ('W', n)),
                (f"buffer_load_dwordx4 v{b}, s[8:11], s34 offen offset:1024 lds", ('W', n))]
    def ldH(n):
        pre = ''
        if (n & 1) == 0 and n > 0:
            pre = f"s_add_u32 s35, s35, {4*4096}\ns_cmp_ge_u32 s35, s84\ns_cselect_b32 s35, s40, s35\n"
        return [(pre + f"buffer_load_dwordx4 {v(HRS[n % HN], 4)}, v5, s[20:23], s35 offen offset:{jof(n) * 1024}", ('H', n)),
                (f"buffer_load_dwordx4 {v(HRS[n % HN] + 4, 4)}, v11, s[20:23], s35 offen offset:{jof(n) * 1024}", ('H', n))]
    def wreg(n): return held[n % NW]
    def greads(n):
        f = wreg(n); o = SLOT[slot_of(n)]
        regs = (3, 8) if o >= 65536 else (13, 14)
        return [f"ds_read_b64_tr_b16 {v(f + 4*bd + 2*p, 2)}, v{regs[bd]} offset:{o % 65536 + p * 1024}" for bd in range(2) for p in range(2)]
    def vwait(*tags, extra=''):
        c = VM.count(*tags)
        if c is not None or extra: A("s_waitcnt " + (f"vmcnt({c}) " if c is not None else '') + extra)
    for n in range(28):
        dm = []
        if n & 1:
            sp = (n + 1) >> 1
            if sp <= 13:
                young = 0
                if sp == 1: young = 8
                else:
                    if sp + 1 <= 13: young += 4
                    if (sp + 1) % 2 == 0 and (sp + 1) // 2 <= 6: young += 4
                    if sp == 13: young += len(VM.q)
                A(f"s_waitcnt vmcnt({young}) lgkmcnt(0)\ns_barrier")
                if opt.get('stage_stamps') and sp % 2 == 0: ST.mark(A)
                if sp + 2 <= 13: dm += stW(sp + 2)
                if sp % 2 == 0 and sp // 2 + 1 <= 6: dm += stX(sp // 2 + 1)
            else:
                A("s_waitcnt lgkmcnt(0)\ns_barrier")
            cut = len(dm)//2 if opt.get('dm_mode', 0) == 0 else min(len(dm), opt.get('dm_mode'))
            pend = dm[cut:]; dm = dm[:cut]
        else:
            A("s_waitcnt lgkmcnt(0)")
            if n > 0: dm = pend
            elif burst12: dm = stX(1) + stW(2)
        rd = reads(n + 1) if n < 27 else []
        ex = [x for m_ in {23: [0, 1], 24: [2, 3], 26: [4, 5], 27: [6, 7, 8]}.get(n, []) for x in ldW(m_)]
        if n == 25: ex = [("buffer_load_dwordx2 v[250:251], v249, s[44:47], 0 offen sc1", 'tag')]
        if n == 27: ex.append(("buffer_load_dwordx4 v[56:59], v248, s[56:59], 0 offen sc1", 'fu'))
        di = 0
        for i, m in enumerate(mfmas(n)):
            A(m)
            for x in rd[2*i:2*i+2]: A(x)
            if n in (23, 25, 27):
                if not opt.get('gs_spread', 0):
                    if i == 1: A({23: gsetup, 25: gsetup2, 27: gsetup3}[n])
                else:
                    if i == 0:
                        gl = [x.strip() for x in {23: gsetup, 25: gsetup2, 27: gsetup3}[n].split('\n') if x.strip()]
                        ng_ = {23: 4, 25: 7, 27: 8}[n]
                    take = -(-len(gl) // max(1, ng_ - i)) if i < ng_ else 0
                    c_ = gl[:take]; gl = gl[take:]
                    while gl and gl[0].startswith(('s_cselect', 's_addc')): c_.append(gl.pop(0))
                    A('\n'.join(c_))
            if i >= opt.get('dm_first', 3) and di < len(dm): A(dm[di]); di += 1
            if ex and i >= ((7 if n == 25 and opt.get('gs_spread', 0) else 4) if n < 27 else 1): VM.issue(*ex.pop(0))
        for x in dm[di:]: A(x)
        for x in ex: VM.issue(*x)
    ST.mark(A)
    k2 = -2.0 * math.sqrt(2.0 / math.pi) * math.log2(math.e)
    C1, C2, ONE = 28, 30, 44
    if 'prio_epi' in opt: A(f"s_setprio {opt['prio_epi']}")
    A(f"""
    v_mov_b32 v{C1}, {f2u(k2)}
    v_mov_b32 v{C1+1}, {f2u(k2)}
    v_mov_b32 v{C2}, {f2u(k2*0.044715)}
    v_mov_b32 v{C2+1}, {f2u(k2*0.044715)}
    v_mov_b32 v{ONE}, 1.0
    v_mov_b32 v{ONE+1}, 1.0
    """)
    def flag(off):
        VM.issue(f"s_mov_b64 exec, 1\nbuffer_store_dwordx2 v[50:51], v10, s[56:59], 0 offen offset:{off} sc1\ns_mov_b64 exec, -1", ('flag', off))
    E1, E2, PER = opt.get('e1', 1), opt.get('e2', 7), opt.get('e_per', 5)
    order = [(tt, j) for j in range(4) for tt in range(2)]
    wq = []
    for idx, (tt, j) in enumerate(order):
        a = ACC + (tt * 4 + j) * 16
        T = 16 + 16 * (idx & 1)
        O = T + 8
        if idx == E1:
            if opt.get('estamp'): ST.mark(A)
            vwait(('W', 8), 'tag', 'fu')
            if opt.get('estamp'): ST.mark(A)
            for n_ in range(NS):
                for x in greads(n_): A(x)
            A(f"v_readfirstlane_b32 s96, v250\nv_readfirstlane_b32 s97, v251\ns_nop 3\ns_cmp_lg_u32 s96, 0\ns_cbranch_scc1 FG_havetag")
            get_nonce(A, 'FG', 60, 44, 96)
            A("FG_havetag:\nv_mov_b32 v50, s96\nv_mov_b32 v51, s97")
            if not opt.get('skip_s'): poll_flags4(A, 'FGU', 248, 56, 56, 96, 99, first_issued=True, sleep=8)
            A(f"v_lshlrev_b32 v249, 5, v4\ns_lshl_b32 s33, s50, 1\ns_add_u32 s33, s33, s27\ns_lshl_b32 s33, s33, 10")
            srd(A, 16, 6, WS_GP_SZ, WS_GP)
            VM.issue("buffer_load_dwordx4 v[56:59], v249, s[16:19], s33 offen", 'gp')
            VM.issue("buffer_load_dwordx3 v[60:62], v249, s[16:19], s33 offen offset:16", 'gp')
        if idx == E1 + 1:
            A("s_waitcnt lgkmcnt(0)")
            for n_ in range(NS): release(n_)
            wq = [x for n_ in range(NS, 2 * NS) for x in ldW(n_)]
        if idx == E2:
            assert not wq
            if opt.get('estamp'): ST.mark(A)
            vwait(('st', 3), ('W', NW - 1))
            if opt.get('estamp'): ST.mark(A)
            flag(0)
            for n_ in range(NS, NW):
                for x in greads(n_): A(x)
        for _ in range(PER):
            if wq: VM.issue(*wq.pop(0))
        if usepk:
            for p in range(4): A(f"v_pk_mul_f32 {v(T+2*p,2)}, {v(a+2*p,2)}, {v(a+2*p,2)}")
            for p in range(4): A(f"v_pk_fma_f32 {v(T+2*p,2)}, {v(T+2*p,2)}, {v(C2,2)}, {v(C1,2)}")
            for p in range(4): A(f"v_pk_mul_f32 {v(T+2*p,2)}, {v(T+2*p,2)}, {v(a+2*p,2)}")
            for p in range(8): A(f"v_exp_f32 v{T+p}, v{T+p}")
            for p in range(4): A(f"v_pk_mul_f32 {v(a+2*p,2)}, {v(a+2*p,2)}, {v(a+8+2*p,2)}")
            for p in range(4): A(f"v_pk_add_f32 {v(T+2*p,2)}, {v(T+2*p,2)}, {v(ONE,2)}")
            for p in range(8): A(f"v_rcp_f32 v{T+p}, v{T+p}")
            A("s_nop 0")
            for p in range(4): A(f"v_pk_mul_f32 {v(a+2*p,2)}, {v(a+2*p,2)}, {v(T+2*p,2)}")
        else:
            for p in range(8): A(f"v_mul_f32 v{T+p}, v{a+p}, v{a+p}")
            for p in range(8): A(f"v_fmaak_f32 v{T+p}, v{C2}, v{T+p}, {f2u(k2)}" if opt.get('fmaak', 0) else f"v_fma_f32 v{T+p}, v{T+p}, v{C2}, v{C1}")
            for p in range(8): A(f"v_mul_f32 v{T+p}, v{T+p}, v{a+p}")
            for p in range(8): A(f"v_exp_f32 v{T+p}, v{T+p}")
            for p in range(8): A(f"v_mul_f32 v{a+p}, v{a+p}, v{a+8+p}")
            for p in range(8): A(f"v_add_f32 v{T+p}, 1.0, v{T+p}")
            for p in range(8): A(f"v_rcp_f32 v{T+p}, v{T+p}")
            A("s_nop 0")
            for p in range(8): A(f"v_mul_f32 v{a+p}, v{a+p}, v{T+p}")
        for p in range(4): A(f"v_cvt_pk_bf16_f32 v{O+p}, v{a+2*p}, v{a+2*p+1}")
        VM.issue(f"s_add_u32 s38, s39, {(tt * 112 + j) * 1024}\nbuffer_store_dwordx4 {v(O,4)}, v{V_ST}, s[20:23], s38 offen {opt.get('hsc', 'sc1')}", ('st', idx))
    ST.mark(A)
    if opt.get('f_only'):
        ST.finish(A, tsbase); A("s_endpgm"); return
    A(f"""
    s_setprio {opt.get('prio_g', 0)}
    v_add_f32 v56, v56, v57
    v_add_f32 v58, v58, v59
    v_add_f32 v60, v60, v61
    v_add_f32 v56, v56, v58
    v_add_f32 v60, v60, v62
    v_add_f32 v56, v56, v60
    v_cvt_pk_bf16_f32 v56, v56, v56
    v_lshlrev_b32 v56, 16, v56
    v_mul_f32 v56, {f2u(-math.log2(math.e))}, v56
    v_exp_f32 v6, v56
    s_waitcnt lgkmcnt(0)
    s_load_dwordx16 s[64:79], s[80:81], 0 glc
    v_add_f32 v6, 1.0, v6
    v_rcp_f32 v6, v6
    """)
    for n_ in range(NS, NW): release(n_)
    srd(A, 12, 6, WS_AT_SZ, WS_AT)
    A("v_cvt_pk_bf16_f32 v6, v6, v6\nv_lshlrev_b32 v6, 16, v6")
    ST.mark(A)
    spoll(A, 'FGH', 0, 7, 96, 99, first_issued=True, sleep=opt.get('sleep_h', 0))
    ST.mark(A)
    for n in range(HN - 1):
        for x in ldH(n): VM.issue(*x)
    atdma = f"""s_lshl_b32 s33, s43, 3
            s_add_u32 s33, s33, s24
            s_lshl_b32 s33, s33, 15
            s_lshl_b32 s38, s50, 7
            s_add_u32 s33, s33, s38
            s_lshl_b32 s39, s24, 10
            s_add_u32 m0, s39, {ATILE}
            s_add_u32 s38, s33, {32*4096}
            buffer_load_dwordx4 v2, s[12:15], s33 offen lds
            s_add_u32 m0, s39, {ATILE + 4096}
            s_nop 0
            buffer_load_dwordx4 v2, s[12:15], s38 offen lds"""
    RD = 2
    PB_ISSUE = opt.get('pb_issue', 7); PB_CHECK = 14 - (HN - 1)
    LP = 28 - HN
    bm = opt.get('bm', 0)
    RS = [4, 5, 6, 7, 0, 1]
    for n in range(28):
        if bm and n == 26:
            vwait(('H', 26), extra="lgkmcnt(4)")
            continue
        vwait(('H', n), ('W', n + RD), extra="lgkmcnt(4)" if NW <= n < 27 else "lgkmcnt(0)" if n == 27 else '')
        if n == 0: VM.count(('st', 7)); flag(64)
        if n == PB_CHECK:
            if opt.get('bstamp'): ST.mark(A)
            spoll(A, 'FGB', 64, 7, 96, 99, first_issued=True, sleep=opt.get('sleep_h', 0))
            if opt.get('bstamp'): ST.mark(A)
        if n == 27:
            vwait('poll')
            A(f"""
            v_cmp_ne_u64 vcc, s[96:97], v[248:249]
            v_cmp_ne_u64 s[100:101], s[96:97], v[250:251]
            s_nop 1
            s_or_b64 vcc, vcc, s[100:101]
            s_cselect_b32 s98, {0 if opt.get('skip_s') else 1}, 0
            s_cmp_lg_u32 s98, 0
            s_cbranch_scc1 FG_atlater
            """)
            A(atdma)
            A("FG_atlater:")
        rd = greads(n + RD) if NW <= n + RD < 28 else []
        ld = ldH(n + HN - 1) if n + HN - 1 < 28 else []
        if n >= NW: release(n)
        lw = []
        m_ = max(slots) + 1
        if m_ < 28 and freeslots and n >= opt.get('w_from', 0): lw = ldW(m_)
        f = wreg(n)
        ldq = ld + lw
        bi = 0
        if bm and n == 27:
            A(f"v_add_u32 v13, s36, v{V_ST}")
            wr_ = lambda b: [f"ds_write_b128 v13, {v(GB[b] + 4*k, 4)} offset:{SLOT[RS[2*(b-1) + (k >> 1)]] + (k & 1)*1024}" for k in range(4)]
            for b in (3, 2, 1, 0):
                for m_ in (26, 27):
                    A(f"v_mfma_f32_32x32x16_bf16 {v(GB[b],16)}, {v(wreg(m_)+4*(b>>1),4)}, {v(HRS[m_%HN]+4*(b&1),4)}, {v(GB[b],16)}")
                if b == 1:
                    A("s_nop 7")
                    for x in wr_(3): A(x)
                if b == 0:
                    A("s_nop 3")
                    for x in wr_(2): A(x)
            continue
        for bd in range(2):
            for bt in range(2):
                a = GB[bd * 2 + bt]
                A(f"v_mfma_f32_32x32x16_bf16 {v(a,16)}, {v(f+4*bd,4)}, {v(HRS[n%HN]+4*bt,4)}, {'0' if n == 0 else v(a,16)}")
                if bi < 2:
                    for x in rd[2*bi:2*bi+2]: A(x)
                if bi < len(ldq): VM.issue(*ldq[bi])
                bi += 1
        if n == PB_ISSUE: spoll_issue(A, 64)
        if n == LP: VM.issue("buffer_load_dwordx4 v[248:251], v7, s[56:59], 0 offen sc1", 'poll')
    ST.mark(A)
    A(f"""
    v_add_u32 v13, s36, v{V_ST}
    v_mov_b32 v11, 896
    v_lshrrev_b32 v5, 5, v0
    v_lshlrev_b32 v5, 4, v5
    v_mad_u32_u24 v11, v4, v11, v5
    v_xor_b32 v14, 2048, v13
    v_xor_b32 v15, 4096, v13
    v_xor_b32 v10, 6144, v13
    s_nop 3
    """)
    for b in range(1, 2 if bm else 4):
        for k in range(4):
            A(f"ds_write_b128 v13, {v(GB[b] + 4*k, 4)} offset:{SLOT[RS[2*(b-1) + (k >> 1)]] + (k & 1)*1024}")
    A("s_cmp_eq_u32 s98, 0\ns_cbranch_scc1 FG_atdone")
    poll_flags4(A, 'FGA', 7, 248, 56, 96, 99, sleep=opt.get('sleep_a', 4))
    A(atdma)
    A(f"""
FG_atdone:
    s_lshl_b32 s33, s50, 1
    s_add_u32 s33, s33, s27
    s_mul_i32 s33, s33, {32*896}
    s_lshl_b32 s38, s43, 7
    s_add_u32 s33, s33, s38
    s_lshl_b32 s38, s32, 6
    s_add_u32 s33, s33, s38
    s_mov_b32 s39, 0xffff0000
    """)
    srd(A, 20, 52, SZ_U)
    AT_, RB, TM, PK = 80, 96, 144, 160
    G0 = GB[0]
    A("s_waitcnt vmcnt(0) lgkmcnt(0)\ns_barrier")
    for j in range(4):
        A(f"ds_read_b64_tr_b16 {v(AT_ + 2*j, 2)}, v9 offset:{j*1024}")
    for b in range(3):
        for k in range(4):
            A(f"ds_read_b128 {v(RB + 16*b + 4*k, 4)}, v{[14, 15, 10][b]} offset:{SLOT[RS[2*b + (k >> 1)]] + (k & 1)*1024}")
    A("s_waitcnt lgkmcnt(12)")
    for k in range(16):
        src = AT_ + k // 2
        if k & 1: A(f"v_and_b32 v{TM+k}, s39, v{src}")
        else: A(f"v_lshlrev_b32 v{TM+k}, 16, v{src}")
    if opt.get('endpk', 1):
        A("v_mov_b32 v7, v6")
        for b in range(3):
            A(f"s_waitcnt lgkmcnt({4*(2-b)})")
            for k in range(0, 16, 2): A(f"v_pk_add_f32 {v(G0+k,2)}, {v(G0+k,2)}, {v(RB+16*b+k,2)}")
        for k in range(0, 16, 2): A(f"v_pk_add_f32 {v(TM+k,2)}, {v(TM+k,2)}, {v(G0+k,2)} neg_lo:[0,1] neg_hi:[0,1]")
        for k in range(0, 16, 2): A(f"v_pk_fma_f32 {v(G0+k,2)}, v[6:7], {v(TM+k,2)}, {v(G0+k,2)}")
    else:
        for b in range(3):
            A(f"s_waitcnt lgkmcnt({4*(2-b)})")
            for k in range(16): A(f"v_add_f32 v{G0+k}, v{G0+k}, v{RB+16*b+k}")
        for k in range(16): A(f"v_sub_f32 v{TM+k}, v{TM+k}, v{G0+k}")
        for k in range(16): A(f"v_fmac_f32 v{G0+k}, v6, v{TM+k}")
    for k in range(8): A(f"v_cvt_pk_bf16_f32 v{PK+k}, v{G0+2*k}, v{G0+1+2*k}")
    A("s_nop 1")
    for jj in range(2):
        A(f"v_permlane32_swap_b32 v{PK+4*jj}, v{PK+2+4*jj}\nv_permlane32_swap_b32 v{PK+1+4*jj}, v{PK+3+4*jj}")
    for jj in range(2):
        A(f"buffer_store_dwordx4 {v(PK+4*jj,4)}, v11, s[20:23], s33 offen offset:{32*jj} {opt.get('outsc', '')}")
    ST.finish(A, tsbase)
    A("s_endpgm")
```

```python
from common2 import *
from sched import schedule
import math
CP = 4160; CH = 4 * CP
RED = 2 * CH
CMP = RED + 16384; CMPSZ = 41 * 80
UB = [CMP + 4 * CMPSZ, CMP + 4 * CMPSZ + 4608]
L2E = math.log2(math.e)
assert UB[1] + 4608 <= 81920

class Lds:
    def __init__(self, A): self.A = A; self.q = []
    def issue(self, ins, tag): self.A(ins); self.q.append(tag)
    def need(self, *tags):
        idx = max((i for i, t in enumerate(self.q) if t in tags), default=-1)
        if idx < 0: return
        n = len(self.q) - 1 - idx
        self.A(f"s_waitcnt lgkmcnt({min(n, 15)})")
        self.q = self.q[idx + 1:] if n <= 15 else self.q[len(self.q) - 15:]

def role_s(A, ST, opt, tsbase=0):
    if opt.get('skip_s') and not opt.get('s_touchonly'): A('s_endpgm')
    P, GA, DA, GW, XG, TR = 32, 16, 28, 48, 16, 244
    A(f"""
    s_load_dwordx8 s[40:47], s[0:1], {KA['Are']}
    s_load_dwordx8 s[48:55], s[0:1], {KA['Cre']}
    s_load_dwordx2 s[4:5], s[0:1], {KA['u']}
    s_load_dwordx4 s[16:19], s[0:1], {KA['Wd']}
    s_load_dwordx4 s[56:59], s[0:1], {KA['dbg']}
    s_setprio {opt.get('prio_s0', 3)}
    v_lshrrev_b32 v13, 6, v0
    v_lshlrev_b32 v1, 2, v0
    v_readfirstlane_b32 s24, v13
    s_lshl_b32 s33, s25, 10
    s_lshl_b32 s34, s25, 2
    v_and_b32 v12, 63, v0                 ; lane
    v_lshrrev_b32 v14, 3, v12
    v_bfe_u32 v15, v12, 4, 1
    v_lshlrev_b32 v15, 1, v15
    v_and_b32 v3, 7, v12
    v_xor_b32 v3, v3, v15
    v_lshlrev_b32 v3, 4, v3
    v_mov_b32 v15, 896
    v_mad_u32_u24 v3, v14, v15, v3
    v_xor_b32 v4, 64, v3                  ; rows 8-15
    s_lshl_b32 s38, s26, 2
    s_add_u32 s38, s38, s24
    s_mul_i32 s38, s38, {16*896}
    s_lshl_b32 s39, s27, 7
    s_add_u32 s31, s38, s39               ; X soffset
    s_lshr_b32 s35, s24, 1
    s_mul_i32 s35, s35, {UB[1]-UB[0]}
    s_and_b32 s38, s24, 1
    s_lshl_b32 s38, s38, 11
    s_add_u32 s35, s35, s38
    s_add_u32 s35, s35, {UB[0]+512}
    v_and_b32 v7, 3, v12
    v_lshlrev_b32 v6, 5, v7
    v_mov_b32 v29, 0
    s_mov_b32 s10, {SZ_P}
    s_mov_b32 s11, 0x00020000
    s_mov_b32 s14, 896
    s_mov_b32 s15, 0x00020000
    s_waitcnt lgkmcnt(0)
    """)
    ST.mark(A)
    A(f"s_mov_b32 s12, s52\ns_mov_b32 s13, s53\nbuffer_load_dword v26, v29, s[12:15], s34 offen")
    for k in range(6):
        A(f"s_mov_b32 s8, s{40+2*k}\ns_mov_b32 s9, s{41+2*k}\nbuffer_load_dword v{P+6+k}, v1, s[8:11], s33 offen")
    A(f"s_setprio {opt.get('prio_s1', opt.get('prio_s', 1))}")
    srd(A, 8, 4, SZ_U); srd(A, 60, 56, 256)
    A("s_mov_b32 s52, s54\ns_mov_b32 s53, s55\ns_mov_b32 s54, s18\ns_mov_b32 s55, s19\ns_mov_b32 s42, 896\ns_mov_b32 s43, 0x00020000\ns_mov_b32 s45, s31\ns_mov_b32 s46, s39\nv_mov_b32 v25, v6")
    late = f"""
    s_mov_b32 s40, s52
    s_mov_b32 s41, s53
    buffer_load_dword v27, v29, s[40:43], s34 offen
    s_mov_b32 m0, s35
    s_add_u32 s44, s45, {8*896}
    buffer_load_dwordx4 v3, s[8:11], s45 offen lds
    s_add_u32 m0, s35, 1024
    s_mov_b32 s40, s54
    buffer_load_dwordx4 v4, s[8:11], s44 offen lds
    s_mov_b32 s41, s55
    buffer_load_dwordx2 v[30:31], v29, s[60:63], 0 offen sc1
    buffer_load_dwordx4 {v(GW,4)}, v25, s[40:43], s46 offen
    buffer_load_dwordx4 {v(GW+4,4)}, v25, s[40:43], s46 offen offset:16
    """
    LATE = opt.get('late_at', 0.07)
    if not LATE: A(late)
    A(f"""
    s_setprio {opt.get('prio_s', 1)}
    s_mov_b32 s6, s58
    s_mov_b32 s7, s59
    """)
    srd(A, 48, 16, SZ_W)
    srd(A, 12, 6, WS_U2_SZ, WS_U2); srd(A, 16, 6, WS_AT_SZ, WS_AT); srd(A, 20, 6, WS_GP_SZ, WS_GP); srd(A, 56, 6, WS_FL_SZ, WS_FL)
    ST.mark(A)
    A(f"""
    s_lshl_b32 s85, s87, 2
    s_add_u32 s85, s85, s24
    s_lshl_b32 s85, s85, 13
    v_lshlrev_b32 v2, 7, v12
    v_mov_b32 v6, {CMP + 64}
    ds_write_b32 v6, v29
    ds_write_b32 v6, v29 offset:{CMPSZ}
    ds_write_b32 v6, v29 offset:{2*CMPSZ}
    ds_write_b32 v6, v29 offset:{3*CMPSZ}
    v_and_b32 v6, 127, v0
    v_lshlrev_b32 v6, 2, v6
    v_lshrrev_b32 v5, 7, v0
    v_mov_b32 v14, {UB[1]-UB[0]}
    v_mad_u32_u24 v6, v5, v14, v6
    v_add_u32 v6, {UB[0]}, v6
    ds_write_b32 v6, v29
    v_and_b32 v6, 15, v12
    v_lshrrev_b32 v5, 4, v12              ; g
    v_mul_u32_u24 v8, 320, v5
    v_lshl_add_u32 v8, v6, 2, v8
    s_mul_i32 s39, s24, {CMPSZ}
    s_add_u32 s39, s39, {CMP}
    v_add_u32 v{DA}, s39, v8
    v_bfe_u32 v6, v12, 2, 2
    v_and_b32 v8, 1, v5                   ; tb
    v_lshl_add_u32 v9, v8, 3, v6
    v_lshlrev_b32 v9, 7, v9
    v_lshl_add_u32 v9, v7, 3, v9
    v_add_u32 v9, s35, v9
    v_lshrrev_b32 v10, 1, v6
    v_lshl_or_b32 v10, v8, 1, v10
    v_lshrrev_b32 v11, 1, v5
    v_xor_b32 v10, v10, v11
    v_lshl_add_u32 v13, v10, 5, v9
    v_xor_b32 v10, 2, v10
    v_lshl_add_u32 v14, v10, 5, v9
    v_lshl_add_u32 v10, v11, 2, v6
    v_lshlrev_b32 v10, 14, v10
    v_lshl_add_u32 v10, v8, 6, v10
    v_lshl_add_u32 v15, v7, 4, v10
    v_lshrrev_b32 v5, 2, v12
    v_bfe_u32 v6, v5, 1, 1
    v_bfe_u32 v8, v5, 3, 1
    v_lshl_or_b32 v6, v8, 1, v6
    v_xor_b32 v6, v6, v7
    v_lshlrev_b32 v6, 5, v6
    v_lshl_add_u32 v6, v5, 7, v6
    v_add_u32 v6, s35, v6
    v_lshlrev_b32 v5, 5, v5
    s_lshl_b32 s38, s27, 18
    s_lshl_b32 s39, s26, 2
    s_add_u32 s39, s39, s24
    s_lshl_b32 s32, s39, 7
    s_add_u32 s30, s38, s32               ; U2 soffset
    s_lshl_b32 s39, s39, 9
    s_lshl_b32 s32, s27, 2
    s_add_u32 s31, s39, s32
    s_add_u32 s32, s30, {8*16384}
    """)
    def tpart():
        A(f"""
        s_waitcnt vmcnt(0)
        ds_read_b64_tr_b16 {v(TR,2)}, v13
        ds_read_b64_tr_b16 {v(TR+2,2)}, v13 offset:512
        ds_read_b64_tr_b16 {v(TR+4,2)}, v14
        ds_read_b64_tr_b16 {v(TR+6,2)}, v14 offset:512
        ds_read_b128 {v(XG,4)}, v6
        ds_read_b128 {v(XG+4,4)}, v6 offset:16
        v_readfirstlane_b32 s96, v30
        v_readfirstlane_b32 s97, v31
        v_readfirstlane_b32 s37, v27
        v_mov_b32 v8, 0
        s_waitcnt lgkmcnt(2)
        buffer_store_dwordx4 {v(TR,4)}, v15, s[12:15], s30 offen sc1
        buffer_store_dwordx4 {v(TR+4,4)}, v15, s[12:15], s32 offen sc1
        s_waitcnt lgkmcnt(0)
        """)
        for i in range(8): A(f"v_dot2_f32_bf16 v8, v{XG+i}, v{GW+i}, v8")
        A(f"""
        s_nop 2
        v_add_f32_dpp v8, v8, v8 quad_perm:[1,0,3,2] row_mask:0xf bank_mask:0xf
        s_nop 1
        v_add_f32_dpp v8, v8, v8 quad_perm:[2,3,0,1] row_mask:0xf bank_mask:0xf
        s_mov_b32 exec_lo, 0x11111111
        s_mov_b32 exec_hi, 0x11111111
        buffer_store_dword v8, v5, s[20:23], s31 offen sc1
        s_mov_b64 exec, -1
        """)
    B = Asm()
    tmp = [60, 61, 62, 63]
    cnt = [0]; neg = {}
    def cmul(z, x, y):
        cnt[0] += 1
        if y in neg:
            B(f"v_mul_f32 v{z}, v{x}, v{y}\nv_mul_f32 v{z+1}, v{x}, v{y+1}\nv_fmac_f32 v{z}, v{x+1}, v{neg[y]}\nv_fmac_f32 v{z+1}, v{x+1}, v{y}")
        elif x == y:
            t = tmp[cnt[0] & 3]
            B(f"v_mul_f32 v{z}, v{x}, v{x}\nv_add_f32 v{t}, v{x}, v{x}\nv_fma_f32 v{z}, -v{x+1}, v{x+1}, v{z}\nv_mul_f32 v{z+1}, v{t}, v{x+1}")
        else:
            B(f"v_mul_f32 v{z}, v{x}, v{y}\nv_mul_f32 v{z+1}, v{x}, v{y+1}\nv_fma_f32 v{z}, -v{x+1}, v{y+1}, v{z}\nv_fmac_f32 v{z+1}, v{x+1}, v{y}")
    PBK, PB, OUT, BF, KD = [152, 168], 184, 200, 216, 232
    bank = [0]
    use16 = opt.get('f16', 1)
    def put(row, z, ng=False):
        B(f"v_cvt_pk_{'f16' if use16 else 'bf16'}_f32 v{PBK[bank[0]] + row}, v{z}, {'-' if ng else ''}v{z+1}")
    def hmul(row, x, y, conj=False):
        d = PBK[bank[0]] + row
        B(f"v_pk_mul_f16 v{d}, v{x}, v{y} op_sel:[0,0] op_sel_hi:[1,0]")
        B(f"v_pk_fma_f16 v{d}, v{x}, v{y}, v{d} op_sel:[1,1,0] op_sel_hi:[0,1,1] {'neg_hi' if conj else 'neg_lo'}:[1,0,0]")
    def transpose(dst, nrows=16):
        PA = PBK[bank[0]]; bank[0] ^= 1
        cur = [PA + i for i in range(16)]
        for d, mask in ((8, 0x00ff00ff), (4, 0x0f0f0f0f), (2, 0x33333333), (1, 0x55555555)):
            if d == 1: new = [dst + i for i in range(16)]
            else: new = [r for r in list(range(PA, PA + 16)) + list(range(PB, PB + 16)) if r not in cur][:16]
            cx = {8: 'row_ror:8', 4: 'row_ror:4', 2: 'quad_perm:[2,3,0,1]', 1: 'quad_perm:[1,0,3,2]'}[d]
            cy = {8: 'row_ror:8', 4: 'row_ror:12', 2: 'quad_perm:[2,3,0,1]', 1: 'quad_perm:[1,0,3,2]'}[d]
            B(f"s_mov_b32 vcc_lo, {mask:#x}\ns_mov_b32 vcc_hi, {mask:#x}")
            lo = [i for i in range(16) if not i & d]
            for i in lo:
                if d == 8 and i + 8 >= nrows: new[i] = cur[i]
                else: B(f"v_cndmask_b32_dpp v{new[i]}, v{cur[i+d]}, v{cur[i]}, vcc {cx} row_mask:0xf bank_mask:0xf")
            B("s_not_b64 vcc, vcc")
            for i in lo:
                if d == 8 and i + 8 >= nrows: B(f"v_mov_b32_dpp v{new[i+d]}, v{cur[i]} {cy} row_mask:0xf bank_mask:0xf")
                else: B(f"v_cndmask_b32_dpp v{new[i+d]}, v{cur[i]}, v{cur[i+d]}, vcc {cy} row_mask:0xf bank_mask:0xf")
            cur = new
    def kmfma(t, c):
        for ks in range(4):
            B(f"v_mfma_f32_16x16x32_{'f16' if use16 else 'bf16'} {v(KD+4*t,4)}, {v(OUT+4*ks,4)}, {v(BF+4*ks,4)}, {'0' if ks == 0 and c == 0 else v(KD+4*t,4)}")
    def direct(z, l, ra, rc, t, wantneg=True):
        if l == 1: B(f"v_exp_f32 v{t}, v{ra}\nv_rndne_f32 v{t+1}, v{rc}\nv_sub_f32 v{t+1}, v{rc}, v{t+1}")
        else: B(f"v_mul_f32 v{t}, {f2u(float(l))}, v{ra}\nv_mul_f32 v{z}, {f2u(float(l))}, v{rc}\nv_exp_f32 v{t}, v{t}\nv_rndne_f32 v{t+1}, v{z}\nv_sub_f32 v{t+1}, v{z}, v{t+1}")
        B(f"v_cos_f32 v{z}, v{t+1}\nv_sin_f32 v{z+1}, v{t+1}\nv_mul_f32 v{z}, v{z}, v{t}\nv_mul_f32 v{z+1}, v{z+1}, v{t}")
        if wantneg: B(f"v_sub_f32 v{neg[z]}, 0, v{z+1}")
    rowof = {}
    for r in range(8): rowof[r] = r; rowof[128 + r] = 8 + r
    for r in range(4): rowof[256 + 2*r] = r; rowof[384 + 2*r] = 4 + r
    for k, l in enumerate([512, 516, 640, 644, 768, 772, 896, 900]): rowof[l] = 8 + k
    for r in range(9): rowof[1024 + 128*r] = r
    reg = {}; nxt = [70]
    def R(l):
        if l not in reg: reg[l] = nxt[0]; nxt[0] += 2
        return reg[l]
    for l, n in (((32, 47), (128, 59)) if use16 else ((8, 47), (1, 58), (128, 59))): neg[R(l)] = n
    dt, ra, rc = 44, 45, 46
    def tables(c):
        p = P
        for k in range(6): B(f"v_and_b32 v{p+k}, 0xffff0000, v{p+6+k}" if c else f"v_lshlrev_b32 v{p+k}, 16, v{p+6+k}")
        for k in range(4): B(f"v_mul_f32 v{p+k}, v{dt}, v{p+k}")
        B(f"v_mul_f32 v{ra}, {f2u(L2E)}, v{p}\nv_mul_f32 v{rc}, {f2u(1/(2*math.pi))}, v{p+1}")
        W = 68
        cmul(W, p + 4, p + 2)
        direct(R(8), 8, ra, rc, 60); direct(R(1), 1, ra, rc, 62); direct(R(128), 128, ra, rc, 64)
        F = [W, 56]
        put(0, W, True)
        e0 = [(l, l - 1, 1) for l in range(2, 8)] + [(128 + l, l, 128) for l in range(1, 8)]
        for fi in range(1, 16):
            cmul(F[fi & 1], F[(fi - 1) & 1], R(8)); put(fi, F[fi & 1], True)
        transpose(BF)
        for z, x, y in e0: cmul(R(z), R(x), R(y))
        B(f"v_mov_b32 v{PBK[bank[0]]}, 0x3f80")
        for l in list(range(1, 8)) + list(range(128, 136)): put(rowof[l], R(l))
        transpose(OUT)
        kmfma(0, c)
        s1 = [(256 + 2*l, 128 + l, 128 + l) for l in range(4)] + [(384 + l, 256 + l, 128) for l in (0, 2, 4, 6)]
        s1 += [(512, 256, 256), (516, 258, 258), (768, 384, 384), (772, 386, 386), (640, 512, 128), (644, 516, 128), (896, 768, 128), (900, 772, 128)]
        for z, x, y in s1: cmul(R(z), R(x), R(y)); put(rowof[z], R(z))
        transpose(OUT)
        kmfma(1, c)
        s2 = [(1024, 512, 512), (1280, 640, 640), (1536, 768, 768), (1792, 896, 896), (1152, 1024, 128), (1408, 1280, 128), (1664, 1536, 128), (1920, 1792, 128), (2048, 1024, 1024)]
        for z, x, y in s2: cmul(R(z), R(x), R(y)); put(rowof[z], R(z))
        transpose(OUT, 9)
        kmfma(2, c)
    HP = {}; hnx = [120]
    def Hreg(l):
        if l not in HP: HP[l] = hnx[0]; hnx[0] += 1
        return HP[l]
    WS_ = [140, 142]
    AC = [(144, 145), (146, 147)]
    def tables16(c):
        ra, rc = AC[c]
        row = lambda r: PBK[bank[0]] + r
        keep = lambda l: B(f"v_cvt_pk_f16_f32 v{Hreg(l)}, v{R(l)}, v{R(l)+1}")
        direct(R(8), 8, ra, rc, 60, False); direct(R(1), 1, ra, rc, 62, False); direct(R(128), 128, ra, rc, 64, True)
        cmul(R(16), R(8), R(8)); cmul(R(32), R(16), R(16)); cmul(R(24), R(16), R(8))
        B(f"v_sub_f32 v{neg[R(32)]}, 0, v{R(32)+1}")
        for l in (8, 16, 24): keep(l)
        F = [WS_[c], 56, 68, 56]
        for a_ in range(4):
            if a_: cmul(F[a_], F[a_-1], R(32))
            put(4 * a_, F[a_], True)
            for b_ in range(1, 4): hmul(4 * a_ + b_, row(4 * a_), Hreg(8 * b_), True)
        transpose(BF)
        cmul(R(2), R(1), R(1)); cmul(R(3), R(2), R(1)); cmul(R(4), R(2), R(2)); cmul(R(6), R(3), R(3)); cmul(R(132), R(128), R(4))
        B(f"v_mov_b32 v{row(0)}, 0x3c00")
        for l in (1, 2, 3, 4, 6, 128, 132): put(rowof[l], R(l))
        for z, x, y in ((5, 4, 1), (7, 4, 3), (129, 128, 1), (130, 128, 2), (131, 128, 3), (133, 132, 1), (134, 132, 2), (135, 132, 3)):
            hmul(rowof[z], row(rowof[x]), row(rowof[y]))
        transpose(OUT)
        kmfma(0, c)
        for l in (2, 4, 6): keep(l)
        for z, x, y in ((256, 128, 128), (384, 256, 128), (512, 256, 256), (640, 512, 128), (768, 384, 384), (896, 768, 128)):
            cmul(R(z), R(x), R(y)); put(rowof[z], R(z))
        for z, x, y in ((258, 256, 2), (260, 256, 4), (262, 256, 6), (386, 384, 2), (388, 384, 4), (390, 384, 6), (516, 512, 4), (644, 640, 4), (772, 768, 4), (900, 896, 4)):
            hmul(rowof[z], row(rowof[x]), Hreg(y))
        transpose(OUT)
        kmfma(1, c)
        cmul(R(1024), R(512), R(512)); put(0, R(1024))
        for r in range(1, 8): keep(128 * r); hmul(r, row(0), Hreg(128 * r))
        cmul(R(2048), R(1024), R(1024)); put(8, R(2048))
        transpose(OUT, 9)
        kmfma(2, c)
    def setup16():
        p = P
        for c in range(2):
            ra, rc = AC[c]
            for k in range(6): A(f"v_and_b32 v{p+k}, 0xffff0000, v{p+6+k}" if c else f"v_lshlrev_b32 v{p+k}, 16, v{p+6+k}")
            for k in range(4): A(f"v_mul_f32 v{p+k}, v{dt}, v{p+k}")
            w = WS_[c]
            A(f"v_mul_f32 v{ra}, {f2u(L2E)}, v{p}\nv_mul_f32 v{rc}, {f2u(1/(2*math.pi))}, v{p+1}")
            A(f"v_mul_f32 v{w}, v{p+4}, v{p+2}\nv_mul_f32 v{w+1}, v{p+4}, v{p+3}\nv_fma_f32 v{w}, -v{p+5}, v{p+3}, v{w}\nv_fmac_f32 v{w+1}, v{p+5}, v{p+2}")
        A(f"v_max3_f32 v61, v{AC[0][0]}, v{AC[1][0]}, 0\nv_max3_f32 v60, |v{WS_[0]}|, |v{WS_[0]+1}|, |v{WS_[1]}|\nv_max_f32 v60, |v{WS_[1]+1}|, v60\ns_nop 0")
        for d in (1, 2, 4, 8):
            A(f"v_max_f32_dpp v61, v61, v61 row_ror:{d} row_mask:0xf bank_mask:0xf\nv_max_f32_dpp v60, v60, v60 row_ror:{d} row_mask:0xf bank_mask:0xf\ns_nop 0")
        for k, l in enumerate((0, 16, 32, 48)): A(f"v_readlane_b32 s{64+k}, v61, {l}\nv_readlane_b32 s{68+k}, v60, {l}")
        A(f"""
        s_max_u32 s64, s64, s65
        s_max_u32 s66, s66, s67
        s_max_u32 s47, s64, s66
        s_max_u32 s68, s68, s69
        s_max_u32 s70, s70, s71
        s_max_u32 s68, s68, s70
        s_lshr_b32 s68, s68, 23
        s_max_u32 s68, s68, 20
        s_min_u32 s68, s68, 240
        s_sub_u32 s69, {254 + 9}, s68
        s_lshl_b32 s72, s69, 23               ; scale = 2^(9 - e)
        s_sub_u32 s68, s68, 9
        s_lshl_b32 s73, s68, 23               ; inverse
        v_subrev_f32 v{AC[0][0]}, s47, v{AC[0][0]}
        v_subrev_f32 v{AC[1][0]}, s47, v{AC[1][0]}
        """)
        for c in range(2): A(f"v_mul_f32 v{WS_[c]}, s72, v{WS_[c]}\nv_mul_f32 v{WS_[c]+1}, s72, v{WS_[c]+1}")
    def unscale16():
        for k in range(12): A(f"v_mul_f32 v{KD+k}, s73, v{KD+k}")
        A(f"""
        s_cmp_eq_u32 s47, 0
        s_cbranch_scc1 S_nogrow
        v_and_b32 v8, 15, v12
        v_lshrrev_b32 v9, 4, v12              ; q
        v_lshlrev_b32 v8, 3, v8               ; 8 i
        v_cmp_lt_u32 vcc, 1, v9
        v_lshlrev_b32 v10, 2, v9
        v_add_u32 v11, 120, v10
        v_cndmask_b32 v60, v10, v11, vcc
        v_lshlrev_b32 v10, 7, v9
        v_add_u32 v10, 256, v10
        v_lshlrev_b32 v11, 8, v9
        v_cndmask_b32 v61, v10, v11, vcc
        v_lshlrev_b32 v62, 9, v9
        v_add_u32 v62, 1024, v62
        """)
        for t_ in range(3):
            for r in range(4):
                if t_ == 1:
                    A(f"v_mov_b32 v10, {2*r}\nv_mov_b32 v11, {128*(r >> 1) + 4*(r & 1)}\nv_cndmask_b32 v10, v10, v11, vcc\nv_add3_u32 v10, v10, v61, v8")
                else:
                    A(f"v_add_u32 v10, {r if t_ == 0 else 128*r}, v{60+t_}\nv_add_u32 v10, v10, v8")
                A(f"v_cvt_f32_u32 v10, v10\nv_mul_f32 v10, s47, v10\nv_exp_f32 v10, v10\ns_nop 0\nv_mul_f32 v{KD+4*t_+r}, v{KD+4*t_+r}, v10")
        A("S_nogrow:")
    def gather_addresses():
        T0, E_, K_ = (32, 48, 66) if use16 else (76, 85, 64)
        Vr = [244 + e for e in range(8)] + [25] if use16 else [94 + e for e in range(8)] + [25]
        B(f"v_lshlrev_b32 v{GA}, 3, v0\nv_sub_u32 v{GA}, 2047, v{GA}\nv_cvt_f32_u32 v{GA}, v{GA}")
        for e in range(9): B(f"v_add_f32 v{T0+e}, {f2u(-1.0*e)}, v{GA}")
        for e in range(0, 9, 2): B(f"v_cvt_pk_bf16_f32 v{E_+e//2}, v{T0+e}, v{T0+min(e+1,8)}")
        for e in range(9): B(f"v_and_b32 v{T0+e}, 0xffff0000, v{E_+e//2}" if e & 1 else f"v_lshlrev_b32 v{T0+e}, 16, v{E_+e//2}")
        for e in range(9): B(f"v_frexp_exp_i32_f32 v{E_+e}, v{T0+e}\nv_cvt_u32_f32 v{Vr[e]}, v{T0+e}")
        for e in range(9): B(f"v_subrev_u32 v{E_+e}, 8, v{E_+e}\nv_lshrrev_b32 v{T0+e}, 7, v{Vr[e]}\nv_and_b32 v{GA+e}, 7, v{Vr[e]}")
        for e in range(9): B(f"v_max_i32 v{E_+e}, 0, v{E_+e}\nv_lshl_or_b32 v{T0+e}, v{T0+e}, 3, v{GA+e}\nv_bfe_u32 v{Vr[e]}, v{Vr[e]}, 3, 4")
        for e in range(9): B(f"v_lshrrev_b32 v{T0+e}, v{E_+e}, v{T0+e}\nv_lshlrev_b32 v{Vr[e]}, 2, v{Vr[e]}")
        for e in range(9): B(f"v_lshl_add_u32 v{T0+e}, v{E_+e}, 3, v{T0+e}\nv_add_u32 v{Vr[e]}, {CMP}, v{Vr[e]}")
        B(f"v_mov_b32 v{K_}, 80")
        for e in range(9): B(f"v_mad_u32_u24 v{GA+e}, v{T0+e}, v{K_}, v{Vr[e]}")
    def publish_u():
        A(f"s_waitcnt vmcnt(0)\ns_cmp_lg_u32 s96, 0\ns_cbranch_scc1 S_havetag")
        get_nonce(A, 'SA', 8, 60, 96)
        A(f"""
S_havetag:
        s_lshl_b32 s38, s27, 5
        s_add_u32 s38, s38, s26
        s_lshl_b32 s38, s38, 2
        s_add_u32 s38, s38, s24
        s_lshl_b32 s38, s38, 3
        s_add_u32 s38, s38, {FL_U}
        v_mov_b32 v10, s38
        v_mov_b32 v8, s96
        v_mov_b32 v9, s97
        s_mov_b64 exec, 1
        buffer_store_dwordx2 v[8:9], v10, s[56:59], 0 offen sc1
        s_mov_b64 exec, -1
        """)
    def pollissue():
        A(f"""
        v_lshlrev_b32 v6, 4, v12
        s_lshr_b32 s38, s25, 5
        s_lshl_b32 s38, s38, 10
        s_add_u32 s38, s38, {FL_U}
        v_add_u32 v6, s38, v6
        buffer_load_dwordx4 v[8:11], v6, s[56:59], 0 offen sc1
        """)
    def udma():
        A("s_mov_b64 s[28:29], vcc\ns_waitcnt vmcnt(0)")
        poll_flags4(A, 'SU', 6, 8, 56, 96, 99, first_issued=True, sleep=4)
        A(f"""
        s_barrier
        v_lshlrev_b32 v6, 6, v12
        s_lshr_b32 s38, s25, 1
        s_lshl_b32 s38, s38, 14
        s_and_b32 s39, s25, 1
        s_lshl_b32 s39, s39, 5
        s_add_u32 s38, s38, s39
        s_lshl_b32 s39, s24, 12
        s_add_u32 s38, s38, s39
        s_lshl_b32 s39, s24, 10
        s_add_u32 m0, s39, {UB[0] + 512}
        s_mov_b64 vcc, s[28:29]
        buffer_load_dwordx4 v6, s[12:15], s38 offen lds
        s_add_u32 m0, s39, {UB[1] + 512}
        s_add_u32 s38, s38, 16
        buffer_load_dwordx4 v6, s[12:15], s38 offen lds
        """)
    ST.mark(A)
    A(f"""
    s_waitcnt vmcnt({0 if LATE else 6})
    v_lshlrev_b32 v{dt}, 16, v26
    v_and_b32 v26, 0xffff0000, v26
    s_cmp_ge_u32 s24, 2
    s_cselect_b64 vcc, -1, 0
    v_cndmask_b32 v{dt}, v{dt}, v26, vcc
    v_mul_f32 v{dt}, {f2u(L2E)}, v{dt}
    v_exp_f32 v{dt}, v{dt}
    s_nop 0
    v_cvt_pk_bf16_f32 v{dt}, v{dt}, v{dt}
    v_lshlrev_b32 v{dt}, 16, v{dt}
    """)
    if opt.get('s_touchonly'):
        A("s_cmp_ge_u32 s87, 4\ns_cbranch_scc1 S_tend\ns_sleep 40")
        for q in range(13): A(f"buffer_load_dword v3, v2, s[48:51], s85 offen\ns_add_u32 s85, s85, {16 * 8192}")
        A("S_tend:\ns_endpgm")
    ST.mark(A)
    if use16:
        setup16(); tables16(0); tables16(1)
        assert nxt[0] <= 120 and hnx[0] <= 140
    else:
        tables(0); tables(1)
    ng = len(B.l)
    gather_addresses()
    fs = opt.get('fake_split', 0)
    if fs:
        half = next(i_ for i_, x in enumerate(B.l) if 'v_and_b32 v32, 0xffff0000' in x)
        seqA = schedule(B.l[:half], filler='v_mov_b32 v29, v29', window=700)
        seqB = schedule(B.l[half:], filler='v_mov_b32 v29, v29', window=700)
    seq = seqA + seqB if fs else schedule(B.l, filler='v_mov_b32 v29, v29' if opt.get('fill', 0 if use16 else 1) else None, window=700)
    N = len(seq)
    firstga = next(i for i, x in enumerate(seq) if x.startswith(f"v_lshlrev_b32 v{GA}, 3, v0"))
    print('S table ops', len(B.l), 'scheduled', N, 'nops', seq.count('s_nop 0'), 'fillers', seq.count('v_mov_b32 v29, v29'), 'first gather op at', firstga)
    tp = int(N * opt.get('t_at', 0.2))
    assert tp < firstga
    hk = {int(N * LATE) if LATE else -1: lambda: A(late), tp: tpart, int(N * opt.get('pub_at', 0.35)): publish_u, N // 2: lambda: ST.mark(A),
          int(N * opt.get('poll_at', 0.85)): pollissue, int(N * opt.get('udma_at', 0.97)): udma}
    nt = opt.get('wd_n', 13); t0_, t1_ = opt.get('wd_span', (0.36, 0.95))
    tpos = {int(N * (t0_ + (t1_ - t0_) * q / max(1, nt - 1))) + 1: q for q in range(nt)} if opt.get('wdpf', 1) else {}
    def conv(es, ACC, BR, AR, va, vb):
        L = Lds(A)
        ns = [8 * e + q for e in es for q in range(8)]
        def rdB(e, j): L.issue(f"ds_read_b128 {v(BR[e&1] + 4*j, 4)}, v{vb} offset:{512*j + 32*(13 - (1 + 4*e))}", ('B', e, j))
        def rdA(n):
            e, q = divmod(n, 8)
            o = 32 * (127 - 16*q - (1 + 4*e)) - 64; r = AR + 4 * (n % 4)
            L.issue(f"ds_read_b64 {v(r,2)}, v{va} offset:{o}", ('A0', n)); L.issue(f"ds_read_b64 {v(r+2,2)}, v{va} offset:{o+8}", ('A', n))
        rdA(ns[0])
        for j in range(8): rdB(es[0], j)
        rdA(ns[1]); rdA(ns[2])
        for n in ns:
            e, q = divmod(n, 8)
            for j in range(q, 8):
                L.need(('A', n), ('B', e, j - q))
                first = (n == ns[0])
                A(f"v_mfma_f32_16x16x32_bf16 {v(ACC+4*j,4)}, {v(AR+4*(n%4),4)}, {v(BR[e&1]+4*(j-q),4)}, {'0' if first else v(ACC+4*j,4)}")
                if j == q:
                    if n + 3 <= ns[-1]: rdA(n + 3)
                    if e < es[-1] and q < 4: rdB(e + 1, 2*q); rdB(e + 1, 2*q + 1)
    def fake_mid():
        A("s_nop 7\nv_lshlrev_b32 v8, 4, v12\nv_lshlrev_b32 v9, 3, v12\nv_lshlrev_b32 v10, 2, v12")
        for k in range(12): A(f"ds_write_b32 v28, v{232+k} offset:{k*80}")
        A("s_waitcnt lgkmcnt(0)\ns_barrier")
        for k in range(18): A(f"ds_read_b32 v{100+k}, v10 offset:{CMP + k*256}")
        A("s_waitcnt lgkmcnt(0)")
        for k in range(17): A(f"v_add_f32 v{100+k}, v{100+k}, v{101+k}")
        for k in range(2): A(f"ds_write_b128 v8, v[100:103] offset:{k*4096}")
        for k in range(4): A(f"ds_write2_b32 v9, v100, v101 offset0:{2*k} offset1:{2*k+1}")
        A("s_waitcnt lgkmcnt(0)\ns_barrier")
        conv([0, 1], 72, [104, 136], 168, 9, 8)
        A("s_nop 7")
        for k in range(6): A(f"ds_write_b128 v8, v[{72+4*k}:{75+4*k}] offset:{RED + k*1024}")
        A("s_waitcnt lgkmcnt(0)\ns_barrier")
        for k in range(6): A(f"ds_read_b128 v[{104+4*k}:{107+4*k}], v8 offset:{RED + k*1024}")
        A("s_waitcnt lgkmcnt(0)")
        for k in range(40): A(f"v_add_f32 v{104+k%24}, v{104+k%24}, v{72+k%24}")
    for i, x in enumerate(seq):
        if fs and i == len(seqA): fake_mid()
        if i in hk: hk[i]()
        if i in tpos:
            A(f"s_cmp_ge_u32 s87, 4\ns_cbranch_scc1 S_wt{tpos[i]}\nbuffer_load_dword v3, v2, s[48:51], s85 offen\ns_add_u32 s85, s85, {16 * 8192}\nS_wt{tpos[i]}:")
        A(x)
    ST.mark(A)
    A(f"""
    v_mov_b32 v7, {CMP + 64}
    v_cmp_eq_u32 vcc, 255, v0
    v_and_b32 v6, 15, v12                 ; rho / n
    s_lshr_b32 s32, s24, 1                ; ch
    v_cndmask_b32 v{GA+8}, v{GA+8}, v7, vcc
    v_lshrrev_b32 v7, 4, v12              ; kg
    s_and_b32 s27, s24, 1                 ; par
    """)
    if use16:
        A("s_nop 4"); unscale16()
    A("v_not_b32 v8, v6\nv_and_b32 v8, 3, v8")
    for t in range(3):
        for r in range(4):
            if t == 2 and r == 0: A("s_mov_b32 exec_hi, 0xffff")
            if t == 2 and r == 1: A("s_mov_b32 exec_hi, 0")
            A(f"ds_write_b32 v{DA}, v{KD+4*t+r} offset:{t*1280 + r*80}")
    A(f"""
    s_mov_b64 exec, -1
    v_mul_u32_u24 v8, {CP}, v8
    v_and_b32 v9, 12, v6
    v_lshlrev_b32 v9, 1, v9
    v_sub_u32 v8, v8, v9
    v_lshl_add_u32 v8, v7, 4, v8
    s_mul_i32 s38, s32, {CH}
    s_lshl_b32 s39, s27, 6
    s_sub_u32 s38, s38, s39
    s_add_u32 s38, s38, {2*2044 - 32*127 + 64}
    v_add_u32 v1, s38, v8                 ; vA
    v_lshlrev_b32 v8, 5, v6
    v_lshl_add_u32 v9, v7, 4, v8
    s_mul_i32 s38, s32, {UB[1]-UB[0]}
    s_add_u32 s38, s38, {UB[0] + 512}
    s_sub_u32 s39, s38, s39
    s_sub_u32 s39, s39, {32*13}
    v_add_u32 v2, s39, v9                 ; vB
    v_lshl_add_u32 v3, v7, 3, v8
    v_add_u32 v4, s38, v3
    v_and_b32 v3, 2, v7
    v_lshl_add_u32 v3, v3, 3, v8
    v_and_b32 v5, 1, v7
    v_lshl_add_u32 v3, v5, 10, v3
    s_waitcnt lgkmcnt(0)
    s_barrier
    """)
    ST.mark(A)
    E = [64, 80]
    for c in range(2):
        for e in range(9):
            A(f"ds_read_b32 v{100 + 20*c + e}, v{GA+e} offset:{2*c*CMPSZ}\nds_read_b32 v{110 + 20*c + e}, v{GA+e} offset:{(2*c+1)*CMPSZ}")
    A(f"""
    v_lshlrev_b32 v5, 4, v12
    s_lshl_b32 s38, s24, 12
    s_add_u32 s38, s38, {RED}
    v_add_u32 v14, s38, v5
    s_xor_b32 s38, s24, 1
    s_lshl_b32 s38, s38, 12
    s_add_u32 s38, s38, {RED}
    v_add_u32 v15, s38, v5
    s_lshl_b32 s35, s37, 16
    s_and_b32 s38, s37, 0xffff0000
    s_cmp_eq_u32 s32, 1
    s_cselect_b32 s35, s38, s35           ; Dskip (f32)
    s_lshl_b32 s33, s25, 1
    s_add_u32 s33, s33, s32
    s_lshl_b32 s33, s33, 12               ; d*4096
    v_lshlrev_b32 v6, 4, v0
    v_add_u32 v7, {2*CP - 4}, v6
    v_add_u32 v8, {3*CP - 4}, v6
    v_add_u32 v9, {CH + 2*CP - 4}, v6
    v_add_u32 v10, {CH + 3*CP - 4}, v6
    """)
    def copies(c, e, o):
        A(f"""ds_write_b128 v6, {v(e,4)} offset:{c*CH}
        ds_write_b128 v6, {v(o,4)} offset:{c*CH + CP}
        ds_write2_b32 v{7+2*c}, v{e}, v{e+1} offset0:0 offset1:1
        ds_write2_b32 v{7+2*c}, v{e+2}, v{e+3} offset0:2 offset1:3
        ds_write2_b32 v{8+2*c}, v{o}, v{o+1} offset0:0 offset1:1
        ds_write2_b32 v{8+2*c}, v{o+2}, v{o+3} offset0:2 offset1:3""")
    for c in range(2):
        A(f"s_waitcnt lgkmcnt({15 if c == 0 else 6})")
        b = 100 + 20*c
        for e in range(9): A(f"v_add_f32 v{b+e}, v{b+e}, v{b+10+e}")
        for j in range(4): A(f"v_cvt_pk_bf16_f32 v{E[c]+j}, v{b+2*j}, v{b+2*j+1}\nv_cvt_pk_bf16_f32 v{E[c]+8+j}, v{b+2*j+1}, v{b+2*j+2}")
        copies(c, E[c], E[c] + 8)
    A(f"s_cmp_lg_u32 s24, 0\ns_cbranch_scc1 S_nozero\ns_mov_b64 exec, 3")
    for k in range(4): A(f"v_mov_b32 v{96+k}, 0")
    for k in range(6, 11): A(f"v_add_u32 v{k}, 4096, v{k}")
    for c in range(2): copies(c, 96, 96)
    A("s_mov_b64 exec, -1\nS_nozero:\ns_waitcnt vmcnt(0) lgkmcnt(0)\ns_barrier")
    ST.mark(A)
    if 'prio_conv' in opt: A(f"s_setprio {opt['prio_conv']}")
    ACC, BR, AR = 16, [64, 96], 48
    conv([2, 3] if fs else [0, 1, 2, 3], ACC, BR, AR, 1, 2)
    ST.mark(A)
    A("s_cmp_eq_u32 s27, 1\ns_cbranch_scc1 S_epi1")
    for par in range(2):
        if par: A("S_epi1:")
        keep = [j for j in range(8) if (j & 1) == par]; send = [j for j in range(8) if (j & 1) != par]
        for k, j in enumerate(keep): A(f"ds_read_b64 {v(64+2*k,2)}, v4 offset:{512*j}")
        A("s_nop 3")
        for k, j in enumerate(send): A(f"ds_write_b128 v14, {v(ACC+4*j,4)} offset:{k*1024}")
        A("s_waitcnt lgkmcnt(4)")
        for k, j in enumerate(keep):
            for r in range(4):
                src = 64 + 2*k + r // 2
                A(f"v_and_b32 v{96+4*k+r}, 0xffff0000, v{src}" if r & 1 else f"v_lshlrev_b32 v{96+4*k+r}, 16, v{src}")
            for r in range(4): A(f"v_fmac_f32 v{ACC+4*j+r}, s35, v{96+4*k+r}")
        A("s_waitcnt lgkmcnt(0)\ns_barrier")
        for k, j in enumerate(keep): A(f"ds_read_b128 {v(80+4*k,4)}, v15 offset:{k*1024}")
        for k, j in enumerate(keep):
            A(f"s_waitcnt lgkmcnt({3-k})")
            for r in range(4): A(f"v_add_f32 v{ACC+4*j+r}, v{ACC+4*j+r}, v{80+4*k+r}")
            A(f"v_cvt_pk_bf16_f32 v{112+2*k}, v{ACC+4*j}, v{ACC+4*j+1}\nv_cvt_pk_bf16_f32 v{113+2*k}, v{ACC+4*j+2}, v{ACC+4*j+3}")
            if k & 1:
                b = 112 + 2*(k-1)
                A(f"s_nop 1\nv_permlane16_swap_b32 v{b}, v{b+2}\nv_permlane16_swap_b32 v{b+1}, v{b+3}")
                A(f"buffer_store_dwordx4 {v(b,4)}, v3, s[16:19], s33 offen offset:{512*keep[k-1]} sc1")
        if par == 0: A("s_branch S_done")
    A(f"""
S_done:
    s_lshl_b32 s38, s25, 2
    s_add_u32 s38, s38, s24
    s_lshl_b32 s38, s38, 3
    s_add_u32 s38, s38, {FL_A}
    v_mov_b32 v10, s38
    v_mov_b32 v8, s96
    v_mov_b32 v9, s97
    s_mov_b64 exec, 1
    s_waitcnt vmcnt(0)
    buffer_store_dwordx2 v[8:9], v10, s[56:59], 0 offen sc1
    s_mov_b64 exec, -1
    """)
    ST.finish(A, tsbase)
    A("s_endpgm")
```

```python
import sys
from common2 import *
from role_fg import role_fg
from role_s4 import role_s
DEFAULTS = {'e1':2,'e_per':6,'prio_s':1,'prio_fg':1,'late_at':0.12,'t_at':0.25,'pub_at':0.4,'wd_span':(0.41,0.95),'prio_epi':3,'usepk':0,'w_from':3,'f16':0,'dm_first':0,'dm_mode':8,'fmaak':1,'gs_spread':1,'bm':1}
def build(out, diag=False, opt={}):
    hdr = open('cdna_kernels/' + NAME + '.s.ref').read().split('; Override launch')[0]
    K = NAME + '_kernel'
    src = hdr + """; @launch grid=(448,1,1) block=(256,1,1) lds=81920
.amdgcn_target "amdgcn-amd-amdhsa--gfx950"
.text
"""
    A = Asm(); ST = Stamps(diag)
    A("""
    s_cmp_ge_u32 s2, 448
    s_cbranch_scc1 K_exit
    """)
    ST.start(A)
    A("""
    s_and_b32 s3, s2, 7
    s_lshr_b32 s33, s2, 3                 ; j
    """)
    if opt.get('pfcode', 1):
        A("""
    s_getpc_b64 s[4:5]
K_pc:
    s_mul_i32 s6, s33, 5
    v_add_u32 v1, s6, v0
    v_lshlrev_b32 v1, 7, v1
    v_min_u32 v1, K_exit - K_pc, v1
    v_cmp_gt_u32 vcc, 5, v0
    s_and_saveexec_b64 s[6:7], vcc
    s_cbranch_execz K_nopf
    global_load_dword v63, v1, s[4:5]
K_nopf:
    s_mov_b64 exec, s[6:7]
    """)
    A("""
    s_cmp_ge_u32 s33, 28
    s_cbranch_scc1 K_s
    s_lshr_b32 s25, s3, 1
    s_lshl_b32 s25, s25, 2
    s_and_b32 s26, s33, 3
    s_add_u32 s25, s25, s26               ; rb
    s_and_b32 s26, s3, 1
    s_mul_i32 s26, s26, 7
    s_lshr_b32 s33, s33, 2
    s_add_u32 s26, s26, s33               ; cb
    """)
    role_fg(A, ST, opt)
    A("""
K_s:
    s_sub_u32 s33, s33, 28
    s_mov_b32 s87, s33
    s_mul_i32 s25, s3, 28
    s_add_u32 s25, s25, s33
    s_lshl_b32 s26, s3, 2
    s_and_b32 s27, s33, 3
    s_add_u32 s26, s26, s27               ; rt_s
    s_lshr_b32 s27, s33, 2                ; ct_s
    """)
    ST = Stamps(diag); ST.n = 1 if diag else 0
    role_s(A, ST, opt)
    A("K_exit:\ns_endpgm")
    src += kernel_head(K) + A.text() + '.section .rodata,"a"\n' + kernel_desc(K, 256, 102)
    open(out, 'w').write(src)
if __name__ == '__main__':
    opt = dict(DEFAULTS); opt.update(eval(sys.argv[3]) if len(sys.argv) > 3 else {})
    build(sys.argv[1], {'diag': True, 'rt': 'rt', 'span': 'span'}.get(sys.argv[2], False) if len(sys.argv) > 2 else False, opt)
```

```python
from common import *
WS_GP, WS_GP_SZ = 0xC00000, 2048 * 32
WS_FL, WS_FL_SZ = 0xC80000, 0x4000 + 32 * 28 * 256
FL_H, FL_U, FL_A = 0x4000, 0, 0x1c00
SPIN_MAX = 1 << 16

class Vm:
    def __init__(self, A): self.A = A; self.q = []
    def issue(self, ins, tag): self.A(ins); self.q.append(tag)
    def count(self, *tags):
        idx = max((i for i, t in enumerate(self.q) if t in tags), default=-1)
        if idx < 0: return None
        n = len(self.q) - 1 - idx
        self.q = self.q[idx + 1:]
        assert n <= 63
        return n
    def drain(self): self.q = []

def get_nonce(A, lab, vtmp, srd_dbg, sn):
    A(f"""
    s_mov_b32 s{sn+2}, {SPIN_MAX}
    v_mov_b32 v{vtmp+2}, 0
{lab}_nl:
    buffer_load_dwordx2 {v(vtmp,2)}, v{vtmp+2}, s[{srd_dbg}:{srd_dbg+3}], 0 offen sc1
    s_waitcnt vmcnt(0)
    v_readfirstlane_b32 s{sn}, v{vtmp}
    v_readfirstlane_b32 s{sn+1}, v{vtmp+1}
    s_sub_u32 s{sn+2}, s{sn+2}, 1
    s_cbranch_scc1 {lab}_nd
    s_cmp_eq_u32 s{sn}, 0
    s_cbranch_scc0 {lab}_nd
    s_sleep 2
    s_branch {lab}_nl
{lab}_nd:
    """)

def poll_flags(A, lab, vaddr, vtmp, srd_fl, sn, stmp, first_issued=False, sleep=1):
    A(f"s_mov_b32 s{stmp}, {SPIN_MAX}")
    if first_issued: A(f"s_branch {lab}_pc")
    A(f"""
{lab}_pl:
    buffer_load_dwordx2 {v(vtmp,2)}, v{vaddr}, s[{srd_fl}:{srd_fl+3}], 0 offen sc1
    s_waitcnt vmcnt(0)
{lab}_pc:
    v_cmp_ne_u64 vcc, s[{sn}:{sn+1}], {v(vtmp,2)}
    s_sub_u32 s{stmp}, s{stmp}, 1
    s_cbranch_scc1 {lab}_pd
    s_cmp_eq_u64 vcc, 0
    s_cbranch_scc1 {lab}_pd
    s_sleep {sleep}
    s_branch {lab}_pl
{lab}_pd:
    """)

def poll_flags4(A, lab, vaddr, vtmp, srd_fl, sn, stmp, first_issued=False, sleep=1, soff='0'):
    A(f"s_mov_b32 s{stmp}, {SPIN_MAX}")
    if first_issued: A(f"s_branch {lab}_pc")
    A(f"""
{lab}_pl:
    buffer_load_dwordx4 {v(vtmp,4)}, v{vaddr}, s[{srd_fl}:{srd_fl+3}], {soff} offen sc1
    s_waitcnt vmcnt(0)
{lab}_pc:
    v_cmp_ne_u64 vcc, s[{sn}:{sn+1}], {v(vtmp,2)}
    v_cmp_ne_u64 s[100:101], s[{sn}:{sn+1}], {v(vtmp+2,2)}
    s_sub_u32 s{stmp}, s{stmp}, 1
    s_cbranch_scc1 {lab}_pd
    s_or_b64 vcc, vcc, s[100:101]
    s_cbranch_scc0 {lab}_pd
    s_sleep {sleep}
    s_branch {lab}_pl
{lab}_pd:
    """)

def spoll_issue(A, off, kp=8):
    if kp == 8: A(f"s_load_dwordx16 s[64:79], s[80:81], {off} glc")
    else:
        for k in range(7): A(f"s_load_dwordx2 s[{64+2*k}:{65+2*k}], s[80:81], {off + kp*k} glc")
def spoll(A, lab, off, n, sn, stmp, first_issued=False, sleep=0, kp=8):
    A(f"s_mov_b32 s{stmp}, {SPIN_MAX}")
    if first_issued: A(f"s_branch {lab}_pc")
    A(f"{lab}_pl:")
    if sleep: A(f"s_sleep {sleep}")
    spoll_issue(A, off, kp)
    A(f"{lab}_pc:\ns_waitcnt lgkmcnt(0)\ns_sub_u32 s{stmp}, s{stmp}, 1\ns_cbranch_scc1 {lab}_pd")
    for k in range(n):
        A(f"s_cmp_lg_u64 s[{64+2*k}:{65+2*k}], s[{sn}:{sn+1}]\ns_cbranch_scc1 {lab}_pl")
    A(f"{lab}_pd:")
```

```python
from common2 import *
import math
XBUF = [49152, 65536]; WBUF = [0, 16384, 32768]
ACC = 64
FR = [16, 40]
V_XD, V_WGD, V_WUD = 1, 2, 3
V_XR = 4; V_WR = 8; V_ST = 12
NS = 9
SLOT = [32768, 40960, 65536, 73728, 0, 8192, 16384, 24576, 49152]
GACC = 16; HR = 80; ATILE = 57344
V_WD = [1, 252, 253, 254]
NE = 7
def role_fg(A, ST, opt, tsbase=0):
    usepk = opt.get('usepk', True)
    HRS = [104, 160, 168, 112, 120]
    HN = len(HRS)
    GB = [16, 32, 48, 176]
    held = [192 + 8 * i_ for i_ in range(7)] + [64, 72, 128, 136, 80, 88, 144, 152, 96]
    NW = len(held)
    slots = {}
    freeslots = list(range(NS))
    def slot_of(n):
        if n not in slots: slots[n] = freeslots.pop(0)
        return slots[n]
    def release(n): freeslots.append(slots[n])
    A(f"""
    s_load_dwordx2 s[4:5], s[0:1], {KA['u']}
    s_load_dwordx4 s[28:31], s[0:1], {KA['Wg']}
    s_load_dwordx2 s[6:7], s[0:1], {KA['ws']}
    s_load_dwordx2 s[48:49], s[0:1], {KA['Wd']}
    s_load_dwordx4 s[52:55], s[0:1], {KA['out']}
    s_setprio {opt.get('prio_fg', 2)}
    v_lshrrev_b32 v13, 6, v0
    v_and_b32 v0, 63, v0
    v_readfirstlane_b32 s24, v13
    v_lshrrev_b32 v14, 3, v0              ; lane>>3
    v_lshrrev_b32 v15, 4, v0              ; lane>>4
    s_and_b32 s27, s24, 1                 ; wr
    s_lshr_b32 s32, s24, 1                ; wc
    s_lshl_b32 s33, s27, 2
    v_add_u32 v16, s33, v15
    v_and_b32 v17, 7, v0
    v_xor_b32 v17, v17, v16
    v_lshlrev_b32 v17, 4, v17
    v_mov_b32 v18, 896
    v_mad_u32_u24 v{V_XD}, v14, v18, v17
    v_lshlrev_b32 v16, 1, v15
    v_and_b32 v17, 15, v0
    v_xor_b32 v17, v17, v16
    v_lshlrev_b32 v17, 4, v17
    v_mov_b32 v18, 3584
    v_mad_u32_u24 v{V_WGD}, v15, v18, v17
    v_xor_b32 v{V_WUD}, 128, v{V_WGD}
    s_lshl_b32 s34, s25, 4
    s_add_u32 s34, s34, s24
    s_mul_i32 s34, s34, {8*896}
    s_mul_i32 s35, s24, {4*3584}
    s_lshl_b32 s37, s26, 8
    s_add_u32 s35, s35, s37
    s_lshl_b32 s36, s24, 10
    s_and_b32 s85, s25, 3                 ; rbl
    v_bfe_u32 v19, v0, 1, 3
    v_lshl_add_u32 v19, v15, 5, v19
    s_lshl_b32 s38, s85, 3
    v_add_u32 v19, s38, v19
    v_mul_u32_u24 v19, 3584, v19
    v_and_b32 v20, 1, v0
    v_lshl_add_u32 v19, v20, 7, v19
    v_add_u32 v22, s37, v19
    v_and_b32 v19, 31, v0
    v_min_u32 v19, 18, v19
    s_cmp_ge_u32 s26, 7
    s_cselect_b32 s38, 7, 0
    s_sub_u32 s38, s26, s38
    s_lshl_b32 s85, s85, 1
    s_add_u32 s85, s85, s38
    s_cmp_ge_u32 s85, 7
    s_cselect_b32 s86, 7, 0
    s_sub_u32 s85, s85, s86
    s_mov_b32 s60, {'s85' if opt.get('rot', 0) else 0}
    s_mov_b32 s62, s60
    s_mul_i32 s38, s38, 19
    v_add_u32 v19, s38, v19
    v_min_u32 v19, 127, v19
    s_lshl_b32 s38, s25, 7
    v_add_u32 v19, s38, v19
    v_mul_u32_u24 v19, 896, v19
    v_lshrrev_b32 v20, 5, v0
    v_lshl_add_u32 v23, v20, 7, v19
    s_waitcnt lgkmcnt(0)
    """)
    ST.mark(A)
    srd(A, 8, 4, SZ_U); srd(A, 12, 28, SZ_W); srd(A, 16, 30, SZ_W)
    def dmaX(b, i):
        pre = "s_lshl_b32 s61, s60, 7\ns_add_u32 s61, s61, s34\ns_add_u32 s60, s60, 1\ns_cmp_eq_u32 s60, 7\ns_cselect_b32 s60, 0, s60\n" if i == 0 else ''
        return (pre + f"s_add_u32 m0, s36, {XBUF[b & 1] + i * 4096}\n"
                f"s_add_u32 s38, s61, {i * 32 * 896}\n"
                f"buffer_load_dwordx4 v{V_XD}, s[8:11], s38 offen lds")
    def dmaW(st, m, i):
        pre = f"s_mul_i32 s63, s62, {64*3584}\ns_add_u32 s63, s63, s35\ns_add_u32 s62, s62, 1\ns_cmp_eq_u32 s62, 7\ns_cselect_b32 s62, 0, s62\n" if (st & 1) == 0 and m == 0 and i == 0 else ''
        return (pre + f"s_add_u32 m0, s36, {WBUF[st % 3] + m * 8192 + i * 4096}\n"
                f"s_add_u32 s38, s63, {(32 * (st & 1) + 16 * i) * 3584}\n"
                f"buffer_load_dwordx4 v{V_WUD if m else V_WGD}, s[{16 if m else 12}:{19 if m else 15}], s38 offen lds")
    def stW(st): return [dmaW(st, m, i) for i in range(2) for m in range(2)]
    def stX(b): return [dmaX(b, i) for i in range(4)]
    srd(A, 44, 54, 256)
    A(f"""
    s_xor_b32 s33, s24, 3
    s_or_b32 s33, s2, s33
    s_cmp_lg_u32 s33, 0
    s_cbranch_scc1 FG_notag
    s_memrealtime s[40:41]
    v_mov_b32 v28, 0
    s_waitcnt lgkmcnt(0)
    s_or_b32 s40, s40, 1
    v_mov_b32 v26, s40
    v_mov_b32 v27, s41
    s_mov_b64 exec, 1
    buffer_store_dwordx2 v[26:27], v28, s[44:47], 0 offen sc1
    s_mov_b64 exec, -1
FG_notag:
    """)
    if opt.get('pf', 0):
        A(f"""
        s_cmp_eq_u32 s24, 3
        s_cbranch_scc1 FG_pf3
        s_cmp_eq_u32 s24, 2
        s_cbranch_scc1 FG_pf2
        s_cmp_eq_u32 s24, 1
        s_cbranch_scc1 FG_pf1
        buffer_load_dword v24, v22, s[12:15], 0 offen
        s_branch FG_pf3
FG_pf1:
        buffer_load_dword v24, v22, s[16:19], 0 offen
        s_branch FG_pf3
FG_pf2:
        buffer_load_dword v24, v23, s[8:11], 0 offen
FG_pf3:
        """)
    burst12 = opt.get('burst', 20) == 12
    for x in stX(0) + stW(0) + stW(1) + ([] if burst12 else stX(1) + stW(2)): A(x)
    srd(A, 20, 6, WS_H_SZ, WS_H); srd(A, 56, 6, WS_FL_SZ, WS_FL)
    A(f"""
    {'s_waitcnt vmcnt(0)' + chr(10) + 's_endpgm' if opt.get('skip_fg') else ''}
    v_and_b32 v16, 31, v0                 ; t
    v_lshrrev_b32 v17, 5, v0              ; h
    v_bfe_u32 v18, v0, 1, 3               ; (t>>1)&7
    s_lshl_b32 s33, s27, 13
    s_add_u32 s33, s33, {XBUF[0]}
    v_lshlrev_b32 v16, 7, v16
    v_add_u32 v16, s33, v16
    """)
    for k in range(4):
        A(f"v_or_b32 v19, {2*k}, v17\nv_xor_b32 v19, v19, v18\nv_lshl_add_u32 v{V_XR+k}, v19, 4, v16")
    A(f"""
    v_bfe_u32 v16, v0, 4, 1               ; m
    v_bfe_u32 v18, v0, 2, 2               ; r
    v_and_b32 v19, 3, v0                  ; c
    v_lshlrev_b32 v20, 13, v16
    v_lshl_add_u32 v20, v17, 11, v20
    v_lshl_add_u32 v20, v18, 8, v20
    v_lshl_add_u32 v20, v19, 3, v20
    v_lshl_or_b32 v21, v16, 2, v18
    s_lshl_b32 s33, s32, 2
    v_xor_b32 v21, s33, v21
    """)
    for j in range(4):
        A(f"v_xor_b32 v19, {j}, v21\nv_lshl_add_u32 v{V_WR+j}, v19, 5, v20")
    A(f"""
    s_lshl_b32 s33, s25, 1
    s_add_u32 s33, s33, s27
    s_mul_i32 s33, s33, 224
    s_lshl_b32 s37, s26, 3
    s_add_u32 s33, s33, s37
    s_lshl_b32 s37, s32, 2
    s_add_u32 s33, s33, s37
    s_lshl_b32 s39, s33, 10
    v_lshlrev_b32 v{V_ST}, 4, v0
    """)
    def reads(n):
        st, ks = n >> 1, n & 1
        b, ks4 = n >> 2, n & 3
        f = FR[n & 1]
        xr = [f"ds_read_b128 {v(f + 4*tt, 4)}, v{V_XR+ks4} offset:{XBUF[b & 1] - XBUF[0] + tt * 4096}" for tt in range(2)]
        wr = [[f"ds_read_b64_tr_b16 {v(f + 8 + 4*j + 2*p, 2)}, v{V_WR+j} offset:{WBUF[st % 3] + ks * 4096 + p * 1024}" for p in range(2)] for j in range(4)]
        return [xr[0]] + wr[0] + [xr[1]] + wr[1] + wr[2] + wr[3]
    def mfmas(n):
        f = FR[n & 1]
        out = []
        for j in range(4):
            for tt in range(2):
                a = ACC + (tt * 4 + j) * 16
                out.append(f"v_mfma_f32_32x32x16_bf16 {v(a,16)}, {v(f+8+4*j,4)}, {v(f+4*tt,4)}, {'0' if n == 0 else v(a, 16)}")
        return out
    A(f"s_waitcnt vmcnt({4 if burst12 else 12})\ns_barrier")
    ST.mark(A)
    for x in reads(0): A(x)
    gsetup = f"""
    s_cmp_ge_u32 s26, 7
    s_cselect_b32 s42, 1, 0               ; half
    s_mul_i32 s43, s42, 7
    s_sub_u32 s43, s26, s43               ; ct
    s_lshl_b32 s50, s25, 1
    s_add_u32 s50, s50, s42               ; rt
    s_mov_b32 s8, s48
    s_mov_b32 s9, s49
    s_mov_b32 s10, {SZ_W if not opt.get('fakeW') else 0}
    s_lshl_b32 s36, s24, 11
    v_lshrrev_b32 v14, 3, v0
    v_bfe_u32 v15, v0, 4, 1
    v_lshlrev_b32 v15, 2, v15
    v_and_b32 v13, 7, v0
    v_xor_b32 v13, v13, v15
    v_lshlrev_b32 v13, 4, v13
    v_mov_b32 v15, 896
    v_mad_u32_u24 v1, v14, v15, v13
    v_lshl_add_u32 v2, v14, 12, v13
    s_lshl_b32 s51, s43, 7
    s_mul_i32 s83, s24, {64*896}
    s_add_u32 s83, s83, s51
    s_add_u32 s82, s83, {28*64*896}
    s_mul_i32 s34, s85, {4*64*896}
    s_add_u32 s34, s34, s83
    v_add_u32 v{V_WD[1]}, {8*896 - 1024}, v1
    v_add_u32 v{V_WD[2]}, {16*896}, v1
    v_add_u32 v{V_WD[3]}, {24*896 - 1024}, v1
    """
    gsetup2 = f"""
    v_bfe_u32 v248, v0, 4, 1              ; c16
    v_lshrrev_b32 v249, 5, v0             ; h
    v_bfe_u32 v250, v0, 2, 2              ; r
    v_and_b32 v251, 3, v0
    v_lshl_add_u32 v15, v249, 2, v250
    v_lshlrev_b32 v15, 7, v15
    v_lshl_add_u32 v15, v251, 3, v15
    v_and_b32 v249, 2, v250
    v_xor_b32 v249, v249, v248
    v_lshl_add_u32 v15, v249, 5, v15      ; tile-0 address inside a 2 KB stage
    s_lshl_b32 s33, s32, 6
    v_xor_b32 v13, s33, v15
    v_add_u32 v13, s36, v13
    v_xor_b32 v14, 64, v13
    v_add_u32 v3, 65536, v13
    v_min_u32 v248, 13, v0
    v_and_b32 v249, 1, v248
    v_lshrrev_b32 v248, 1, v248
    v_lshlrev_b32 v248, 10, v248
    v_lshl_add_u32 v248, v249, 4, v248
    s_lshl_b32 s33, s50, 5
    s_add_u32 s33, s33, {FL_U}
    v_add_u32 v248, s33, v248
    v_mov_b32 v249, 0
    """
    gsetup3 = f"""
    s_mul_i32 s40, s50, {2*112*1024}
    s_lshl_b32 s33, s24, 12
    s_add_u32 s40, s40, s33               ; H soffset of group 0
    s_add_u32 s84, s40, {28*4096}
    s_lshl_b32 s35, s85, 14
    s_add_u32 s35, s35, s40
    s_mul_i32 s41, s27, {112*1024}
    v_add_u32 v5, s41, v{V_ST}            ; block bt=0 -> t-tile wt
    s_xor_b32 s41, s41, {112*1024}
    v_add_u32 v11, s41, v{V_ST}           ; block bt=1 -> the other t-tile
    v_xor_b32 v8, 64, v3
    s_lshl_b32 s33, s27, 6
    v_xor_b32 v9, s33, v15
    s_lshl_b32 s33, s32, 12
    s_add_u32 s33, s33, {ATILE}
    v_add_u32 v9, s33, v9                 ; a^T read address
    """ + (f"""
    s_lshl_b32 s33, s25, 1
    s_add_u32 s33, s33, s27
    s_mul_i32 s33, s33, 28
    s_lshl_b32 s38, s26, 1
    s_add_u32 s33, s33, s38
    s_add_u32 s33, s33, s32
    s_lshl_b32 s33, s33, 8
    s_add_u32 s33, s33, {FL_H}
    v_mov_b32 v10, s33
    s_mul_i32 s33, s50, 28
    s_add_u32 s33, s33, s24
    s_lshl_b32 s33, s33, 8
    s_add_u32 s33, s33, {FL_H}
    s_add_u32 s80, s56, s33
    s_addc_u32 s81, s57, 0
    """ if opt.get('perline') else f"""
    s_lshl_b32 s33, s25, 1                ; own flag (v10): FH[2rb+wr][pi&3][phase][pi>>2], pi = 2cb+wc
    s_add_u32 s33, s33, s27
    s_lshl_b32 s33, s33, 9
    s_lshl_b32 s38, s26, 1
    s_add_u32 s38, s38, s32
    s_and_b32 s37, s38, 3
    s_lshl_b32 s37, s37, 7
    s_add_u32 s33, s33, s37
    s_lshr_b32 s38, s38, 2
    s_lshl_b32 s38, s38, 3
    s_add_u32 s33, s33, s38
    s_add_u32 s33, s33, {FL_H}
    v_mov_b32 v10, s33
    s_lshl_b32 s33, s50, 2                ; flags this wave waits for: FH[rt][w][phase][0..6]
    s_add_u32 s33, s33, s24
    s_lshl_b32 s33, s33, 7
    s_add_u32 s33, s33, {FL_H}
    s_add_u32 s80, s56, s33
    s_addc_u32 s81, s57, 0
    """) + f"""
    v_lshlrev_b32 v7, 4, v0               ; FA[ct] : 64 lanes x 2 flags
    s_lshl_b32 s33, s43, 10
    s_add_u32 s33, s33, {FL_A}
    v_add_u32 v7, s33, v7
    v_and_b32 v4, 31, v0
    """
    VM = Vm(A)
    def jof(n): return (n & 1) + (2 if n >= 14 else 0)
    def ldW(n):
        pre = ''
        if (n & 1) == 0 and n > 0:
            pre = f"s_add_u32 s34, s34, {4*64*896}\ns_cmp_ge_u32 s34, s82\ns_cselect_b32 s34, s83, s34\n"
            if n == 14: pre += f"s_add_u32 s34, s34, {32*896}\ns_add_u32 s82, s82, {32*896}\ns_add_u32 s83, s83, {32*896}\n"
        a, b = (V_WD[0], V_WD[1]) if (n & 1) == 0 else (V_WD[2], V_WD[3])
        return [(pre + f"s_add_u32 m0, s36, {SLOT[slot_of(n)]}\ns_nop 0\nbuffer_load_dwordx4 v{a}, s[8:11], s34 offen lds", ('W', n)),
                (f"buffer_load_dwordx4 v{b}, s[8:11], s34 offen offset:1024 lds", ('W', n))]
    def ldH(n):
        pre = ''
        if (n & 1) == 0 and n > 0:
            pre = f"s_add_u32 s35, s35, {4*4096}\ns_cmp_ge_u32 s35, s84\ns_cselect_b32 s35, s40, s35\n"
        return [(pre + f"buffer_load_dwordx4 {v(HRS[n % HN], 4)}, v5, s[20:23], s35 offen offset:{jof(n) * 1024} {opt.get('hld', '')}", ('H', n)),
                (f"buffer_load_dwordx4 {v(HRS[n % HN] + 4, 4)}, v11, s[20:23], s35 offen offset:{jof(n) * 1024} {opt.get('hld', '')}", ('H', n))]
    def wreg(n): return held[n % NW]
    def greads(n):
        f = wreg(n); o = SLOT[slot_of(n)]
        regs = (3, 8) if o >= 65536 else (13, 14)
        return [f"ds_read_b64_tr_b16 {v(f + 4*bd + 2*p, 2)}, v{regs[bd]} offset:{o % 65536 + p * 1024}" for bd in range(2) for p in range(2)]
    def vwait(*tags, extra=''):
        c = VM.count(*tags)
        if c is not None or extra: A("s_waitcnt " + (f"vmcnt({c}) " if c is not None else '') + extra)
    for n in range(28):
        dm = []
        if n & 1:
            sp = (n + 1) >> 1
            if sp <= 13:
                young = 0
                if sp == 1: young = 8
                else:
                    if sp + 1 <= 13: young += 4
                    if (sp + 1) % 2 == 0 and (sp + 1) // 2 <= 6: young += 4
                    if sp == 13: young += len(VM.q)
                A(f"s_waitcnt vmcnt({young}) lgkmcnt(0)\ns_barrier")
                if opt.get('stage_stamps') and sp % 2 == 0: ST.mark(A)
                if sp + 2 <= 13: dm += stW(sp + 2)
                if sp % 2 == 0 and sp // 2 + 1 <= 6: dm += stX(sp // 2 + 1)
            else:
                A("s_waitcnt lgkmcnt(0)\ns_barrier")
            cut = len(dm)//2 if opt.get('dm_mode', 0) == 0 else min(len(dm), opt.get('dm_mode'))
            pend = dm[cut:]; dm = dm[:cut]
        else:
            A("s_waitcnt lgkmcnt(0)")
            if n > 0: dm = pend
            elif burst12: dm = stX(1) + stW(2)
        rd = reads(n + 1) if n < 27 else []
        ex = [x for m_ in {23: [0, 1], 24: [2, 3], 26: [4, 5], 27: [6, 7, 8]}.get(n, []) for x in ldW(m_)]
        if n == 25: ex = [("buffer_load_dwordx2 v[250:251], v249, s[44:47], 0 offen sc1", 'tag')]
        if n == 27: ex.append(("buffer_load_dwordx4 v[56:59], v248, s[56:59], 0 offen sc1", 'fu'))
        di = 0
        for i, m in enumerate(mfmas(n)):
            A(m)
            for x in rd[2*i:2*i+2]: A(x)
            if n in (23, 25, 27):
                if not opt.get('gs_spread', 0):
                    if i == 1: A({23: gsetup, 25: gsetup2, 27: gsetup3}[n])
                else:
                    if i == 0:
                        gl = [x.strip() for x in {23: gsetup, 25: gsetup2, 27: gsetup3}[n].split('\n') if x.strip()]
                        ng_ = {23: 4, 25: 7, 27: 8}[n]
                    take = -(-len(gl) // max(1, ng_ - i)) if i < ng_ else 0
                    c_ = gl[:take]; gl = gl[take:]
                    while gl and gl[0].startswith(('s_cselect', 's_addc')): c_.append(gl.pop(0))
                    A('\n'.join(c_))
            if i >= opt.get('dm_first', 3) and di < len(dm): A(dm[di]); di += 1
            if ex and i >= ((7 if n == 25 and opt.get('gs_spread', 0) else 4) if n < 27 else 1): VM.issue(*ex.pop(0))
        for x in dm[di:]: A(x)
        for x in ex: VM.issue(*x)
    ST.mark(A)
    k2 = -2.0 * math.sqrt(2.0 / math.pi) * math.log2(math.e)
    C1, C2, ONE = 28, 30, 44
    if 'prio_epi' in opt: A(f"s_setprio {opt['prio_epi']}")
    A(f"""
    v_mov_b32 v{C1}, {f2u(k2)}
    v_mov_b32 v{C1+1}, {f2u(k2)}
    v_mov_b32 v{C2}, {f2u(k2*0.044715)}
    v_mov_b32 v{C2+1}, {f2u(k2*0.044715)}
    v_mov_b32 v{ONE}, 1.0
    v_mov_b32 v{ONE+1}, 1.0
    """)
    def flag(off):
        VM.issue(f"s_mov_b64 exec, 1\nbuffer_store_dwordx2 v[50:51], v10, s[56:59], 0 offen offset:{off} sc1\ns_mov_b64 exec, -1", ('flag', off))
    E1, E2, PER = opt.get('e1', 1), opt.get('e2', 7), opt.get('e_per', 5)
    order = [(tt, j) for j in range(4) for tt in range(2)]
    wq = []; single = opt.get('single', 0)
    for idx, (tt, j) in enumerate(order):
        a = ACC + (tt * 4 + j) * 16
        T = 16 + 16 * (idx & 1)
        O = T + 8
        if idx == E1:
            if opt.get('estamp'): ST.mark(A)
            vwait(('W', 8), 'tag', 'fu')
            if opt.get('estamp'): ST.mark(A)
            for n_ in range(NS):
                for x in greads(n_): A(x)
            A(f"v_readfirstlane_b32 s96, v250\nv_readfirstlane_b32 s97, v251\ns_nop 3\ns_cmp_lg_u32 s96, 0\ns_cbranch_scc1 FG_havetag")
            get_nonce(A, 'FG', 60, 44, 96)
            A("FG_havetag:\nv_mov_b32 v50, s96\nv_mov_b32 v51, s97")
            if not opt.get('skip_s'): poll_flags4(A, 'FGU', 248, 56, 56, 96, 99, first_issued=True, sleep=8)
            A(f"v_lshlrev_b32 v249, 5, v4\ns_lshl_b32 s33, s50, 1\ns_add_u32 s33, s33, s27\ns_lshl_b32 s33, s33, 10")
            srd(A, 16, 6, WS_GP_SZ, WS_GP)
            VM.issue("buffer_load_dwordx4 v[56:59], v249, s[16:19], s33 offen", 'gp')
            VM.issue("buffer_load_dwordx3 v[60:62], v249, s[16:19], s33 offen offset:16", 'gp')
        if idx == E1 + 1:
            A("s_waitcnt lgkmcnt(0)")
            for n_ in range(NS): release(n_)
            wq = [x for n_ in range(NS, 2 * NS) for x in ldW(n_)]
        if idx == E2:
            assert not wq
            if opt.get('estamp'): ST.mark(A)
            if single: vwait(('W', NW - 1))
            else: vwait(('st', 3), ('W', NW - 1))
            if opt.get('estamp'): ST.mark(A)
            if not single: flag(0)
            for n_ in range(NS, NW):
                for x in greads(n_): A(x)
        for _ in range(PER):
            if wq: VM.issue(*wq.pop(0))
        if usepk:
            for p in range(4): A(f"v_pk_mul_f32 {v(T+2*p,2)}, {v(a+2*p,2)}, {v(a+2*p,2)}")
            for p in range(4): A(f"v_pk_fma_f32 {v(T+2*p,2)}, {v(T+2*p,2)}, {v(C2,2)}, {v(C1,2)}")
            for p in range(4): A(f"v_pk_mul_f32 {v(T+2*p,2)}, {v(T+2*p,2)}, {v(a+2*p,2)}")
            for p in range(8): A(f"v_exp_f32 v{T+p}, v{T+p}")
            for p in range(4): A(f"v_pk_mul_f32 {v(a+2*p,2)}, {v(a+2*p,2)}, {v(a+8+2*p,2)}")
            for p in range(4): A(f"v_pk_add_f32 {v(T+2*p,2)}, {v(T+2*p,2)}, {v(ONE,2)}")
            for p in range(8): A(f"v_rcp_f32 v{T+p}, v{T+p}")
            A("s_nop 0")
            for p in range(4): A(f"v_pk_mul_f32 {v(a+2*p,2)}, {v(a+2*p,2)}, {v(T+2*p,2)}")
        else:
            for p in range(8): A(f"v_mul_f32 v{T+p}, v{a+p}, v{a+p}")
            for p in range(8): A(f"v_fmaak_f32 v{T+p}, v{C2}, v{T+p}, {f2u(k2)}" if opt.get('fmaak', 0) else f"v_fma_f32 v{T+p}, v{T+p}, v{C2}, v{C1}")
            for p in range(8): A(f"v_mul_f32 v{T+p}, v{T+p}, v{a+p}")
            for p in range(8): A(f"v_exp_f32 v{T+p}, v{T+p}")
            for p in range(8): A(f"v_mul_f32 v{a+p}, v{a+p}, v{a+8+p}")
            for p in range(8): A(f"v_add_f32 v{T+p}, 1.0, v{T+p}")
            for p in range(8): A(f"v_rcp_f32 v{T+p}, v{T+p}")
            A("s_nop 0")
            for p in range(8): A(f"v_mul_f32 v{a+p}, v{a+p}, v{T+p}")
        for p in range(4): A(f"v_cvt_pk_bf16_f32 v{O+p}, v{a+2*p}, v{a+2*p+1}")
        VM.issue(f"s_add_u32 s38, s39, {(tt * 112 + j) * 1024}\nbuffer_store_dwordx4 {v(O,4)}, v{V_ST}, s[20:23], s38 offen {opt.get('hsc', 'sc1')}", ('st', idx))
    ST.mark(A)
    if opt.get('f_only'):
        ST.finish(A, tsbase); A("s_endpgm"); return
    A(f"""
    s_setprio {opt.get('prio_g', 0)}
    v_add_f32 v56, v56, v57
    v_add_f32 v58, v58, v59
    v_add_f32 v60, v60, v61
    v_add_f32 v56, v56, v58
    v_add_f32 v60, v60, v62
    v_add_f32 v56, v56, v60
    v_cvt_pk_bf16_f32 v56, v56, v56
    v_lshlrev_b32 v56, 16, v56
    v_mul_f32 v56, {f2u(-math.log2(math.e))}, v56
    v_exp_f32 v6, v56
    s_waitcnt lgkmcnt(0)
    {'' if single else 's_load_dwordx16 s[64:79], s[80:81], 0 glc'}
    v_add_f32 v6, 1.0, v6
    v_rcp_f32 v6, v6
    """)
    for n_ in range(NS, NW): release(n_)
    srd(A, 12, 6, WS_AT_SZ, WS_AT)
    A("v_cvt_pk_bf16_f32 v6, v6, v6\nv_lshlrev_b32 v6, 16, v6")
    if single:
        for n_ in range(2 * NS, 2 * NS + len(freeslots)):
            for x in ldW(n_): VM.issue(*x)
        vwait(('st', 7))
        flag(0)
        if opt.get('ackwait'): vwait(('flag', 0))
    ST.mark(A)
    spoll(A, 'FGH', 0, 7, 96, 99, first_issued=not single, sleep=opt.get('sleep_h', 0), kp=1024 if opt.get('perline') else 8)
    ST.mark(A)
    for n in range(HN - 1):
        for x in ldH(n): VM.issue(*x)
    atdma = f"""s_lshl_b32 s33, s43, 3
            s_add_u32 s33, s33, s24
            s_lshl_b32 s33, s33, 15
            s_lshl_b32 s38, s50, 7
            s_add_u32 s33, s33, s38
            s_lshl_b32 s39, s24, 10
            s_add_u32 m0, s39, {ATILE}
            s_add_u32 s38, s33, {32*4096}
            buffer_load_dwordx4 v2, s[12:15], s33 offen lds
            s_add_u32 m0, s39, {ATILE + 4096}
            s_nop 0
            buffer_load_dwordx4 v2, s[12:15], s38 offen lds"""
    RD = 2
    PB_ISSUE = opt.get('pb_issue', 7); PB_CHECK = 14 - (HN - 1)
    LP = 28 - HN
    bm = opt.get('bm', 0)
    RS = [4, 5, 6, 7, 0, 1]
    for n in range(28):
        if bm and n == 26:
            vwait(('H', 26), extra="lgkmcnt(4)")
            continue
        vwait(('H', n), ('W', n + RD), extra="lgkmcnt(4)" if NW <= n < 27 else "lgkmcnt(0)" if n == 27 else '')
        if n == 0 and not single: VM.count(('st', 7)); flag(64)
        if n == PB_CHECK and not single:
            if opt.get('bstamp'): ST.mark(A)
            spoll(A, 'FGB', 64, 7, 96, 99, first_issued=True, sleep=opt.get('sleep_h', 0))
            if opt.get('bstamp'): ST.mark(A)
        if n == 27:
            vwait('poll')
            A(f"""
            v_cmp_ne_u64 vcc, s[96:97], v[248:249]
            v_cmp_ne_u64 s[100:101], s[96:97], v[250:251]
            s_nop 1
            s_or_b64 vcc, vcc, s[100:101]
            s_cselect_b32 s98, {0 if opt.get('skip_s') else 1}, 0
            s_cmp_lg_u32 s98, 0
            s_cbranch_scc1 FG_atlater
            """)
            A(atdma)
            A("FG_atlater:")
        rd = greads(n + RD) if NW <= n + RD < 28 else []
        ld = ldH(n + HN - 1) if n + HN - 1 < 28 else []
        if n >= NW: release(n)
        lw = []
        m_ = max(slots) + 1
        if m_ < 28 and freeslots and n >= opt.get('w_from', 0): lw = ldW(m_)
        f = wreg(n)
        ldq = ld + lw
        bi = 0
        if bm and n == 27:
            A(f"v_add_u32 v13, s36, v{V_ST}")
            wr_ = lambda b: [f"ds_write_b128 v13, {v(GB[b] + 4*k, 4)} offset:{SLOT[RS[2*(b-1) + (k >> 1)]] + (k & 1)*1024}" for k in range(4)]
            for b in (3, 2, 1, 0):
                for m_ in (26, 27):
                    A(f"v_mfma_f32_32x32x16_bf16 {v(GB[b],16)}, {v(wreg(m_)+4*(b>>1),4)}, {v(HRS[m_%HN]+4*(b&1),4)}, {v(GB[b],16)}")
                if b == 1:
                    A("s_nop 7")
                    for x in wr_(3): A(x)
                if b == 0:
                    A("s_nop 3")
                    for x in wr_(2): A(x)
            continue
        for bd in range(2):
            for bt in range(2):
                a = GB[bd * 2 + bt]
                A(f"v_mfma_f32_32x32x16_bf16 {v(a,16)}, {v(f+4*bd,4)}, {v(HRS[n%HN]+4*bt,4)}, {'0' if n == 0 else v(a,16)}")
                if bi < 2:
                    for x in rd[2*bi:2*bi+2]: A(x)
                if bi < len(ldq): VM.issue(*ldq[bi])
                bi += 1
        if n == PB_ISSUE and not single: spoll_issue(A, 64)
        if n == LP: VM.issue("buffer_load_dwordx4 v[248:251], v7, s[56:59], 0 offen sc1", 'poll')
    ST.mark(A)
    A(f"""
    v_add_u32 v13, s36, v{V_ST}
    v_mov_b32 v11, 896
    v_lshrrev_b32 v5, 5, v0
    v_lshlrev_b32 v5, 4, v5
    v_mad_u32_u24 v11, v4, v11, v5
    v_xor_b32 v14, 2048, v13
    v_xor_b32 v15, 4096, v13
    v_xor_b32 v10, 6144, v13
    s_nop 3
    """)
    for b in range(1, 2 if bm else 4):
        for k in range(4):
            A(f"ds_write_b128 v13, {v(GB[b] + 4*k, 4)} offset:{SLOT[RS[2*(b-1) + (k >> 1)]] + (k & 1)*1024}")
    A("s_cmp_eq_u32 s98, 0\ns_cbranch_scc1 FG_atdone")
    poll_flags4(A, 'FGA', 7, 248, 56, 96, 99, sleep=opt.get('sleep_a', 4))
    A(atdma)
    A(f"""
FG_atdone:
    s_lshl_b32 s33, s50, 1
    s_add_u32 s33, s33, s27
    s_mul_i32 s33, s33, {32*896}
    s_lshl_b32 s38, s43, 7
    s_add_u32 s33, s33, s38
    s_lshl_b32 s38, s32, 6
    s_add_u32 s33, s33, s38
    s_mov_b32 s39, 0xffff0000
    """)
    srd(A, 20, 52, SZ_U)
    AT_, RB, TM, PK = 80, 96, 144, 160
    G0 = GB[0]
    A("s_waitcnt vmcnt(0) lgkmcnt(0)\ns_barrier")
    for j in range(4):
        A(f"ds_read_b64_tr_b16 {v(AT_ + 2*j, 2)}, v9 offset:{j*1024}")
    for b in range(3):
        for k in range(4):
            A(f"ds_read_b128 {v(RB + 16*b + 4*k, 4)}, v{[14, 15, 10][b]} offset:{SLOT[RS[2*b + (k >> 1)]] + (k & 1)*1024}")
    A("s_waitcnt lgkmcnt(12)")
    for k in range(16):
        src = AT_ + k // 2
        if k & 1: A(f"v_and_b32 v{TM+k}, s39, v{src}")
        else: A(f"v_lshlrev_b32 v{TM+k}, 16, v{src}")
    if opt.get('endpk', 1):
        A("v_mov_b32 v7, v6")
        for b in range(3):
            A(f"s_waitcnt lgkmcnt({4*(2-b)})")
            for k in range(0, 16, 2): A(f"v_pk_add_f32 {v(G0+k,2)}, {v(G0+k,2)}, {v(RB+16*b+k,2)}")
        for k in range(0, 16, 2): A(f"v_pk_add_f32 {v(TM+k,2)}, {v(TM+k,2)}, {v(G0+k,2)} neg_lo:[0,1] neg_hi:[0,1]")
        for k in range(0, 16, 2): A(f"v_pk_fma_f32 {v(G0+k,2)}, v[6:7], {v(TM+k,2)}, {v(G0+k,2)}")
    else:
        for b in range(3):
            A(f"s_waitcnt lgkmcnt({4*(2-b)})")
            for k in range(16): A(f"v_add_f32 v{G0+k}, v{G0+k}, v{RB+16*b+k}")
        for k in range(16): A(f"v_sub_f32 v{TM+k}, v{TM+k}, v{G0+k}")
        for k in range(16): A(f"v_fmac_f32 v{G0+k}, v6, v{TM+k}")
    for k in range(8): A(f"v_cvt_pk_bf16_f32 v{PK+k}, v{G0+2*k}, v{G0+1+2*k}")
    A("s_nop 1")
    for jj in range(2):
        A(f"v_permlane32_swap_b32 v{PK+4*jj}, v{PK+2+4*jj}\nv_permlane32_swap_b32 v{PK+1+4*jj}, v{PK+3+4*jj}")
    for jj in range(2):
        A(f"buffer_store_dwordx4 {v(PK+4*jj,4)}, v11, s[20:23], s33 offen offset:{32*jj} {opt.get('outsc', '')}")
    ST.finish(A, tsbase)
    A("s_endpgm")
```

```python
from common2 import *
from sched import schedule
import math
CP = 4160; CH = 4 * CP
RED = 2 * CH
CMP = RED + 16384; CMPSZ = 41 * 80
UB = [CMP + 4 * CMPSZ, CMP + 4 * CMPSZ + 4608]
L2E = math.log2(math.e)
assert UB[1] + 4608 <= 81920

class Lds:
    def __init__(self, A): self.A = A; self.q = []
    def issue(self, ins, tag): self.A(ins); self.q.append(tag)
    def need(self, *tags):
        idx = max((i for i, t in enumerate(self.q) if t in tags), default=-1)
        if idx < 0: return
        n = len(self.q) - 1 - idx
        self.A(f"s_waitcnt lgkmcnt({min(n, 15)})")
        self.q = self.q[idx + 1:] if n <= 15 else self.q[len(self.q) - 15:]

def role_s(A, ST, opt, tsbase=0):
    if opt.get('skip_s') and not opt.get('s_touchonly'): A('s_endpgm')
    P, GA, DA, GW, XG, TR = 32, 16, 28, 48, 16, 244
    A(f"""
    s_load_dwordx8 s[40:47], s[0:1], {KA['Are']}
    s_load_dwordx8 s[48:55], s[0:1], {KA['Cre']}
    s_load_dwordx2 s[4:5], s[0:1], {KA['u']}
    s_load_dwordx4 s[16:19], s[0:1], {KA['Wd']}
    s_load_dwordx4 s[56:59], s[0:1], {KA['dbg']}
    s_setprio {opt.get('prio_s0', 3)}
    v_lshrrev_b32 v13, 6, v0
    v_lshlrev_b32 v1, 2, v0
    v_readfirstlane_b32 s24, v13
    s_lshl_b32 s33, s25, 10
    s_lshl_b32 s34, s25, 2
    v_and_b32 v12, 63, v0                 ; lane
    v_lshrrev_b32 v14, 3, v12
    v_bfe_u32 v15, v12, 4, 1
    v_lshlrev_b32 v15, 1, v15
    v_and_b32 v3, 7, v12
    v_xor_b32 v3, v3, v15
    v_lshlrev_b32 v3, 4, v3
    v_mov_b32 v15, 896
    v_mad_u32_u24 v3, v14, v15, v3
    v_xor_b32 v4, 64, v3                  ; rows 8-15
    s_lshl_b32 s38, s26, 2
    s_add_u32 s38, s38, s24
    s_mul_i32 s38, s38, {16*896}
    s_lshl_b32 s39, s27, 7
    s_add_u32 s31, s38, s39               ; X soffset
    s_lshr_b32 s35, s24, 1
    s_mul_i32 s35, s35, {UB[1]-UB[0]}
    s_and_b32 s38, s24, 1
    s_lshl_b32 s38, s38, 11
    s_add_u32 s35, s35, s38
    s_add_u32 s35, s35, {UB[0]+512}
    v_and_b32 v7, 3, v12
    v_lshlrev_b32 v6, 5, v7
    v_mov_b32 v29, 0
    s_mov_b32 s10, {SZ_P}
    s_mov_b32 s11, 0x00020000
    s_mov_b32 s14, 896
    s_mov_b32 s15, 0x00020000
    s_waitcnt lgkmcnt(0)
    """)
    ST.mark(A)
    A(f"s_mov_b32 s12, s52\ns_mov_b32 s13, s53\nbuffer_load_dword v26, v29, s[12:15], s34 offen")
    for k in range(6):
        A(f"s_mov_b32 s8, s{40+2*k}\ns_mov_b32 s9, s{41+2*k}\nbuffer_load_dword v{P+6+k}, v1, s[8:11], s33 offen")
    A(f"s_setprio {opt.get('prio_s1', opt.get('prio_s', 1))}")
    srd(A, 8, 4, SZ_U); srd(A, 60, 56, 256)
    A("s_mov_b32 s52, s54\ns_mov_b32 s53, s55\ns_mov_b32 s54, s18\ns_mov_b32 s55, s19\ns_mov_b32 s42, 896\ns_mov_b32 s43, 0x00020000\ns_mov_b32 s45, s31\ns_mov_b32 s46, s39\nv_mov_b32 v25, v6")
    late = f"""
    s_mov_b32 s40, s52
    s_mov_b32 s41, s53
    buffer_load_dword v27, v29, s[40:43], s34 offen
    s_mov_b32 m0, s35
    s_add_u32 s44, s45, {8*896}
    buffer_load_dwordx4 v3, s[8:11], s45 offen lds
    s_add_u32 m0, s35, 1024
    s_mov_b32 s40, s54
    buffer_load_dwordx4 v4, s[8:11], s44 offen lds
    s_mov_b32 s41, s55
    buffer_load_dwordx2 v[30:31], v29, s[60:63], 0 offen sc1
    buffer_load_dwordx4 {v(GW,4)}, v25, s[40:43], s46 offen
    buffer_load_dwordx4 {v(GW+4,4)}, v25, s[40:43], s46 offen offset:16
    """
    LATE = opt.get('late_at', 0.07)
    if not LATE: A(late)
    A(f"""
    s_setprio {opt.get('prio_s', 1)}
    s_mov_b32 s6, s58
    s_mov_b32 s7, s59
    """)
    srd(A, 48, 16, SZ_W)
    srd(A, 12, 6, WS_U2_SZ, WS_U2); srd(A, 16, 6, WS_AT_SZ, WS_AT); srd(A, 20, 6, WS_GP_SZ, WS_GP); srd(A, 56, 6, WS_FL_SZ, WS_FL)
    ST.mark(A)
    A(f"""
    s_lshl_b32 s85, s87, 2
    s_add_u32 s85, s85, s24
    s_lshl_b32 s85, s85, 13
    v_lshlrev_b32 v2, 7, v12
    v_mov_b32 v6, {CMP + 64}
    ds_write_b32 v6, v29
    ds_write_b32 v6, v29 offset:{CMPSZ}
    ds_write_b32 v6, v29 offset:{2*CMPSZ}
    ds_write_b32 v6, v29 offset:{3*CMPSZ}
    v_and_b32 v6, 127, v0
    v_lshlrev_b32 v6, 2, v6
    v_lshrrev_b32 v5, 7, v0
    v_mov_b32 v14, {UB[1]-UB[0]}
    v_mad_u32_u24 v6, v5, v14, v6
    v_add_u32 v6, {UB[0]}, v6
    ds_write_b32 v6, v29
    v_and_b32 v6, 15, v12
    v_lshrrev_b32 v5, 4, v12              ; g
    v_mul_u32_u24 v8, 320, v5
    v_lshl_add_u32 v8, v6, 2, v8
    s_mul_i32 s39, s24, {CMPSZ}
    s_add_u32 s39, s39, {CMP}
    v_add_u32 v{DA}, s39, v8
    v_bfe_u32 v6, v12, 2, 2
    v_and_b32 v8, 1, v5                   ; tb
    v_lshl_add_u32 v9, v8, 3, v6
    v_lshlrev_b32 v9, 7, v9
    v_lshl_add_u32 v9, v7, 3, v9
    v_add_u32 v9, s35, v9
    v_lshrrev_b32 v10, 1, v6
    v_lshl_or_b32 v10, v8, 1, v10
    v_lshrrev_b32 v11, 1, v5
    v_xor_b32 v10, v10, v11
    v_lshl_add_u32 v13, v10, 5, v9
    v_xor_b32 v10, 2, v10
    v_lshl_add_u32 v14, v10, 5, v9
    v_lshl_add_u32 v10, v11, 2, v6
    v_lshlrev_b32 v10, 14, v10
    v_lshl_add_u32 v10, v8, 6, v10
    v_lshl_add_u32 v15, v7, 4, v10
    v_lshrrev_b32 v5, 2, v12
    v_bfe_u32 v6, v5, 1, 1
    v_bfe_u32 v8, v5, 3, 1
    v_lshl_or_b32 v6, v8, 1, v6
    v_xor_b32 v6, v6, v7
    v_lshlrev_b32 v6, 5, v6
    v_lshl_add_u32 v6, v5, 7, v6
    v_add_u32 v6, s35, v6
    v_lshlrev_b32 v5, 5, v5
    s_lshl_b32 s38, s27, 18
    s_lshl_b32 s39, s26, 2
    s_add_u32 s39, s39, s24
    s_lshl_b32 s32, s39, 7
    s_add_u32 s30, s38, s32               ; U2 soffset
    s_lshl_b32 s39, s39, 9
    s_lshl_b32 s32, s27, 2
    s_add_u32 s31, s39, s32
    s_add_u32 s32, s30, {8*16384}
    """)
    ntouch = [0]
    def vwait0(lab):
        if ntouch[0]: A(f"s_cmp_ge_u32 s87, 4\ns_cbranch_scc1 {lab}_a\ns_waitcnt vmcnt({ntouch[0]})\ns_branch {lab}_b\n{lab}_a:\ns_waitcnt vmcnt(0)\n{lab}_b:")
        else: A("s_waitcnt vmcnt(0)")
    def tpart():
        vwait0('S_w1')
        A(f"""
        ds_read_b64_tr_b16 {v(TR,2)}, v13
        ds_read_b64_tr_b16 {v(TR+2,2)}, v13 offset:512
        ds_read_b64_tr_b16 {v(TR+4,2)}, v14
        ds_read_b64_tr_b16 {v(TR+6,2)}, v14 offset:512
        ds_read_b128 {v(XG,4)}, v6
        ds_read_b128 {v(XG+4,4)}, v6 offset:16
        v_readfirstlane_b32 s96, v30
        v_readfirstlane_b32 s97, v31
        v_readfirstlane_b32 s37, v27
        v_mov_b32 v8, 0
        s_waitcnt lgkmcnt(2)
        buffer_store_dwordx4 {v(TR,4)}, v15, s[12:15], s30 offen sc1
        buffer_store_dwordx4 {v(TR+4,4)}, v15, s[12:15], s32 offen sc1
        s_waitcnt lgkmcnt(0)
        """)
        for i in range(8): A(f"v_dot2_f32_bf16 v8, v{XG+i}, v{GW+i}, v8")
        A(f"""
        s_nop 2
        v_add_f32_dpp v8, v8, v8 quad_perm:[1,0,3,2] row_mask:0xf bank_mask:0xf
        s_nop 1
        v_add_f32_dpp v8, v8, v8 quad_perm:[2,3,0,1] row_mask:0xf bank_mask:0xf
        s_mov_b32 exec_lo, 0x11111111
        s_mov_b32 exec_hi, 0x11111111
        buffer_store_dword v8, v5, s[20:23], s31 offen sc1
        s_mov_b64 exec, -1
        """)
        ntouch[0] = 0
    B = Asm()
    tmp = [60, 61, 62, 63]
    cnt = [0]; neg = {}
    def cmul(z, x, y):
        cnt[0] += 1
        if y in neg:
            B(f"v_mul_f32 v{z}, v{x}, v{y}\nv_mul_f32 v{z+1}, v{x}, v{y+1}\nv_fmac_f32 v{z}, v{x+1}, v{neg[y]}\nv_fmac_f32 v{z+1}, v{x+1}, v{y}")
        elif x == y:
            t = tmp[cnt[0] & 3]
            B(f"v_mul_f32 v{z}, v{x}, v{x}\nv_add_f32 v{t}, v{x}, v{x}\nv_fma_f32 v{z}, -v{x+1}, v{x+1}, v{z}\nv_mul_f32 v{z+1}, v{t}, v{x+1}")
        else:
            B(f"v_mul_f32 v{z}, v{x}, v{y}\nv_mul_f32 v{z+1}, v{x}, v{y+1}\nv_fma_f32 v{z}, -v{x+1}, v{y+1}, v{z}\nv_fmac_f32 v{z+1}, v{x+1}, v{y}")
    PBK, PB, OUT, BF, KD = [152, 168], 184, 200, 216, 232
    bank = [0]
    use16 = opt.get('f16', 1)
    def put(row, z, ng=False):
        B(f"v_cvt_pk_{'f16' if use16 else 'bf16'}_f32 v{PBK[bank[0]] + row}, v{z}, {'-' if ng else ''}v{z+1}")
    def hmul(row, x, y, conj=False):
        d = PBK[bank[0]] + row
        B(f"v_pk_mul_f16 v{d}, v{x}, v{y} op_sel:[0,0] op_sel_hi:[1,0]")
        B(f"v_pk_fma_f16 v{d}, v{x}, v{y}, v{d} op_sel:[1,1,0] op_sel_hi:[0,1,1] {'neg_hi' if conj else 'neg_lo'}:[1,0,0]")
    def transpose(dst, nrows=16):
        PA = PBK[bank[0]]; bank[0] ^= 1
        cur = [PA + i for i in range(16)]
        for d, mask in ((8, 0x00ff00ff), (4, 0x0f0f0f0f), (2, 0x33333333), (1, 0x55555555)):
            if d == 1: new = [dst + i for i in range(16)]
            else: new = [r for r in list(range(PA, PA + 16)) + list(range(PB, PB + 16)) if r not in cur][:16]
            cx = {8: 'row_ror:8', 4: 'row_ror:4', 2: 'quad_perm:[2,3,0,1]', 1: 'quad_perm:[1,0,3,2]'}[d]
            cy = {8: 'row_ror:8', 4: 'row_ror:12', 2: 'quad_perm:[2,3,0,1]', 1: 'quad_perm:[1,0,3,2]'}[d]
            B(f"s_mov_b32 vcc_lo, {mask:#x}\ns_mov_b32 vcc_hi, {mask:#x}")
            lo = [i for i in range(16) if not i & d]
            for i in lo:
                if d == 8 and i + 8 >= nrows: new[i] = cur[i]
                else: B(f"v_cndmask_b32_dpp v{new[i]}, v{cur[i+d]}, v{cur[i]}, vcc {cx} row_mask:0xf bank_mask:0xf")
            B("s_not_b64 vcc, vcc")
            for i in lo:
                if d == 8 and i + 8 >= nrows: B(f"v_mov_b32_dpp v{new[i+d]}, v{cur[i]} {cy} row_mask:0xf bank_mask:0xf")
                else: B(f"v_cndmask_b32_dpp v{new[i+d]}, v{cur[i]}, v{cur[i+d]}, vcc {cy} row_mask:0xf bank_mask:0xf")
            cur = new
    def kmfma(t, c):
        for ks in range(4):
            B(f"v_mfma_f32_16x16x32_{'f16' if use16 else 'bf16'} {v(KD+4*t,4)}, {v(OUT+4*ks,4)}, {v(BF+4*ks,4)}, {'0' if ks == 0 and c == 0 else v(KD+4*t,4)}")
    def direct(z, l, ra, rc, t, wantneg=True):
        if l == 1: B(f"v_exp_f32 v{t}, v{ra}\nv_rndne_f32 v{t+1}, v{rc}\nv_sub_f32 v{t+1}, v{rc}, v{t+1}")
        else: B(f"v_mul_f32 v{t}, {f2u(float(l))}, v{ra}\nv_mul_f32 v{z}, {f2u(float(l))}, v{rc}\nv_exp_f32 v{t}, v{t}\nv_rndne_f32 v{t+1}, v{z}\nv_sub_f32 v{t+1}, v{z}, v{t+1}")
        B(f"v_cos_f32 v{z}, v{t+1}\nv_sin_f32 v{z+1}, v{t+1}\nv_mul_f32 v{z}, v{z}, v{t}\nv_mul_f32 v{z+1}, v{z+1}, v{t}")
        if wantneg: B(f"v_sub_f32 v{neg[z]}, 0, v{z+1}")
    rowof = {}
    for r in range(8): rowof[r] = r; rowof[128 + r] = 8 + r
    for r in range(4): rowof[256 + 2*r] = r; rowof[384 + 2*r] = 4 + r
    for k, l in enumerate([512, 516, 640, 644, 768, 772, 896, 900]): rowof[l] = 8 + k
    for r in range(9): rowof[1024 + 128*r] = r
    reg = {}; nxt = [70]
    def R(l):
        if l not in reg: reg[l] = nxt[0]; nxt[0] += 2
        return reg[l]
    for l, n in (((32, 47), (128, 59)) if use16 else ((8, 47), (1, 58), (128, 59))): neg[R(l)] = n
    dt, ra, rc = 44, 45, 46
    def tables(c):
        p = P
        for k in range(6): B(f"v_and_b32 v{p+k}, 0xffff0000, v{p+6+k}" if c else f"v_lshlrev_b32 v{p+k}, 16, v{p+6+k}")
        for k in range(4): B(f"v_mul_f32 v{p+k}, v{dt}, v{p+k}")
        B(f"v_mul_f32 v{ra}, {f2u(L2E)}, v{p}\nv_mul_f32 v{rc}, {f2u(1/(2*math.pi))}, v{p+1}")
        W = 68
        cmul(W, p + 4, p + 2)
        direct(R(8), 8, ra, rc, 60); direct(R(1), 1, ra, rc, 62); direct(R(128), 128, ra, rc, 64)
        F = [W, 56]
        put(0, W, True)
        e0 = [(l, l - 1, 1) for l in range(2, 8)] + [(128 + l, l, 128) for l in range(1, 8)]
        for fi in range(1, 16):
            cmul(F[fi & 1], F[(fi - 1) & 1], R(8)); put(fi, F[fi & 1], True)
        transpose(BF)
        for z, x, y in e0: cmul(R(z), R(x), R(y))
        B(f"v_mov_b32 v{PBK[bank[0]]}, 0x3f80")
        for l in list(range(1, 8)) + list(range(128, 136)): put(rowof[l], R(l))
        transpose(OUT)
        kmfma(0, c)
        s1 = [(256 + 2*l, 128 + l, 128 + l) for l in range(4)] + [(384 + l, 256 + l, 128) for l in (0, 2, 4, 6)]
        s1 += [(512, 256, 256), (516, 258, 258), (768, 384, 384), (772, 386, 386), (640, 512, 128), (644, 516, 128), (896, 768, 128), (900, 772, 128)]
        for z, x, y in s1: cmul(R(z), R(x), R(y)); put(rowof[z], R(z))
        transpose(OUT)
        kmfma(1, c)
        s2 = [(1024, 512, 512), (1280, 640, 640), (1536, 768, 768), (1792, 896, 896), (1152, 1024, 128), (1408, 1280, 128), (1664, 1536, 128), (1920, 1792, 128), (2048, 1024, 1024)]
        for z, x, y in s2: cmul(R(z), R(x), R(y)); put(rowof[z], R(z))
        transpose(OUT, 9)
        kmfma(2, c)
    HP = {}; hnx = [120]
    def Hreg(l):
        if l not in HP: HP[l] = hnx[0]; hnx[0] += 1
        return HP[l]
    WS_ = [140, 142]
    AC = [(144, 145), (146, 147)]
    def tables16(c):
        ra, rc = AC[c]
        row = lambda r: PBK[bank[0]] + r
        keep = lambda l: B(f"v_cvt_pk_f16_f32 v{Hreg(l)}, v{R(l)}, v{R(l)+1}")
        direct(R(8), 8, ra, rc, 60, False); direct(R(1), 1, ra, rc, 62, False); direct(R(128), 128, ra, rc, 64, True)
        cmul(R(16), R(8), R(8)); cmul(R(32), R(16), R(16)); cmul(R(24), R(16), R(8))
        B(f"v_sub_f32 v{neg[R(32)]}, 0, v{R(32)+1}")
        for l in (8, 16, 24): keep(l)
        F = [WS_[c], 56, 68, 56]
        for a_ in range(4):
            if a_: cmul(F[a_], F[a_-1], R(32))
            put(4 * a_, F[a_], True)
            for b_ in range(1, 4): hmul(4 * a_ + b_, row(4 * a_), Hreg(8 * b_), True)
        transpose(BF)
        cmul(R(2), R(1), R(1)); cmul(R(3), R(2), R(1)); cmul(R(4), R(2), R(2)); cmul(R(6), R(3), R(3)); cmul(R(132), R(128), R(4))
        B(f"v_mov_b32 v{row(0)}, 0x3c00")
        for l in (1, 2, 3, 4, 6, 128, 132): put(rowof[l], R(l))
        for z, x, y in ((5, 4, 1), (7, 4, 3), (129, 128, 1), (130, 128, 2), (131, 128, 3), (133, 132, 1), (134, 132, 2), (135, 132, 3)):
            hmul(rowof[z], row(rowof[x]), row(rowof[y]))
        transpose(OUT)
        kmfma(0, c)
        for l in (2, 4, 6): keep(l)
        for z, x, y in ((256, 128, 128), (384, 256, 128), (512, 256, 256), (640, 512, 128), (768, 384, 384), (896, 768, 128)):
            cmul(R(z), R(x), R(y)); put(rowof[z], R(z))
        for z, x, y in ((258, 256, 2), (260, 256, 4), (262, 256, 6), (386, 384, 2), (388, 384, 4), (390, 384, 6), (516, 512, 4), (644, 640, 4), (772, 768, 4), (900, 896, 4)):
            hmul(rowof[z], row(rowof[x]), Hreg(y))
        transpose(OUT)
        kmfma(1, c)
        cmul(R(1024), R(512), R(512)); put(0, R(1024))
        for r in range(1, 8): keep(128 * r); hmul(r, row(0), Hreg(128 * r))
        cmul(R(2048), R(1024), R(1024)); put(8, R(2048))
        transpose(OUT, 9)
        kmfma(2, c)
    def setup16():
        p = P
        for c in range(2):
            ra, rc = AC[c]
            for k in range(6): A(f"v_and_b32 v{p+k}, 0xffff0000, v{p+6+k}" if c else f"v_lshlrev_b32 v{p+k}, 16, v{p+6+k}")
            for k in range(4): A(f"v_mul_f32 v{p+k}, v{dt}, v{p+k}")
            w = WS_[c]
            A(f"v_mul_f32 v{ra}, {f2u(L2E)}, v{p}\nv_mul_f32 v{rc}, {f2u(1/(2*math.pi))}, v{p+1}")
            A(f"v_mul_f32 v{w}, v{p+4}, v{p+2}\nv_mul_f32 v{w+1}, v{p+4}, v{p+3}\nv_fma_f32 v{w}, -v{p+5}, v{p+3}, v{w}\nv_fmac_f32 v{w+1}, v{p+5}, v{p+2}")
        A(f"v_max3_f32 v61, v{AC[0][0]}, v{AC[1][0]}, 0\nv_max3_f32 v60, |v{WS_[0]}|, |v{WS_[0]+1}|, |v{WS_[1]}|\nv_max_f32 v60, |v{WS_[1]+1}|, v60\ns_nop 0")
        for d in (1, 2, 4, 8):
            A(f"v_max_f32_dpp v61, v61, v61 row_ror:{d} row_mask:0xf bank_mask:0xf\nv_max_f32_dpp v60, v60, v60 row_ror:{d} row_mask:0xf bank_mask:0xf\ns_nop 0")
        for k, l in enumerate((0, 16, 32, 48)): A(f"v_readlane_b32 s{64+k}, v61, {l}\nv_readlane_b32 s{68+k}, v60, {l}")
        A(f"""
        s_max_u32 s64, s64, s65
        s_max_u32 s66, s66, s67
        s_max_u32 s47, s64, s66
        s_max_u32 s68, s68, s69
        s_max_u32 s70, s70, s71
        s_max_u32 s68, s68, s70
        s_lshr_b32 s68, s68, 23
        s_max_u32 s68, s68, 20
        s_min_u32 s68, s68, 240
        s_sub_u32 s69, {254 + 9}, s68
        s_lshl_b32 s72, s69, 23               ; scale = 2^(9 - e)
        s_sub_u32 s68, s68, 9
        s_lshl_b32 s73, s68, 23               ; inverse
        v_subrev_f32 v{AC[0][0]}, s47, v{AC[0][0]}
        v_subrev_f32 v{AC[1][0]}, s47, v{AC[1][0]}
        """)
        for c in range(2): A(f"v_mul_f32 v{WS_[c]}, s72, v{WS_[c]}\nv_mul_f32 v{WS_[c]+1}, s72, v{WS_[c]+1}")
    def unscale16():
        for k in range(12): A(f"v_mul_f32 v{KD+k}, s73, v{KD+k}")
        A(f"""
        s_cmp_eq_u32 s47, 0
        s_cbranch_scc1 S_nogrow
        v_and_b32 v8, 15, v12
        v_lshrrev_b32 v9, 4, v12              ; q
        v_lshlrev_b32 v8, 3, v8               ; 8 i
        v_cmp_lt_u32 vcc, 1, v9
        v_lshlrev_b32 v10, 2, v9
        v_add_u32 v11, 120, v10
        v_cndmask_b32 v60, v10, v11, vcc
        v_lshlrev_b32 v10, 7, v9
        v_add_u32 v10, 256, v10
        v_lshlrev_b32 v11, 8, v9
        v_cndmask_b32 v61, v10, v11, vcc
        v_lshlrev_b32 v62, 9, v9
        v_add_u32 v62, 1024, v62
        """)
        for t_ in range(3):
            for r in range(4):
                if t_ == 1:
                    A(f"v_mov_b32 v10, {2*r}\nv_mov_b32 v11, {128*(r >> 1) + 4*(r & 1)}\nv_cndmask_b32 v10, v10, v11, vcc\nv_add3_u32 v10, v10, v61, v8")
                else:
                    A(f"v_add_u32 v10, {r if t_ == 0 else 128*r}, v{60+t_}\nv_add_u32 v10, v10, v8")
                A(f"v_cvt_f32_u32 v10, v10\nv_mul_f32 v10, s47, v10\nv_exp_f32 v10, v10\ns_nop 0\nv_mul_f32 v{KD+4*t_+r}, v{KD+4*t_+r}, v10")
        A("S_nogrow:")
    def gather_addresses():
        T0, E_, K_ = (32, 48, 66) if use16 else (76, 85, 64)
        Vr = [244 + e for e in range(8)] + [25] if use16 else [94 + e for e in range(8)] + [25]
        B(f"v_lshlrev_b32 v{GA}, 3, v0\nv_sub_u32 v{GA}, 2047, v{GA}\nv_cvt_f32_u32 v{GA}, v{GA}")
        for e in range(9): B(f"v_add_f32 v{T0+e}, {f2u(-1.0*e)}, v{GA}")
        for e in range(0, 9, 2): B(f"v_cvt_pk_bf16_f32 v{E_+e//2}, v{T0+e}, v{T0+min(e+1,8)}")
        for e in range(9): B(f"v_and_b32 v{T0+e}, 0xffff0000, v{E_+e//2}" if e & 1 else f"v_lshlrev_b32 v{T0+e}, 16, v{E_+e//2}")
        for e in range(9): B(f"v_frexp_exp_i32_f32 v{E_+e}, v{T0+e}\nv_cvt_u32_f32 v{Vr[e]}, v{T0+e}")
        for e in range(9): B(f"v_subrev_u32 v{E_+e}, 8, v{E_+e}\nv_lshrrev_b32 v{T0+e}, 7, v{Vr[e]}\nv_and_b32 v{GA+e}, 7, v{Vr[e]}")
        for e in range(9): B(f"v_max_i32 v{E_+e}, 0, v{E_+e}\nv_lshl_or_b32 v{T0+e}, v{T0+e}, 3, v{GA+e}\nv_bfe_u32 v{Vr[e]}, v{Vr[e]}, 3, 4")
        for e in range(9): B(f"v_lshrrev_b32 v{T0+e}, v{E_+e}, v{T0+e}\nv_lshlrev_b32 v{Vr[e]}, 2, v{Vr[e]}")
        for e in range(9): B(f"v_lshl_add_u32 v{T0+e}, v{E_+e}, 3, v{T0+e}\nv_add_u32 v{Vr[e]}, {CMP}, v{Vr[e]}")
        B(f"v_mov_b32 v{K_}, 80")
        for e in range(9): B(f"v_mad_u32_u24 v{GA+e}, v{T0+e}, v{K_}, v{Vr[e]}")
    def publish_u():
        vwait0('S_w2')
        A(f"s_cmp_lg_u32 s96, 0\ns_cbranch_scc1 S_havetag")
        get_nonce(A, 'SA', 8, 60, 96)
        A(f"""
S_havetag:
        s_lshl_b32 s38, s27, 5
        s_add_u32 s38, s38, s26
        s_lshl_b32 s38, s38, 2
        s_add_u32 s38, s38, s24
        s_lshl_b32 s38, s38, 3
        s_add_u32 s38, s38, {FL_U}
        v_mov_b32 v10, s38
        v_mov_b32 v8, s96
        v_mov_b32 v9, s97
        s_mov_b64 exec, 1
        buffer_store_dwordx2 v[8:9], v10, s[56:59], 0 offen sc1
        s_mov_b64 exec, -1
        """)
    def pollissue():
        A(f"""
        v_lshlrev_b32 v6, 4, v12
        s_lshr_b32 s38, s25, 5
        s_lshl_b32 s38, s38, 10
        s_add_u32 s38, s38, {FL_U}
        v_add_u32 v6, s38, v6
        buffer_load_dwordx4 v[8:11], v6, s[56:59], 0 offen sc1
        """)
    def udma():
        A("s_mov_b64 s[28:29], vcc\ns_waitcnt vmcnt(0)")
        poll_flags4(A, 'SU', 6, 8, 56, 96, 99, first_issued=True, sleep=4)
        A(f"""
        s_barrier
        v_lshlrev_b32 v6, 6, v12
        s_lshr_b32 s38, s25, 1
        s_lshl_b32 s38, s38, 14
        s_and_b32 s39, s25, 1
        s_lshl_b32 s39, s39, 5
        s_add_u32 s38, s38, s39
        s_lshl_b32 s39, s24, 12
        s_add_u32 s38, s38, s39
        s_lshl_b32 s39, s24, 10
        s_add_u32 m0, s39, {UB[0] + 512}
        s_mov_b64 vcc, s[28:29]
        buffer_load_dwordx4 v6, s[12:15], s38 offen lds
        s_add_u32 m0, s39, {UB[1] + 512}
        s_add_u32 s38, s38, 16
        buffer_load_dwordx4 v6, s[12:15], s38 offen lds
        """)
    ST.mark(A)
    A(f"""
    s_waitcnt vmcnt({0 if LATE else 6})
    v_lshlrev_b32 v{dt}, 16, v26
    v_and_b32 v26, 0xffff0000, v26
    s_cmp_ge_u32 s24, 2
    s_cselect_b64 vcc, -1, 0
    v_cndmask_b32 v{dt}, v{dt}, v26, vcc
    v_mul_f32 v{dt}, {f2u(L2E)}, v{dt}
    v_exp_f32 v{dt}, v{dt}
    s_nop 0
    v_cvt_pk_bf16_f32 v{dt}, v{dt}, v{dt}
    v_lshlrev_b32 v{dt}, 16, v{dt}
    """)
    if opt.get('s_touchonly'):
        A("s_cmp_ge_u32 s87, 4\ns_cbranch_scc1 S_tend\ns_sleep 40")
        for q in range(13): A(f"buffer_load_dword v3, v2, s[48:51], s85 offen\ns_add_u32 s85, s85, {16 * 8192}")
        A("S_tend:\ns_endpgm")
    ST.mark(A)
    if use16:
        setup16(); tables16(0); tables16(1)
        assert nxt[0] <= 120 and hnx[0] <= 140
    else:
        tables(0); tables(1)
    ng = len(B.l)
    gather_addresses()
    fs = opt.get('fake_split', 0)
    if fs:
        half = next(i_ for i_, x in enumerate(B.l) if 'v_and_b32 v32, 0xffff0000' in x)
        seqA = schedule(B.l[:half], filler='v_mov_b32 v29, v29', window=700)
        seqB = schedule(B.l[half:], filler='v_mov_b32 v29, v29', window=700)
    seq = seqA + seqB if fs else schedule(B.l, filler='v_mov_b32 v29, v29' if opt.get('fill', 0 if use16 else 1) else None, window=700)
    N = len(seq)
    firstga = next(i for i, x in enumerate(seq) if x.startswith(f"v_lshlrev_b32 v{GA}, 3, v0"))
    print('S table ops', len(B.l), 'scheduled', N, 'nops', seq.count('s_nop 0'), 'fillers', seq.count('v_mov_b32 v29, v29'), 'first gather op at', firstga)
    tp = int(N * opt.get('t_at', 0.2))
    assert tp < firstga
    hk = {int(N * LATE) if LATE else -1: lambda: (A(late), ntouch.__setitem__(0, 0)), tp: tpart, int(N * opt.get('pub_at', 0.35)): publish_u, N // 2: lambda: ST.mark(A),
          int(N * opt.get('poll_at', 0.85)): pollissue, int(N * opt.get('udma_at', 0.97)): udma}
    nt = opt.get('wd_n', 13); t0_, t1_ = opt.get('wd_span', (0.36, 0.95))
    tpos = {int(N * (t0_ + (t1_ - t0_) * q / max(1, nt - 1))) + 1: q for q in range(nt)} if opt.get('wdpf', 1) else {}
    def conv(es, ACC, BR, AR, va, vb):
        L = Lds(A)
        ns = [8 * e + q for e in es for q in range(8)]
        def rdB(e, j): L.issue(f"ds_read_b128 {v(BR[e&1] + 4*j, 4)}, v{vb} offset:{512*j + 32*(13 - (1 + 4*e))}", ('B', e, j))
        def rdA(n):
            e, q = divmod(n, 8)
            o = 32 * (127 - 16*q - (1 + 4*e)) - 64; r = AR + 4 * (n % 4)
            L.issue(f"ds_read_b64 {v(r,2)}, v{va} offset:{o}", ('A0', n)); L.issue(f"ds_read_b64 {v(r+2,2)}, v{va} offset:{o+8}", ('A', n))
        rdA(ns[0])
        for j in range(8): rdB(es[0], j)
        rdA(ns[1]); rdA(ns[2])
        for n in ns:
            e, q = divmod(n, 8)
            for j in range(q, 8):
                L.need(('A', n), ('B', e, j - q))
                first = (n == ns[0])
                A(f"v_mfma_f32_16x16x32_bf16 {v(ACC+4*j,4)}, {v(AR+4*(n%4),4)}, {v(BR[e&1]+4*(j-q),4)}, {'0' if first else v(ACC+4*j,4)}")
                if j == q:
                    if n + 3 <= ns[-1]: rdA(n + 3)
                    if e < es[-1] and q < 4: rdB(e + 1, 2*q); rdB(e + 1, 2*q + 1)
    def fake_mid():
        A("s_nop 7\nv_lshlrev_b32 v8, 4, v12\nv_lshlrev_b32 v9, 3, v12\nv_lshlrev_b32 v10, 2, v12")
        for k in range(12): A(f"ds_write_b32 v28, v{232+k} offset:{k*80}")
        A("s_waitcnt lgkmcnt(0)\ns_barrier")
        for k in range(18): A(f"ds_read_b32 v{100+k}, v10 offset:{CMP + k*256}")
        A("s_waitcnt lgkmcnt(0)")
        for k in range(17): A(f"v_add_f32 v{100+k}, v{100+k}, v{101+k}")
        for k in range(2): A(f"ds_write_b128 v8, v[100:103] offset:{k*4096}")
        for k in range(4): A(f"ds_write2_b32 v9, v100, v101 offset0:{2*k} offset1:{2*k+1}")
        A("s_waitcnt lgkmcnt(0)\ns_barrier")
        conv([0, 1], 72, [104, 136], 168, 9, 8)
        A("s_nop 7")
        for k in range(6): A(f"ds_write_b128 v8, v[{72+4*k}:{75+4*k}] offset:{RED + k*1024}")
        A("s_waitcnt lgkmcnt(0)\ns_barrier")
        for k in range(6): A(f"ds_read_b128 v[{104+4*k}:{107+4*k}], v8 offset:{RED + k*1024}")
        A("s_waitcnt lgkmcnt(0)")
        for k in range(40): A(f"v_add_f32 v{104+k%24}, v{104+k%24}, v{72+k%24}")
    for i, x in enumerate(seq):
        if fs and i == len(seqA): fake_mid()
        if i in hk: hk[i]()
        if i in tpos:
            A(f"s_cmp_ge_u32 s87, 4\ns_cbranch_scc1 S_wt{tpos[i]}\nbuffer_load_dword v67, v2, s[48:51], s85 offen\ns_add_u32 s85, s85, {16 * 8192}\nS_wt{tpos[i]}:")
            ntouch[0] += 1
        A(x)
    ST.mark(A)
    A(f"""
    v_mov_b32 v7, {CMP + 64}
    v_cmp_eq_u32 vcc, 255, v0
    v_and_b32 v6, 15, v12                 ; rho / n
    s_lshr_b32 s32, s24, 1                ; ch
    v_cndmask_b32 v{GA+8}, v{GA+8}, v7, vcc
    v_lshrrev_b32 v7, 4, v12              ; kg
    s_and_b32 s27, s24, 1                 ; par
    """)
    if use16:
        A("s_nop 4"); unscale16()
    A("v_not_b32 v8, v6\nv_and_b32 v8, 3, v8")
    for t in range(3):
        for r in range(4):
            if t == 2 and r == 0: A("s_mov_b32 exec_hi, 0xffff")
            if t == 2 and r == 1: A("s_mov_b32 exec_hi, 0")
            A(f"ds_write_b32 v{DA}, v{KD+4*t+r} offset:{t*1280 + r*80}")
    A(f"""
    s_mov_b64 exec, -1
    v_mul_u32_u24 v8, {CP}, v8
    v_and_b32 v9, 12, v6
    v_lshlrev_b32 v9, 1, v9
    v_sub_u32 v8, v8, v9
    v_lshl_add_u32 v8, v7, 4, v8
    s_mul_i32 s38, s32, {CH}
    s_lshl_b32 s39, s27, 6
    s_sub_u32 s38, s38, s39
    s_add_u32 s38, s38, {2*2044 - 32*127 + 64}
    v_add_u32 v1, s38, v8                 ; vA
    v_lshlrev_b32 v8, 5, v6
    v_lshl_add_u32 v9, v7, 4, v8
    s_mul_i32 s38, s32, {UB[1]-UB[0]}
    s_add_u32 s38, s38, {UB[0] + 512}
    s_sub_u32 s39, s38, s39
    s_sub_u32 s39, s39, {32*13}
    v_add_u32 v2, s39, v9                 ; vB
    v_lshl_add_u32 v3, v7, 3, v8
    v_add_u32 v4, s38, v3
    v_and_b32 v3, 2, v7
    v_lshl_add_u32 v3, v3, 3, v8
    v_and_b32 v5, 1, v7
    v_lshl_add_u32 v3, v5, 10, v3
    s_waitcnt lgkmcnt(0)
    s_barrier
    """)
    ST.mark(A)
    E = [64, 80]
    for c in range(2):
        for e in range(9):
            A(f"ds_read_b32 v{100 + 20*c + e}, v{GA+e} offset:{2*c*CMPSZ}\nds_read_b32 v{110 + 20*c + e}, v{GA+e} offset:{(2*c+1)*CMPSZ}")
    A(f"""
    v_lshlrev_b32 v5, 4, v12
    s_lshl_b32 s38, s24, 12
    s_add_u32 s38, s38, {RED}
    v_add_u32 v14, s38, v5
    s_xor_b32 s38, s24, 1
    s_lshl_b32 s38, s38, 12
    s_add_u32 s38, s38, {RED}
    v_add_u32 v15, s38, v5
    s_lshl_b32 s35, s37, 16
    s_and_b32 s38, s37, 0xffff0000
    s_cmp_eq_u32 s32, 1
    s_cselect_b32 s35, s38, s35           ; Dskip (f32)
    s_lshl_b32 s33, s25, 1
    s_add_u32 s33, s33, s32
    s_lshl_b32 s33, s33, 12               ; d*4096
    v_lshlrev_b32 v6, 4, v0
    v_add_u32 v7, {2*CP - 4}, v6
    v_add_u32 v8, {3*CP - 4}, v6
    v_add_u32 v9, {CH + 2*CP - 4}, v6
    v_add_u32 v10, {CH + 3*CP - 4}, v6
    """)
    def copies(c, e, o):
        A(f"""ds_write_b128 v6, {v(e,4)} offset:{c*CH}
        ds_write_b128 v6, {v(o,4)} offset:{c*CH + CP}
        ds_write2_b32 v{7+2*c}, v{e}, v{e+1} offset0:0 offset1:1
        ds_write2_b32 v{7+2*c}, v{e+2}, v{e+3} offset0:2 offset1:3
        ds_write2_b32 v{8+2*c}, v{o}, v{o+1} offset0:0 offset1:1
        ds_write2_b32 v{8+2*c}, v{o+2}, v{o+3} offset0:2 offset1:3""")
    for c in range(2):
        A(f"s_waitcnt lgkmcnt({15 if c == 0 else 6})")
        b = 100 + 20*c
        for e in range(9): A(f"v_add_f32 v{b+e}, v{b+e}, v{b+10+e}")
        for j in range(4): A(f"v_cvt_pk_bf16_f32 v{E[c]+j}, v{b+2*j}, v{b+2*j+1}\nv_cvt_pk_bf16_f32 v{E[c]+8+j}, v{b+2*j+1}, v{b+2*j+2}")
        copies(c, E[c], E[c] + 8)
    A(f"s_cmp_lg_u32 s24, 0\ns_cbranch_scc1 S_nozero\ns_mov_b64 exec, 3")
    for k in range(4): A(f"v_mov_b32 v{96+k}, 0")
    for k in range(6, 11): A(f"v_add_u32 v{k}, 4096, v{k}")
    for c in range(2): copies(c, 96, 96)
    A("s_mov_b64 exec, -1\nS_nozero:\ns_waitcnt vmcnt(0) lgkmcnt(0)\ns_barrier")
    ST.mark(A)
    if 'prio_conv' in opt: A(f"s_setprio {opt['prio_conv']}")
    ACC, BR, AR = 16, [64, 96], 48
    conv([2, 3] if fs else [0, 1, 2, 3], ACC, BR, AR, 1, 2)
    ST.mark(A)
    A("s_cmp_eq_u32 s27, 1\ns_cbranch_scc1 S_epi1")
    for par in range(2):
        if par: A("S_epi1:")
        keep = [j for j in range(8) if (j & 1) == par]; send = [j for j in range(8) if (j & 1) != par]
        for k, j in enumerate(keep): A(f"ds_read_b64 {v(64+2*k,2)}, v4 offset:{512*j}")
        A("s_nop 3")
        for k, j in enumerate(send): A(f"ds_write_b128 v14, {v(ACC+4*j,4)} offset:{k*1024}")
        A("s_waitcnt lgkmcnt(4)")
        for k, j in enumerate(keep):
            for r in range(4):
                src = 64 + 2*k + r // 2
                A(f"v_and_b32 v{96+4*k+r}, 0xffff0000, v{src}" if r & 1 else f"v_lshlrev_b32 v{96+4*k+r}, 16, v{src}")
            for r in range(4): A(f"v_fmac_f32 v{ACC+4*j+r}, s35, v{96+4*k+r}")
        A("s_waitcnt lgkmcnt(0)\ns_barrier")
        for k, j in enumerate(keep): A(f"ds_read_b128 {v(80+4*k,4)}, v15 offset:{k*1024}")
        for k, j in enumerate(keep):
            A(f"s_waitcnt lgkmcnt({3-k})")
            for r in range(4): A(f"v_add_f32 v{ACC+4*j+r}, v{ACC+4*j+r}, v{80+4*k+r}")
            A(f"v_cvt_pk_bf16_f32 v{112+2*k}, v{ACC+4*j}, v{ACC+4*j+1}\nv_cvt_pk_bf16_f32 v{113+2*k}, v{ACC+4*j+2}, v{ACC+4*j+3}")
            if k & 1:
                b = 112 + 2*(k-1)
                A(f"s_nop 1\nv_permlane16_swap_b32 v{b}, v{b+2}\nv_permlane16_swap_b32 v{b+1}, v{b+3}")
                A(f"buffer_store_dwordx4 {v(b,4)}, v3, s[16:19], s33 offen offset:{512*keep[k-1]} sc1")
        if par == 0: A("s_branch S_done")
    A(f"""
S_done:
    s_lshl_b32 s38, s25, 2
    s_add_u32 s38, s38, s24
    s_lshl_b32 s38, s38, 3
    s_add_u32 s38, s38, {FL_A}
    v_mov_b32 v10, s38
    v_mov_b32 v8, s96
    v_mov_b32 v9, s97
    s_mov_b64 exec, 1
    s_waitcnt vmcnt(0)
    buffer_store_dwordx2 v[8:9], v10, s[56:59], 0 offen sc1
    s_mov_b64 exec, -1
    """)
    ST.finish(A, tsbase)
    A("s_endpgm")
```
